```python
import torch

def _softmax(x, axis=-1):
    return torch.softmax(x, dim=axis)
def _gelu(x):
    return torch.nn.functional.gelu(x, approximate="tanh")
def _silu(x):
    return torch.nn.functional.silu(x)
def _sigmoid(x):
    return torch.sigmoid(x)
def _layernorm(x, axis=-1, eps=1e-5):
    m = x.mean(dim=axis, keepdim=True)
    v = x.var(dim=axis, keepdim=True, unbiased=False)
    return (x - m) / torch.sqrt(v + eps)
def _scatter_add(tgt, idx, src, axis=0):
    return tgt.clone().index_add_(axis, idx, src)
def _segment_sum(src, seg, n):
    out = torch.zeros((n,) + src.shape[1:], dtype=src.dtype)
    return out.index_add_(0, seg, src)
def _pad(x, pw):
    flat = tuple(v for pair in reversed(pw) for v in pair)
    return torch.nn.functional.pad(x, flat)

kernel_name = 'sequential_preLN__spectral_gfnet__mixer_channel_mlp__prompt'

def setup_inputs():

    _w = (lambda a: (lambda t: t.to(torch.bfloat16) if t.is_floating_point() else t)(torch.as_tensor(a)))
    def _A_setup():
        B, S, D = 1, 2048, 512
        Df = D // 2 + 1
        return {
            "x": _w((lambda *s: torch.randn(*s, dtype=torch.bfloat16) * 0.05)(B, S, D)),
            "w_r": _w((lambda *s: torch.randn(*s, dtype=torch.bfloat16) * 0.8)(S, Df) * 0.02),
            "w_i": _w((lambda *s: torch.randn(*s, dtype=torch.bfloat16) * 0.8)(S, Df) * 0.02),
        }
    _A_in = _A_setup()

    def _B_setup():
        B, S, D, F = 1, 2048, 512, 1792
        return {
            "x": _w((lambda *s: torch.randn(*s, dtype=torch.bfloat16) * 0.05)(B, S, D)),
            "w1": _w((lambda *s: torch.randn(*s, dtype=torch.bfloat16) * 0.8)(D, F) * (D ** -0.5)),
            "b1": _w((lambda *s: torch.randn(*s, dtype=torch.bfloat16) * 0.4)(F)),
            "w2": _w((lambda *s: torch.randn(*s, dtype=torch.bfloat16) * 0.05)(F, D) * (F ** -0.5)),
            "b2": _w((lambda *s: torch.randn(*s, dtype=torch.bfloat16) * 0.05)(D)),
        }
    _B_in = _B_setup()

    return {
        "A_x": _A_in["x"],
        "A_w_r": _A_in["w_r"],
        "A_w_i": _A_in["w_i"],
        "B_x": _B_in["x"],
        "B_w1": _B_in["w1"],
        "B_b1": _B_in["b1"],
        "B_w2": _B_in["w2"],
        "B_b2": _B_in["b2"],
    }

def reference(A_x, A_w_r, A_w_i, B_x, B_w1, B_b1, B_w2, B_b2):
    def _A_ref(x, w_r, w_i):
        B, S, D = x.shape
        X = (lambda x, axes=(-2,-1): torch.fft.rfft2(x.float(), dim=axes))(x, axes=(-2, -1))
        W = w_r + 1j * w_i
        X = X * W
        y = (lambda x, s, axes=(-2,-1): torch.fft.irfft2(x, s=s, dim=axes).to(torch.bfloat16))(X, (S, D), axes=(-2, -1))
        return y

    def _B_ref(x, w1, b1, w2, b2):
        y = _layernorm(x, axis=-1)
        h = _gelu(torch.einsum("bsd,df->bsf", y, w1) + b1)
        return torch.einsum("bsf,fd->bsd", h, w2) + b2

    x = A_x
    h = x + _A_ref(_layernorm(x, axis=-1), A_w_r, A_w_i)
    h2 = h + _B_ref(_layernorm(h, axis=-1), B_w1, B_b1, B_w2, B_b2)
    return h2
```

```python
import re, struct

def f2u(x):
    return struct.unpack('<I', struct.pack('<f', x))[0]

def hexf(x):
    return '0x%08x' % f2u(x)

class R:
    __slots__ = ('k', 'i', 'n')
    def __init__(s, k, i, n=1):
        s.k, s.i, s.n = k, i, n
    def __getitem__(s, x):
        if isinstance(x, slice):
            a = x.start or 0
            b = s.n if x.stop is None else x.stop
            assert 0 <= a < b <= s.n, (s, x)
            return R(s.k, s.i + a, b - a)
        assert 0 <= x < s.n, (s, x)
        return R(s.k, s.i + x, 1)
    def __len__(s):
        return s.n
    def __str__(s):
        return '%s%d' % (s.k, s.i) if s.n == 1 else '%s[%d:%d]' % (s.k, s.i, s.i + s.n - 1)
    __repr__ = __str__
    def regs(s):
        return [(s.k, s.i + j) for j in range(s.n)]

def v(i, n=1): return R('v', i, n)
def a(i, n=1): return R('a', i, n)
def s(i, n=1): return R('s', i, n)
VCC = R('s', 106, 2)
EXEC = R('s', 126, 2)
M0 = R('s', 124, 1)

def opstr(o):
    if isinstance(o, R):
        if o.k == 's' and o.i == 106 and o.n == 2: return 'vcc'
        if o.k == 's' and o.i == 126 and o.n == 2: return 'exec'
        if o.k == 's' and o.i == 126 and o.n == 1: return 'exec_lo'
        if o.k == 's' and o.i == 127 and o.n == 1: return 'exec_hi'
        if o.k == 's' and o.i == 124 and o.n == 1: return 'm0'
        return str(o)
    if isinstance(o, Neg): return '-' + opstr(o.r)
    if isinstance(o, Abs): return '|' + opstr(o.r) + '|'
    if isinstance(o, float):
        if o in (0.5, -0.5, 1.0, -1.0, 2.0, -2.0, 4.0, -4.0): return repr(o)
        if o == 0.0: return '0'
        return hexf(o)
    if isinstance(o, int):
        if -16 <= o <= 64: return str(o)
        return '0x%x' % (o & 0xffffffff)
    return str(o)

class Neg:
    def __init__(s, r): s.r = r
class Abs:
    def __init__(s, r): s.r = r

def regs_of(o):
    if isinstance(o, R): return o.regs()
    if isinstance(o, (Neg, Abs)): return regs_of(o.r)
    return []

TRANS = ('v_exp_f32', 'v_log_f32', 'v_rcp_f32', 'v_rsq_f32', 'v_sqrt_f32', 'v_sin_f32', 'v_cos_f32')

class Inst:
    __slots__ = ('op', 'ops', 'mods', 'defs', 'uses', 'kind', 'region', 'text', 'cdefs', 'cuses', 'passes', 'tag', 'wide_store_data', 'abuses', 'done')
    def __init__(s):
        s.defs = []; s.uses = []; s.kind = ''; s.cuses = []; s.abuses = []; s.passes = 0; s.tag = None
        s.wide_store_data = []; s.done = False

class Asm:
    def __init__(self):
        self.ins = []
        self.region = 0
        self._nreg = 0
        self.vmq = []
        self.lgq = []
        self.pend = {}
        self.out = []
        self.maxv = -1; self.maxa = -1; self.maxs = -1

    def raw(self, text):
        i = Inst(); i.op = 'raw'; i.text = text; i.kind = 'raw'; i.region = self.region
        self.ins.append(i); return i
    def comment(self, t):
        return self.raw('; ' + t)
    def label(self, name):
        i = Inst(); i.op = 'label'; i.text = name + ':'; i.kind = 'label'; i.region = self.region
        self.ins.append(i); return i
    def begin_cond(self):
        assert self.region == 0
        self._nreg += 1; self.region = self._nreg
    def end_cond(self):
        self.region = 0
    def reset_state(self):
        self.vmq = []; self.lgq = []; self.pend = {}
        i = Inst(); i.op = 'reset'; i.text = ''; i.kind = 'reset'; i.region = 0
        self.ins.append(i)

    def _count_younger(self, q, x):
        idx = q.index(x)
        return sum(1 for y in q[idx + 1:] if y.region in (0, self.region) or y.region == x.region)
    def _emit_wait(self, vm=None, lg=None):
        parts = []
        if vm is not None: parts.append('vmcnt(%d)' % min(vm, 63))
        if lg is not None: parts.append('lgkmcnt(%d)' % min(lg, 15))
        i = Inst(); i.op = 's_waitcnt'; i.text = 's_waitcnt ' + ' '.join(parts); i.kind = 'salu'; i.region = self.region
        self.ins.append(i)
    def _retire(self, q, x):
        idx = q.index(x)
        for y in q[:idx + 1]:
            y.done = True
            for r in y.defs:
                if self.pend.get(r) is y: del self.pend[r]
        del q[:idx + 1]
    def wait(self, *hs):
        vm = lg = None; vx = lx = None
        for h in hs:
            if h is None or h.done: continue
            if h in self.vmq:
                n = self._count_younger(self.vmq, h)
                if vx is None or self.vmq.index(h) > self.vmq.index(vx): vx = h
                vm = n if vm is None else min(vm, n)
            elif h in self.lgq:
                if any(y.kind == 'smem' for y in self.lgq):
                    lg = 0; lx = self.lgq[-1]
                else:
                    n = self._count_younger(self.lgq, h)
                    if lx is None or self.lgq.index(h) > self.lgq.index(lx): lx = h
                    lg = n if lg is None else min(lg, n)
        if vm is None and lg is None: return
        if self.region != 0:
            self._emit_wait(vm, lg)
            self._cond_retire(vx, lx)
            return
        self._emit_wait(vm, lg)
        if vx is not None: self._retire(self.vmq, vx)
        if lx is not None: self._retire(self.lgq, lx)
    def _cond_retire(self, vx, lx):
        for q, x in ((self.vmq, vx), (self.lgq, lx)):
            if x is None: continue
            idx = q.index(x)
            keep = []
            for j, y in enumerate(q):
                if j <= idx and y.region == self.region:
                    y.done = True
                    for r in y.defs:
                        if self.pend.get(r) is y: del self.pend[r]
                else:
                    keep.append(y)
            q[:] = keep
    def wait_vm0(self):
        self._emit_wait(vm=0)
        if self.vmq:
            if self.region == 0: self._retire(self.vmq, self.vmq[-1])
            else: self._cond_retire(self.vmq[-1], None)
    def wait_lg0(self):
        self._emit_wait(lg=0)
        if self.lgq:
            if self.region == 0: self._retire(self.lgq, self.lgq[-1])
            else: self._cond_retire(None, self.lgq[-1])
    def wait_all(self):
        self._emit_wait(vm=0, lg=0)
        for q in (self.vmq, self.lgq):
            if q:
                if self.region == 0: self._retire(q, q[-1])
        if self.region != 0:
            self._cond_retire(self.vmq[-1] if self.vmq else None, self.lgq[-1] if self.lgq else None)
    def barrier(self):
        self.I('s_barrier')

    def I(self, op, *ops, mods='', defs=None, uses=None):
        i = Inst(); i.op = op; i.ops = ops; i.mods = mods; i.region = self.region
        i.text = op + ((' ' + ', '.join(opstr(o) for o in ops)) if ops else '') + ((' ' + mods) if mods else '')
        d, u = self._du(i)
        if defs is not None: d = [r for o in defs for r in regs_of(o)]
        if uses is not None: u = u + [r for o in uses for r in regs_of(o)]
        i.defs, i.uses = d, u
        for k, n in d + u:
            if k == 'v': self.maxv = max(self.maxv, n)
            elif k == 'a': self.maxa = max(self.maxa, n)
            elif k == 's' and n < 102: self.maxs = max(self.maxs, n)
        need = []
        for r in d + u:
            h = self.pend.get(r)
            if h is not None and h not in need: need.append(h)
        if need:
            if i.kind in ('vmem', 'ds') and not any(r in self.pend for r in u):
                need = [h for h in need if h.kind != i.kind]
            if need: self.wait(*need)
        self.ins.append(i)
        if i.kind == 'vmem':
            self.vmq.append(i)
            assert len(self.vmq) <= 63 or True
            for r in d: self.pend[r] = i
        elif i.kind in ('ds', 'smem'):
            self.lgq.append(i)
            for r in d: self.pend[r] = i
        return i

    def _du(self, i):
        op, ops = i.op, i.ops
        R_ = lambda *x: [r for o in x for r in regs_of(o)]
        if op.startswith('v_mfma'):
            i.kind = 'mfma'
            i.passes = 8 if '32x32' in op else 4
            i.cuses = R_(ops[3]); i.abuses = R_(ops[1], ops[2])
            return R_(ops[0]), R_(ops[1], ops[2], ops[3])
        if op.startswith('buffer_') or op.startswith('global_'):
            i.kind = 'vmem'
            lds = ' lds' in (' ' + i.mods) or '_lds_' in op
            if op in ('buffer_wbl2', 'buffer_inv'):
                return [], []
            if lds:
                return [], R_(*ops) + [('s', 124)]
            if '_load' in op:
                return R_(ops[0]), R_(*ops[1:])
            if '_store' in op:
                data = ops[0] if op.startswith('buffer_') else ops[1]
                if data.n >= 3: i.wide_store_data = R_(data)
                return [], R_(*ops)
            if '_atomic' in op:
                if 'sc0' in i.mods:
                    if op.startswith('buffer_'): return R_(ops[0]), R_(*ops)
                    return R_(ops[0]), R_(*ops[1:])
                return [], R_(*ops)
            raise ValueError(op)
        if op.startswith('ds_'):
            i.kind = 'ds'
            if op.startswith('ds_read') or op.startswith('ds_bpermute') or op.startswith('ds_swizzle'):
                return R_(ops[0]), R_(*ops[1:])
            return [], R_(*ops)
        if op.startswith('s_load') or op in ('s_memtime', 's_memrealtime'):
            i.kind = 'smem'
            return R_(ops[0]), R_(*ops[1:])
        if op.startswith('s_'):
            i.kind = 'salu'
            if op.startswith('s_cmp') or op.startswith('s_bitcmp'):
                return [], R_(*ops)
            if op in ('s_barrier', 's_endpgm', 's_nop', 's_sleep', 's_setprio', 's_branch') or op.startswith('s_cbranch'):
                return [], []
            if op == 's_and_saveexec_b64':
                return R_(ops[0]) + EXEC.regs(), R_(ops[1]) + EXEC.regs()
            if op.startswith('s_addk') or op.startswith('s_mulk'):
                return R_(ops[0]), R_(ops[0])
            return R_(ops[0]), R_(*ops[1:])
        if op.startswith('v_'):
            i.kind = 'valu'
            if op in TRANS: i.kind = 'trans'
            if 'permlane' in op or op == 'v_swap_b32':
                return R_(ops[0], ops[1]), R_(ops[0], ops[1])
            if op.startswith('v_fmac') or op.startswith('v_dot2c') or op == 'v_writelane_b32':
                return R_(ops[0]), R_(*ops)
            if op.startswith('v_cndmask') and len(ops) == 3:
                return R_(ops[0]), R_(*ops[1:]) + VCC.regs()
            if '_co_' in op:
                return R_(ops[0], ops[1]), R_(*ops[2:])
            return R_(ops[0]), R_(*ops[1:])
        raise ValueError('unknown op ' + op)

    def _need(self, p, c):
        n = 0
        pv = p.kind in ('valu', 'trans')
        cv = c.kind in ('valu', 'trans')
        pd = set(p.defs)
        if pv:
            pvg = set(r for r in pd if r[0] != 's')
            psg = pd - pvg
            if pvg:
                cu = set(c.uses)
                if c.kind == 'mfma' and pvg & cu: n = max(n, 2)
                if cv and pvg & cu:
                    if p.kind == 'trans' and c.kind != 'trans': n = max(n, 1)
                    if p.kind == 'trans' and c.kind == 'trans': n = max(n, 1)
                    if '_dpp' in c.op or 'permlane' in c.op: n = max(n, 2)
                    if 'readlane' in c.op or 'readfirstlane' in c.op: n = max(n, 1)
            if psg:
                cu = set(c.uses)
                if psg & cu:
                    if c.kind == 'vmem': n = max(n, 5)
                    elif cv:
                        n = max(n, 4 if ('readlane' in c.op or 'writelane' in c.op) else 2)
                    elif c.kind == 'mfma': n = max(n, 4)
                    elif c.kind in ('salu', 'smem'): n = max(n, 2)
        if p.kind == 'mfma':
            D = pd
            if c.kind == 'mfma':
                cc = set(c.cuses)
                if D & set(c.abuses): n = max(n, p.passes + 4)
                if D & cc:
                    if cc == D and c.passes == p.passes: pass
                    else: n = max(n, p.passes + 2)
                elif D & set(c.defs):
                    n = max(n, p.passes + 4)
            elif c.kind in ('valu', 'trans', 'vmem', 'ds'):
                if D & (set(c.uses) | set(c.defs)): n = max(n, p.passes + 4)
            if cv and set(p.cuses) & set(c.defs): n = max(n, p.passes - 1)
        if p.wide_store_data:
            if set(p.wide_store_data) & set(c.defs): n = max(n, 2 if cv else 1)
        if p.kind == 'salu' and ('s', 124) in pd and c.kind == 'vmem' and ('s', 124) in c.uses:
            n = max(n, 1)
        if p.kind == 'salu' and (('s', 126) in pd or ('s', 127) in pd) and ('_dpp' in c.op or 'permlane' in c.op):
            n = max(n, 1)
        return n

    def finish(self):
        out = []
        WIN = 14
        for c in self.ins:
            if c.kind == 'reset':
                out.append(c); continue
            if c.kind in ('raw', 'label'):
                out.append(c); continue
            need = 0; dist = 0; j = len(out) - 1; seen = 0
            while j >= 0 and dist < WIN:
                p = out[j]; j -= 1
                if p.kind == 'reset': break
                if p.kind in ('raw', 'label'): continue
                w = self._need(p, c)
                if w > dist: need = max(need, w - dist)
                counts = p.region in (0, c.region)
                if counts:
                    dist += (p.nopn if p.op == 's_nop' and hasattr(p, 'nopn') else 1)
            while need > 0:
                k = min(need, 16)
                nop = NopInst(k); nop.region = c.region
                out.append(nop); need -= k
            out.append(c)
        return '\n'.join(('' if i.kind in ('label', 'reset') else '\t') + i.text for i in out) + '\n'

class NopInst(Inst):
    __slots__ = ('nopn',)
    def __init__(s, k):
        super().__init__()
        s.op = 's_nop'; s.kind = 'salu'; s.nopn = k; s.text = 's_nop %d' % (k - 1)
```

```python
from asmlib import *

NAME = 'sequential_preLN__spectral_gfnet__mixer_channel_mlp__prompt'

ZT = 0x000000; ZT_SZ = 0x200000
WT = 0x200000; WT_SZ = 129 * 16384
QT = 0x410000; QT_SZ = 0x200000
HH = 0x610000; HH_SZ = 0x200000
U2 = 0x810000; U2_SZ = 0x200000
W1S = 0xA10000; W1S_SZ = 0x1C0000
W2S = 0xBD0000; W2S_SZ = 0x1C0000
H1 = 0xD90000; H1_SZ = 0x700000
CNT = 0x1490000; CNT_SZ = 0x8000
STAMP = 0x14A0000; STAMP_SZ = 0x40000

P_X, P_WR, P_WI, P_BX, P_W1, P_B1, P_W2, P_B2 = [s(4 + 2 * i, 2) for i in range(8)]
P_OUT, P_DBG, P_WS = s(20, 2), s(22, 2), s(24, 2)

MF16 = 'v_mfma_f32_16x16x32_bf16'
MF32 = 'v_mfma_f32_32x32x16_bf16'

class Alloc:
    def __init__(self, kind, start, end):
        self.k, self.p, self.e = kind, start, end
    def __call__(self, n=1, align=None):
        if align is None: align = 2 if n >= 2 else 1
        self.p = (self.p + align - 1) // align * align
        r = R(self.k, self.p, n); self.p += n
        assert self.p <= self.e, 'out of regs %s %d' % (self.k, self.p)
        return r

def kernarg(a):
    a.I('s_load_dwordx16', s(4, 16), s(0, 2), 0)
    a.I('s_load_dwordx4', s(20, 4), s(0, 2), 64)
    a.I('s_load_dwordx2', s(24, 2), s(0, 2), 80)

def srd(a, d, base, off, size):
    assert d.n == 4 and d.i % 4 == 0
    if off:
        a.I('s_add_u32', d[0], base[0], off)
        a.I('s_addc_u32', d[1], base[1], 0)
    else:
        a.I('s_mov_b32', d[0], base[0])
        a.I('s_mov_b32', d[1], base[1])
    a.I('s_mov_b32', d[2], size)
    a.I('s_mov_b32', d[3], 0x20000)

def round_bf16(a, dst, src):
    a.I('v_cvt_pk_bf16_f32', dst, src, src)
    a.I('v_lshlrev_b32', dst, 16, dst)

def cvt(a, dst, lo, hi):
    a.I('v_cvt_pk_bf16_f32', dst, lo, hi)

def bload(a, dst, voff, srd_, soff=0, off=0, mods=''):
    n = dst.n
    op = {1: 'buffer_load_dword', 2: 'buffer_load_dwordx2', 4: 'buffer_load_dwordx4'}[n]
    assert 0 <= off < 4096
    m = 'offen' + (' offset:%d' % off if off else '') + (' ' + mods if mods else '')
    return a.I(op, dst, voff, srd_, soff, mods=m)

def bstore(a, src, voff, srd_, soff=0, off=0, mods=''):
    n = src.n
    op = {1: 'buffer_store_dword', 2: 'buffer_store_dwordx2', 4: 'buffer_store_dwordx4'}[n]
    assert 0 <= off < 4096
    m = 'offen' + (' offset:%d' % off if off else '') + (' ' + mods if mods else '')
    return a.I(op, src, voff, srd_, soff, mods=m)

def dma16(a, voff, srd_, soff=0, mods=''):
    m = 'offen' + (' ' + mods if mods else '') + ' lds'
    return a.I('buffer_load_dwordx4', voff, srd_, soff, mods=m)

def dsr(a, dst, addr, off=0):
    op = {1: 'ds_read_b32', 2: 'ds_read_b64', 4: 'ds_read_b128'}[dst.n]
    assert 0 <= off < 65536
    return a.I(op, dst, addr, mods=('offset:%d' % off if off else ''))

def dsw(a, addr, src, off=0):
    op = {1: 'ds_write_b32', 2: 'ds_write_b64', 4: 'ds_write_b128'}[src.n]
    assert 0 <= off < 65536
    return a.I(op, addr, src, mods=('offset:%d' % off if off else ''))

def wave_id(a, sdst, tmp):
    a.I('v_lshrrev_b32', tmp, 6, v(0))
    a.I('v_readfirstlane_b32', sdst, tmp)

def angles(a, n, ang, a0, st, C, S):
    for e in range(n):
        if e: a.I('v_add_f32', a0, a0, st)
        if C is not None: a.I('v_cos_f32', C[e], a0)
        if S is not None: a.I('v_sin_f32', S[e], a0)

def stamp(a, idx, srd_st, sbase, tmp_s, tmp_v, enable):
    if not enable: return
    a.I('s_memrealtime', tmp_s)
    a.wait_lg0()
    a.I('v_mov_b32', tmp_v[0], tmp_s[0])
    a.I('v_mov_b32', tmp_v[1], sbase)
    bstore(a, tmp_v[0], tmp_v[1], srd_st, 0, idx * 4)

def kd(name, nv, na, ns):
    acc = max(4, (nv + 3) // 4 * 4)
    tot = acc + na if na else nv
    return '''.section .rodata,"a"
.p2align 6
.amdhsa_kernel %s
  .amdhsa_next_free_vgpr %d
  .amdhsa_next_free_sgpr %d
  .amdhsa_accum_offset %d
  .amdhsa_group_segment_fixed_size 0
  .amdhsa_kernarg_size 88
  .amdhsa_user_sgpr_count 2
  .amdhsa_user_sgpr_kernarg_segment_ptr 1
  .amdhsa_system_sgpr_workgroup_id_x 1
  .amdhsa_float_denorm_mode_32 3
.end_amdhsa_kernel
.text
''' % (name, tot, min(102, ns), acc)

def khead(name):
    return '.text\n.globl %s\n.p2align 8\n.type %s,@function\n%s:\n' % (name, name, name)

def ln_reduce_pairs(a, S, Q, t):
    a.I('v_permlane32_swap_b32', S, Q)
    a.I('v_add_f32', S, S, Q)
    a.I('v_add_f32_dpp', S, S, S, mods='quad_perm:[1,0,3,2] row_mask:0xf bank_mask:0xf')
    a.I('v_add_f32_dpp', S, S, S, mods='row_ror:4 row_mask:0xf bank_mask:0xf')
    a.I('v_add_f32_dpp', S, S, S, mods='row_ror:8 row_mask:0xf bank_mask:0xf')
    a.I('v_mov_b32', t, S)
    a.I('v_permlane16_swap_b32', S, t)
    a.I('v_add_f32', S, S, t)
    a.I('v_mov_b32', Q, S)
    a.I('v_permlane32_swap_b32', S, Q)
```

```python
from common import *

LDS_K1 = 8 * 2064

def gen_k1(a, L, opt):
    name = L
    V = Alloc('v', 1, 256); Sg = Alloc('s', 26, 100)
    a.reset_state()
    a.I('s_cmp_ge_u32', s(2), 256)
    a.I('s_cbranch_scc1', L + '_end')
    kernarg(a)
    sW = Sg(); sXcd = Sg(); sIdx = Sg(); sT = Sg(); sT2 = Sg()
    vL = V(); vN = V(); vG = V(); t0 = V(); t1 = V()
    wave_id(a, sW, t0)
    a.I('v_and_b32', vL, 63, v(0))
    a.I('s_and_b32', sXcd, s(2), 7)
    a.I('s_lshr_b32', sIdx, s(2), 3)
    a.I('s_cmp_ge_u32', sIdx, 16)
    a.I('s_cbranch_scc1', L + '_helper')
    mark_v, mark_s = V.p, Sg.p
    srdX = Sg(4, 4); srdZ = Sg(4, 4)
    sU = Sg(); sRow = Sg()
    a.I('s_lshl_b32', sU, sXcd, 4); a.I('s_add_u32', sU, sU, sIdx)
    a.I('s_and_b32', sT, sU, 3); a.I('s_lshl_b32', sT, sT, 4)
    a.I('s_lshl_b32', sT2, sW, 1); a.I('s_add_u32', sT, sT, sT2); a.I('s_lshl_b32', sT, sT, 5)
    a.I('s_lshr_b32', sT2, sU, 2); a.I('s_add_u32', sT, sT, sT2); a.I('s_lshl_b32', sRow, sT, 10)
    vOff = V()
    a.I('v_and_b32', vN, 15, vL); a.I('v_lshrrev_b32', vG, 4, vL)
    a.I('v_bfe_u32', t0, vL, 1, 1); a.I('v_lshlrev_b32', vOff, 15, t0)
    a.I('v_lshl_add_u32', vOff, vG, 5, vOff)
    a.I('v_bfe_u32', t0, vL, 2, 2); a.I('v_lshl_add_u32', vOff, t0, 3, vOff)
    a.I('v_and_b32', t0, 1, vL); a.I('v_lshl_add_u32', vOff, t0, 2, vOff)
    srd(a, srdX, P_X, 0, 2048 * 1024)
    X = V(8)
    for j in range(8): bload(a, X[j], vOff, srdX, sRow, 128 * j)
    srd(a, srdZ, P_WS, ZT, ZT_SZ)
    fN = V(); fG = V(); a0 = V(); st = V(); C = V(8); S_ = V(8)
    a.I('v_cvt_f32_u32', fN, vN); a.I('v_cvt_f32_u32', fG, vG)
    sM0 = Sg(2); sLo = Sg(2); sQ0 = Sg(2)
    a.I('v_cmp_eq_u32', sM0, 0, vN)
    a.I('v_cmp_gt_u32', sLo, 8, vN)
    a.I('s_mov_b64', sQ0, 0xffff)
    fNG = V()
    a.I('v_mul_f32', fNG, fN, fG)
    B1r = V(4); B1i = V(4)
    a.I('v_mul_f32', a0, 1.0 / 32, fNG); a.I('v_mul_f32', st, 0.125, fN)
    angles(a, 8, None, a0, st, C, S_)
    a.I('v_and_b32', t0, 1, vG); a.I('v_mul_u32_u24', t0, 0x8000, t0); a.I('v_lshl_or_b32', t0, t0, 16, t0)
    a.I('v_or_b32', t0, 0x3f803f80, t0)
    for jj in range(4):
        cvt(a, B1r[jj], C[2 * jj], C[2 * jj + 1])
        cvt(a, B1i[jj], Neg(S_[2 * jj]), Neg(S_[2 * jj + 1]))
        a.I('v_cndmask_b32', B1i[jj], B1i[jj], t0, sM0)
    TC = V(4); TS = V(4)
    a.I('v_mul_f32', a0, 1.0 / 128, fNG); a.I('v_mul_f32', st, 1.0 / 512, fN)
    angles(a, 4, None, a0, st, TC, TS)
    B2r = V(4); B2i = V(4); B2sr = V(4); B2si = V(4)
    a.I('v_mul_f32', a0, 0.25, fNG); a.I('v_mul_f32', st, 1.0 / 16, fN)
    angles(a, 4, None, a0, st, C, S_)
    a.I('v_mov_b32', t1, 0x80008000)
    a.I('v_cndmask_b32', t0, t1, 0, sLo)
    a.I('v_xor_b32', t1, t1, t0)
    for h in range(2):
        cvt(a, B2r[h], C[2 * h], C[2 * h + 1]); cvt(a, B2r[2 + h], S_[2 * h], S_[2 * h + 1])
        a.I('v_xor_b32', B2i[h], B2r[2 + h], t1)
        a.I('v_xor_b32', B2i[2 + h], B2r[h], t0)
    a.I('v_add_f32', t0, fN, fN); a.I('v_add_f32', t1, -15.0, t0); a.I('v_cndmask_b32', t0, t1, t0, sLo)
    a.I('v_mul_f32', st, 1.0 / 32, t0); a.I('v_mul_f32', a0, fG, st); a.I('v_mul_f32', a0, 4.0, a0)
    angles(a, 4, None, a0, st, C, S_)
    a.I('v_mov_b32', t1, 0xbf803f80)
    for h in range(2):
        cvt(a, t0, C[2 * h], C[2 * h + 1])
        a.I('v_cndmask_b32', B2sr[h], 0, t0, sLo); a.I('v_cndmask_b32', B2sr[2 + h], t0, 0, sLo)
        cvt(a, t0, Neg(S_[2 * h]), Neg(S_[2 * h + 1]))
        a.I('v_cndmask_b32', t0, t0, t1, sM0)
        a.I('v_cndmask_b32', B2si[h], 0, t0, sLo); a.I('v_cndmask_b32', B2si[2 + h], t0, 0, sLo)
    WA = V(4)
    a.I('s_mul_i32', sT, sW, 2064)
    a.I('v_lshl_add_u32', t1, vG, 7, sT)
    for i in range(4):
        a.I('v_add_u32', t0, i, vN); a.I('v_and_b32', t0, 15, t0)
        a.I('v_lshl_add_u32', WA[i], t0, 3, t1)
        if i: a.I('v_add_u32', WA[i], 512 * i, WA[i])
    RA = V(2); vZ = V(); vK1 = V(); vNn = V()
    a.I('v_lshrrev_b32', vZ, 2, vL)
    def sigma_addr(dst, k1, nn):
        a.I('v_and_b32', t0, 3, k1)
        a.I('v_add_u32', t1, nn, t0); a.I('v_and_b32', t1, 15, t1)
        a.I('v_lshl_add_u32', t1, t0, 6, t1)
        a.I('v_lshrrev_b32', t0, 2, k1); a.I('v_lshl_add_u32', t1, t0, 4, t1)
        a.I('v_and_b32', t0, 3, vL); a.I('v_mul_u32_u24', t0, 4128, t0)
        a.I('v_lshl_add_u32', dst, t1, 3, t0)
    a.I('v_mov_b32', vNn, sW)
    sigma_addr(RA[0], vZ, vNn)
    a.I('v_cmp_eq_u32', VCC, 0, vZ)
    a.I('v_sub_u32', vK1, 16, vZ); a.I('v_and_b32', vK1, 15, vK1)
    a.I('s_sub_u32', sT, 15, sW); a.I('s_add_u32', sT2, sW, 8)
    a.I('v_mov_b32', vNn, sT); a.I('v_mov_b32', t0, sT2)
    a.I('v_cndmask_b32', vNn, vNn, t0, VCC)
    sigma_addr(RA[1], vK1, vNn)
    vZo = V(); sZo = Sg(); sZo1 = Sg()
    a.I('v_lshrrev_b32', t0, 3, vL); a.I('v_and_b32', t1, 7, vL)
    a.I('v_lshlrev_b32', t1, 4, t1); a.I('v_lshl_add_u32', vZo, t0, 14, t1)
    a.I('s_lshl_b32', sZo, sW, 18); a.I('s_lshl_b32', sT, sU, 7); a.I('s_add_u32', sZo, sZo, sT)
    a.I('s_add_u32', sZo1, sZo, 8 * 16384)
    Ssum = V(); Q = V(); ones = V()
    a.I('v_mov_b32', ones, 0x3f803f80)
    a.I('v_dot2_f32_bf16', Ssum, X[0], ones, 0); a.I('v_dot2_f32_bf16', Q, X[0], X[0], 0)
    for j in range(1, 8):
        a.I('v_dot2_f32_bf16', Ssum, X[j], ones, Ssum); a.I('v_dot2_f32_bf16', Q, X[j], X[j], Q)
    a.I('s_nop', 2)
    xf = V(16)
    ln_reduce_pairs(a, Ssum, Q, t0)
    for j in range(8):
        a.I('v_lshlrev_b32', xf[2 * j], 16, X[j]); a.I('v_and_b32', xf[2 * j + 1], 0xffff0000, X[j])
    a.I('v_mul_f32', Ssum, 1.0 / 512, Ssum); a.I('v_mul_f32', Q, 1.0 / 512, Q)
    a.I('v_fma_f32', Q, Neg(Ssum), Ssum, Q); a.I('v_max_f32', Q, 0, Q)
    round_bf16(a, Ssum, Ssum); round_bf16(a, Q, Q)
    a.I('v_add_f32', Q, 1e-5, Q); round_bf16(a, Q, Q)
    a.I('v_sqrt_f32', Q, Q); round_bf16(a, Q, Q)
    a.I('v_rcp_f32', Q, Q)
    a.I('v_mul_f32', Ssum, Ssum, Q)
    for e in range(16): a.I('v_fma_f32', xf[e], xf[e], Q, Neg(Ssum))
    P = V(8)
    for b in range(2):
        for jj in range(4): cvt(a, P[4 * b + jj], xf[4 * jj + b], xf[4 * jj + 2 + b])
    D = V(16)
    for b in range(2):
        a.I(MF16, D[8 * b:8 * b + 4], P[4 * b:4 * b + 4], B1r, 0)
        a.I(MF16, D[8 * b + 4:8 * b + 8], P[4 * b:4 * b + 4], B1i, 0)
    A2 = V(8); tr = xf[0:4]; ti = xf[4:8]
    D2 = V(32)
    for r in range(2):
        for db in range(2):
            for b in range(2):
                e = 2 * db + b; Tr = D[8 * b + 2 * r + db]; Ti = D[8 * b + 4 + 2 * r + db]
                a.I('v_mul_f32', tr[e], Tr, TC[e]); a.I('v_mul_f32', ti[e], Ti, TC[e])
                a.I('v_fmac_f32', tr[e], Ti, TS[e]); a.I('v_fma_f32', ti[e], Neg(Tr), TS[e], ti[e])
        A = A2[4 * r:4 * r + 4]
        cvt(a, A[0], tr[0], tr[1]); cvt(a, A[1], tr[2], tr[3]); cvt(a, A[2], ti[0], ti[1]); cvt(a, A[3], ti[2], ti[3])
        o = 16 * r
        a.I(MF16, D2[o:o + 4], A, B2r, 0); a.I(MF16, D2[o + 4:o + 8], A, B2i, 0)
        a.I(MF16, D2[o + 8:o + 12], A, B2sr, 0); a.I(MF16, D2[o + 12:o + 16], A, B2si, 0)
    O = xf[8:16]
    for i in (1, 2, 3, 0):
        if i == 0:
            for r in range(2):
                for c in range(2):
                    a.I('v_cndmask_b32', D2[16 * r + 4 * c], D2[16 * r + 4 * c], D2[16 * r + 8 + 4 * c], sQ0)
        cvt(a, O[2 * i], D2[i], D2[16 + i]); cvt(a, O[2 * i + 1], D2[4 + i], D2[20 + i])
        dsw(a, WA[i], O[2 * i:2 * i + 2])
    a.wait_lg0()
    a.barrier()
    for it in range(2):
        dsr(a, P[4 * it:4 * it + 2], RA[it], 0); dsr(a, P[4 * it + 2:4 * it + 4], RA[it], 2064)
    bstore(a, P[0:4], vZo, srdZ, sZo); bstore(a, P[4:8], vZo, srdZ, sZo1)
    a.I('s_endpgm')
    maxv = V.p
    a.reset_state()
    a.label(L + '_helper')
    V.p, Sg.p = mark_v, mark_s
    a.lgq = []
    a.wait_lg0()
    srdR = Sg(4, 4); srdI = Sg(4, 4); srdW = Sg(4, 4); srdC = Sg(4, 4)
    sHb = Sg(); sJp = Sg(); sQ = Sg(); sBase = Sg(); sDst = Sg(); so = Sg(8)
    a.I('s_sub_u32', sHb, sIdx, 16); a.I('s_lshl_b32', sHb, sHb, 3); a.I('s_add_u32', sHb, sHb, sXcd)
    a.I('s_lshr_b32', sJp, sHb, 2); a.I('s_and_b32', sQ, sHb, 3)
    srd(a, srdR, P_WR, 0, 2048 * 514); srd(a, srdI, P_WI, 0, 2048 * 514)
    a.I('s_lshl_b32', sT, sJp, 1); a.I('s_lshl_b32', sT2, sQ, 8); a.I('s_add_u32', sT, sT, sT2); a.I('s_mul_i32', sBase, sT, 514)
    for tj in range(2):
        for rho in range(4):
            a.I('s_add_u32', so[4 * tj + rho], sBase, (1024 * tj + 64 * rho) * 514)
    vK = V(); vH = V(); vS = V(); vD = V(); vS2 = V(); vD2 = V()
    a.I('v_and_b32', vK, 255, v(0)); a.I('v_lshrrev_b32', vH, 8, v(0))
    a.I('v_mul_u32_u24', vS, 514, vH); a.I('v_lshl_add_u32', vS, vK, 1, vS)
    WRr = V(8); WIr = V(8); WR2 = V(8); WI2 = V(8)
    for e in range(8):
        a.I('buffer_load_ushort', WRr[e], vS, srdR, so[e], mods='offen')
        a.I('buffer_load_ushort', WIr[e], vS, srdI, so[e], mods='offen')
    a.I('v_mul_u32_u24', vS2, 514, vL); a.I('v_add_u32', vS2, 512, vS2)
    a.I('v_lshlrev_b32', vD2, 5, vL); a.I('v_add_u32', vD2, 128 * 16384 + 64, vD2)
    a.I('s_cmp_lg_u32', sW, 0)
    a.I('s_cbranch_scc1', L + '_h1')
    a.begin_cond()
    a.I('s_mov_b64', EXEC, 3)
    for e in range(8):
        a.I('buffer_load_ushort', WR2[e], vS2, srdR, so[e], mods='offen')
        a.I('buffer_load_ushort', WI2[e], vS2, srdI, so[e], mods='offen')
    a.I('s_mov_b64', EXEC, -1)
    a.end_cond()
    a.label(L + '_h1')
    srd(a, srdW, P_WS, WT, WT_SZ)
    a.I('v_lshrrev_b32', t0, 1, vK); a.I('v_mov_b32', t1, 128)
    a.I('v_cmp_eq_u32', VCC, 0, vK); a.I('v_cndmask_b32', t0, t0, t1, VCC)
    a.I('v_and_b32', t1, 1, vK); a.I('v_lshlrev_b32', t1, 6, t1); a.I('v_lshl_add_u32', vD, t0, 14, t1)
    a.I('v_lshl_add_u32', vD, vH, 5, vD)
    a.I('s_lshr_b32', sT, sJp, 3); a.I('s_lshl_b32', sDst, sT, 12)
    a.I('s_and_b32', sT, sJp, 7); a.I('s_lshl_b32', sT2, sQ, 3); a.I('s_add_u32', sT, sT, sT2); a.I('s_lshl_b32', sT, sT, 7)
    a.I('s_add_u32', sDst, sDst, sT)
    if opt.get('clear_cnt'):
        srd(a, srdC, P_WS, CNT, CNT_SZ)
        a.I('s_cmp_lg_u32', sHb, 0)
        a.I('s_cbranch_scc1', L + '_h2')
        a.begin_cond()
        Z4 = V(4)
        for e in range(4): a.I('v_mov_b32', Z4[e], 0)
        a.I('v_lshlrev_b32', t0, 4, v(0))
        for e in range(CNT_SZ // 8192):
            a.I('v_add_u32', t1, 8192 * e, t0)
            bstore(a, Z4, t1, srdC)
        a.end_cond()
        a.label(L + '_h2')
    for e in range(8): a.I('v_lshl_or_b32', WRr[e], WIr[e], 16, WRr[e])
    bstore(a, WRr[0:4], vD, srdW, sDst, 0); bstore(a, WRr[4:8], vD, srdW, sDst, 16)
    a.I('s_cmp_lg_u32', sW, 0)
    a.I('s_cbranch_scc1', L + '_end')
    a.I('s_mov_b64', EXEC, 3)
    for e in range(8): a.I('v_lshl_or_b32', WR2[e], WI2[e], 16, WR2[e])
    bstore(a, WR2[0:4], vD2, srdW, sDst, 0); bstore(a, WR2[4:8], vD2, srdW, sDst, 16)
    a.label(L + '_end')
    a.I('s_endpgm')
    maxv = max(maxv, V.p)
    return dict(name=name, grid=256, block=512, lds=LDS_K1, nv=maxv, na=0, ns=102)
```

```python
from common import *

LDS_K2 = 32768

def cmul(a, outr, outi, xr, xi, c, sn, conj):
    a.I('v_mul_f32', outr, xr, c); a.I('v_mul_f32', outi, xi, c)
    if not conj:
        a.I('v_fmac_f32', outr, xi, sn); a.I('v_fma_f32', outi, Neg(xr), sn, outi)
    else:
        a.I('v_fma_f32', outr, Neg(xi), sn, outr); a.I('v_fmac_f32', outi, xr, sn)

def pack_tuples(a, re, im, C, S):
    cvt(a, re[0], C[0], C[1]); cvt(a, re[1], S[0], S[1]); cvt(a, re[2], C[2], C[3]); cvt(a, re[3], S[2], S[3])
    a.I('v_xor_b32', im[0], 0x80008000, re[1]); a.I('v_mov_b32', im[1], re[0])
    a.I('v_xor_b32', im[2], 0x80008000, re[3]); a.I('v_mov_b32', im[3], re[2])

def gen_k2(a, L, opt):
    V = Alloc('v', 1, 256); Sg = Alloc('s', 26, 100)
    a.reset_state()
    a.I('s_cmp_ge_u32', s(2), 241)
    a.I('s_cbranch_scc1', L + '_end')
    kernarg(a)
    sW = Sg(); sT = Sg(); sT2 = Sg()
    vL = V(); vN = V(); vG = V(); t0 = V(); t1 = V()
    wave_id(a, sW, t0)
    a.I('v_and_b32', vL, 63, v(0))
    a.I('s_cmp_ge_u32', s(2), 129)
    a.I('s_cbranch_scc1', L + '_helper')
    mark_v, mark_s = V.p, Sg.p
    srdZ = Sg(4, 4); srdW = Sg(4, 4); srdQ = Sg(4, 4)
    sPar = Sg(); sV = Sg(); sP = Sg(); sPz = Sg(); sParz = Sg(); sSrc = Sg(); sWo = Sg(); sQo = Sg()
    a.I('s_lshr_b32', sPar, sW, 2); a.I('s_and_b32', sV, sW, 3)
    a.I('s_cmp_eq_u32', s(2), 128)
    a.I('s_cselect_b32', sPz, 0, s(2)); a.I('s_cselect_b32', sParz, 0, sPar)
    a.I('v_and_b32', vN, 15, vL); a.I('v_lshrrev_b32', vG, 4, vL)
    vOff = V()
    a.I('v_lshlrev_b32', vOff, 9, vN); a.I('v_lshl_add_u32', vOff, vG, 4, vOff)
    a.I('s_lshl_b32', sSrc, sPz, 14); a.I('s_lshl_b32', sT, sParz, 6); a.I('s_add_u32', sSrc, sSrc, sT)
    a.I('s_bfe_u32', sT, sW, 0x10001); a.I('s_lshl_b32', sT, sT, 13); a.I('s_add_u32', sSrc, sSrc, sT)
    a.I('s_and_b32', sT, sW, 1); a.I('s_lshl_b32', sT, sT, 8); a.I('s_add_u32', sSrc, sSrc, sT)
    a.I('s_add_u32', sT2, sSrc, 128)
    srd(a, srdZ, P_WS, ZT, ZT_SZ)
    a.I('s_lshl_b32', M0, sW, 11)
    h0 = dma16(a, vOff, srdZ, sSrc)
    a.I('s_add_u32', M0, M0, 1024)
    h1 = dma16(a, vOff, srdZ, sT2)
    srd(a, srdW, P_WS, WT, WT_SZ)
    vWo = V(); Wp = V(8)
    a.I('v_lshrrev_b32', t0, 1, vL); a.I('v_and_b32', t1, 1, vL); a.I('v_lshlrev_b32', t1, 5, t1); a.I('v_lshl_add_u32', vWo, t0, 7, t1)
    a.I('s_lshl_b32', sWo, s(2), 14); a.I('s_lshl_b32', sT, sV, 12); a.I('s_add_u32', sWo, sWo, sT)
    a.I('s_lshl_b32', sT, sPar, 6); a.I('s_add_u32', sWo, sWo, sT)
    bload(a, Wp[0:4], vWo, srdW, sWo, 0); bload(a, Wp[4:8], vWo, srdW, sWo, 16)
    srd(a, srdQ, P_WS, QT, QT_SZ)
    fN = V(); fG4 = V(); fJ = V(); a0 = V(); st = V(); C = V(4); S_ = V(4)
    a.I('v_cvt_f32_u32', fN, vN); a.I('v_cvt_f32_u32', fG4, vG); a.I('v_mul_f32', fG4, 4.0, fG4)
    a.I('s_lshl_b32', sT, sV, 4); a.I('v_add_u32', t0, sT, vN); a.I('v_cvt_f32_u32', fJ, t0)
    B1 = V(32)
    a.I('v_mul_f32', st, 1.0 / 64, fJ)
    for aa in range(4):
        a.I('v_add_f32', a0, float(16 * aa), fG4); a.I('v_mul_f32', a0, a0, st)
        angles(a, 4, None, a0, st, C, S_)
        pack_tuples(a, B1[8 * aa:8 * aa + 4], B1[8 * aa + 4:8 * aa + 8], C, S_)
    A2 = V(32)
    sg = V()
    a.I('v_mul_f32', st, 1.0 / 32, fN); a.I('v_mul_f32', a0, fG4, st)
    angles(a, 4, None, a0, st, C, S_)
    pack_tuples(a, A2[0:4], A2[4:8], C, S_)
    a.I('v_and_b32', sg, 1, vN); a.I('v_mul_u32_u24', sg, 0x8000, sg); a.I('v_lshl_or_b32', sg, sg, 16, sg)
    for e in range(8):
        a.I('v_xor_b32', A2[8 + e], A2[e], sg)
        a.I('v_xor_b32', A2[16 + e], 0x80000000, A2[e])
        a.I('v_xor_b32', A2[24 + e], A2[16 + e], sg)
    T1c = V(8); T1s = V(8); T2c = V(8); T2s = V(8)
    a.I('v_mul_f32', st, 1.0 / 2048, fJ)
    for t in range(2):
        a.I('v_add_f32', a0, float(16 * t), fG4); a.I('v_mul_f32', a0, a0, st)
        angles(a, 4, None, a0, st, T1c[4 * t:4 * t + 4], T1s[4 * t:4 * t + 4])
    fV = V()
    a.I('s_lshl_b32', sT, sV, 4); a.I('v_cvt_f32_u32', fV, sT); a.I('v_add_f32', fV, fV, fG4)
    for t in range(2):
        a.I('v_add_f32', st, float(16 * t), fN); a.I('v_mul_f32', st, 1.0 / 2048, st); a.I('v_mul_f32', a0, fV, st)
        angles(a, 4, None, a0, st, T2c[4 * t:4 * t + 4], T2s[4 * t:4 * t + 4])
    vRd = V(); vWr = V(); vQo = V()
    a.I('s_lshl_b32', sT, sPar, 13); a.I('v_lshl_add_u32', vRd, vL, 4, sT)
    a.I('s_lshl_b32', sT2, sV, 10); a.I('v_add_u32', vWr, sT2, vRd)
    a.I('v_lshlrev_b32', vQo, 16, vN); a.I('v_lshl_add_u32', vQo, vG, 4, vQo)
    a.I('s_lshl_b32', sQo, sV, 14); a.I('s_lshl_b32', sT, sPz, 7); a.I('s_add_u32', sQo, sQo, sT)
    a.I('s_lshl_b32', sT, sParz, 6); a.I('s_add_u32', sQo, sQo, sT)
    sQo1 = Sg(); a.I('s_add_u32', sQo1, sQo, 64 * 16384)
    ZF = V(32)
    a.wait(h0, h1)
    a.barrier()
    for t in range(2):
        for aa in range(4): dsr(a, ZF[16 * t + 4 * aa:16 * t + 4 * aa + 4], vRd, (4 * t + aa) * 1024)
    a.I('s_cmp_lg_u32', s(2), 128)
    a.I('s_cbranch_scc1', L + '_nosp')
    a.begin_cond()
    a.wait_lg0()
    a.I('s_cmp_eq_u32', sPar, 1)
    a.I('s_cselect_b64', VCC, -1, 0)
    for f in range(8):
        for h in range(2):
            a.I('v_cndmask_b32', ZF[4 * f + 2 * h], ZF[4 * f + 2 * h], ZF[4 * f + 2 * h + 1], VCC)
            a.I('v_mov_b32', ZF[4 * f + 2 * h + 1], 0)
    a.I('s_nop', 1)
    a.end_cond()
    a.label(L + '_nosp')
    D = V(16)
    for t in range(2):
        for aa in range(4):
            for c in range(2):
                d = D[8 * t + 4 * c:8 * t + 4 * c + 4]
                a.I(MF16, d, ZF[16 * t + 4 * aa:16 * t + 4 * aa + 4], B1[8 * aa + 4 * c:8 * aa + 4 * c + 4], d if aa else 0)
    Wr = V(8); Wi = V(8)
    for e in range(8):
        a.I('v_lshlrev_b32', Wr[e], 16, Wp[e]); a.I('v_and_b32', Wi[e], 0xffff0000, Wp[e])
    tr = V(4); ti = V(4); TB = V(8); D2 = V(16)
    for t in range(2):
        for e in range(4): cmul(a, tr[e], ti[e], D[8 * t + e], D[8 * t + 4 + e], T1c[4 * t + e], T1s[4 * t + e], False)
        B = TB[4 * t:4 * t + 4]
        cvt(a, B[0], tr[0], tr[1]); cvt(a, B[1], ti[0], ti[1]); cvt(a, B[2], tr[2], tr[3]); cvt(a, B[3], ti[2], ti[3])
        for tj in range(2):
            for c in range(2):
                d = D2[8 * tj + 4 * c:8 * tj + 4 * c + 4]
                o = 16 * tj + 8 * t + 4 * c
                a.I(MF16, d, A2[o:o + 4], B, d if t else 0)
    for tj in range(2):
        for e in range(4):
            xr = D2[8 * tj + e]; xi = D2[8 * tj + 4 + e]; wr = Wr[4 * tj + e]; wi = Wi[4 * tj + e]
            a.I('v_mul_f32', tr[e], xr, wr); a.I('v_mul_f32', ti[e], xr, wi)
            a.I('v_fma_f32', tr[e], Neg(xi), wi, tr[e]); a.I('v_fmac_f32', ti[e], xi, wr)
        B = TB[4 * tj:4 * tj + 4]
        cvt(a, B[0], ti[0], ti[1]); cvt(a, B[1], tr[0], tr[1]); cvt(a, B[2], ti[2], ti[3]); cvt(a, B[3], tr[2], tr[3])
        for ts in range(2):
            for c in range(2):
                d = D[8 * ts + 4 * c:8 * ts + 4 * c + 4]
                o = 16 * ts + 8 * tj + 4 * (1 - c)
                a.I(MF16, d, B, A2[o:o + 4], d if tj else 0)
    for ts in range(2):
        for e in range(4): cmul(a, tr[e], ti[e], D[8 * ts + e], D[8 * ts + 4 + e], T2c[4 * ts + e], T2s[4 * ts + e], True)
        B = TB[4 * ts:4 * ts + 4]
        cvt(a, B[0], ti[0], ti[1]); cvt(a, B[1], tr[0], tr[1]); cvt(a, B[2], ti[2], ti[3]); cvt(a, B[3], tr[2], tr[3])
        dsw(a, vWr, B, 16384 + ts * 4096)
    a.wait_lg0()
    a.barrier()
    for ts in range(2):
        for aa in range(4): dsr(a, ZF[16 * ts + 4 * aa:16 * ts + 4 * aa + 4], vRd, 16384 + (4 * ts + aa) * 1024)
    for ts in range(2):
        for aa in range(4):
            for c in range(2):
                d = D2[8 * ts + 4 * c:8 * ts + 4 * c + 4]
                o = 8 * aa + 4 * (1 - c)
                a.I(MF16, d, B1[o:o + 4], ZF[16 * ts + 4 * aa:16 * ts + 4 * aa + 4], d if aa else 0)
    for ts in range(2):
        B = TB[4 * ts:4 * ts + 4]; d = D2[8 * ts:8 * ts + 8]
        cvt(a, B[0], d[0], d[1]); cvt(a, B[1], d[4], d[5]); cvt(a, B[2], d[2], d[3]); cvt(a, B[3], d[6], d[7])
    a.I('s_cmp_eq_u32', s(2), 128)
    a.I('s_cbranch_scc1', L + '_spst')
    a.I('s_lshl_b32', sT, s(2), 1); a.I('s_or_b32', sT, sT, sPar)
    a.I('s_cmp_eq_u32', sT, 0)
    a.I('s_cbranch_scc1', L + '_end')
    bstore(a, TB[0:4], vQo, srdQ, sQo); bstore(a, TB[4:8], vQo, srdQ, sQo1)
    a.I('s_endpgm')
    a.reset_state()
    a.label(L + '_spst')
    a.I('s_lshl_b32', sT, sPar, 2); a.I('v_add_u32', vQo, sT, vQo)
    for ts in range(2):
        bstore(a, TB[4 * ts], vQo, srdQ, (sQo, sQo1)[ts], 0); bstore(a, TB[4 * ts + 2], vQo, srdQ, (sQo, sQo1)[ts], 8)
    a.I('s_endpgm')
    maxv = V.p
    a.reset_state()
    a.label(L + '_helper')
    V.p, Sg.p = mark_v, mark_s
    a.wait_lg0()
    srdS = Sg(4, 4); srdD = Sg(4, 4)
    sTau = Sg(); sA = Sg(); sB = Sg(); sC = Sg(); so = Sg(8); sDst = Sg()
    a.I('s_sub_u32', sTau, s(2), 129); a.I('s_lshl_b32', sTau, sTau, 3); a.I('s_add_u32', sTau, sTau, sW)
    vHf = V(); vLam = V(); vS1 = V(); vS2 = V(); vD = V()
    a.I('v_lshrrev_b32', vHf, 5, vL); a.I('v_and_b32', vLam, 31, vL); a.I('v_lshlrev_b32', vLam, 2, vLam)
    a.I('v_mul_u32_u24', vS1, 16 * 3584, vHf); a.I('v_add_u32', vS1, vS1, vLam)
    a.I('v_lshl_add_u32', vS2, vHf, 13, vLam)
    a.I('v_lshlrev_b32', vD, 4, vL)
    IN1 = V(8); IN2 = V(8); O = V(16)
    srd(a, srdS, P_W1, 0, 512 * 3584); srd(a, srdD, P_WS, W1S, W1S_SZ)
    a.I('s_and_b32', sA, sTau, 7); a.I('s_lshl_b32', sA, sA, 5)
    a.I('s_bfe_u32', sT, sTau, 0x20003); a.I('s_lshl_b32', sT, sT, 2); a.I('s_add_u32', sA, sA, sT)
    a.I('s_mul_i32', sA, sA, 3584)
    a.I('s_lshr_b32', sT, sTau, 5); a.I('s_lshl_b32', sT, sT, 7); a.I('s_add_u32', sA, sA, sT)
    for e in range(8):
        a.I('s_add_u32', so[e], sA, (256 * (e // 4) + e % 4) * 3584)
        bload(a, IN1[e], vS1, srdS, so[e])
    sD1 = Sg()
    a.I('s_lshr_b32', sT, sTau, 5); a.I('s_lshl_b32', sD1, sT, 16); a.I('s_and_b32', sT, sTau, 31); a.I('s_lshl_b32', sT, sT, 10)
    a.I('s_add_u32', sD1, sD1, sT)
    sD1b = Sg(); a.I('s_add_u32', sD1b, sD1, 32768)
    srdS2 = Sg(4, 4); srdD2 = Sg(4, 4)
    srd(a, srdS2, P_W2, 0, 1792 * 1024); srd(a, srdD2, P_WS, W2S, W2S_SZ)
    sCt = Sg(); sWw = Sg(); sTt = Sg(); sZz = Sg()
    a.I('s_mul_i32', sCt, sTau, 9363); a.I('s_lshr_b32', sCt, sCt, 20)
    a.I('s_mul_i32', sT, sCt, 112); a.I('s_sub_u32', sA, sTau, sT)
    a.I('s_mul_i32', sWw, sA, 2341); a.I('s_lshr_b32', sWw, sWw, 16)
    a.I('s_mul_i32', sT, sWw, 28); a.I('s_sub_u32', sA, sA, sT)
    a.I('s_mul_i32', sTt, sA, 9363); a.I('s_lshr_b32', sTt, sTt, 16)
    a.I('s_mul_i32', sT, sTt, 7); a.I('s_sub_u32', sZz, sA, sT)
    a.I('s_mul_i32', sA, sWw, 7); a.I('s_add_u32', sA, sA, sZz)
    a.I('s_lshr_b32', sB, sA, 1); a.I('s_lshl_b32', sB, sB, 7)
    a.I('s_and_b32', sT, sA, 1); a.I('s_lshl_b32', sT, sT, 5); a.I('s_add_u32', sB, sB, sT)
    a.I('s_lshr_b32', sT, sTt, 1); a.I('s_lshl_b32', sT, sT, 6); a.I('s_add_u32', sB, sB, sT)
    a.I('s_and_b32', sT, sTt, 1); a.I('s_add_u32', sB, sB, sT)
    a.I('s_lshl_b32', sB, sB, 10); a.I('s_lshl_b32', sT, sCt, 7); a.I('s_add_u32', sB, sB, sT)
    so2 = Sg(8)
    for e in range(8):
        a.I('s_add_u32', so2[e], sB, (16 * (e // 4) + 2 * (e % 4)) * 1024)
        bload(a, IN2[e], vS2, srdS2, so2[e])
    sD2 = Sg(); sD2b = Sg()
    a.I('s_lshl_b32', sD2, sTau, 11); a.I('s_add_u32', sD2b, sD2, 1024)
    sLoSel = Sg(); sHiSel = Sg()
    a.I('s_mov_b32', sLoSel, 0x05040100); a.I('s_mov_b32', sHiSel, 0x07060302)
    for IN, o, sr, d0, d1 in ((IN1, 0, srdD, sD1, sD1b), (IN2, 8, srdD2, sD2, sD2b)):
        for p in range(4):
            a.I('v_perm_b32', O[o + p], IN[2 * p + 1], IN[2 * p], sLoSel)
            a.I('v_perm_b32', O[o + 4 + p], IN[2 * p + 1], IN[2 * p], sHiSel)
        bstore(a, O[o:o + 4], vD, sr, d0); bstore(a, O[o + 4:o + 8], vD, sr, d1)
    a.label(L + '_end')
    a.I('s_endpgm')
    maxv = max(maxv, V.p)
    return dict(name=L, grid=241, block=512, lds=LDS_K2, nv=maxv, na=0, ns=102)
```

```python
from common import *
from k2 import cmul
import math

QS = 0x20000
US = 0x22000

class Ctx: pass

def ids(a, L, Sg, V):
    c = Ctx()
    a.I('s_cmp_ge_u32', s(2), 256)
    a.I('s_cbranch_scc1', L + '_end')
    kernarg(a)
    c.sW = Sg(); c.sR = Sg(); c.sM = Sg(); c.sT = Sg(); c.sT2 = Sg()
    c.vL = V(); c.t0 = V(); c.t1 = V()
    wave_id(a, c.sW, c.t0)
    a.I('v_and_b32', c.vL, 63, v(0))
    a.I('s_and_b32', c.sT, s(2), 7); a.I('s_lshl_b32', c.sR, c.sT, 1)
    a.I('s_lshr_b32', c.sT, s(2), 7); a.I('s_add_u32', c.sR, c.sR, c.sT)
    a.I('s_bfe_u32', c.sM, s(2), 0x40003)
    return c

def c1_issue(a, c, V, Sg, qs=QS):
    sW, sR, sM, sT, sT2, vL, t0, t1 = c.sW, c.sR, c.sM, c.sT, c.sT2, c.vL, c.t0, c.t1
    srdQ = Sg(4, 4); c.srdX = srdX = Sg(4, 4)
    sU = Sg(); sSrc = Sg(); sRow = Sg()
    c.vN = vN = V(); c.vG = vG = V(); vOff = V(); c.vXo = vXo = V()
    a.I('s_lshl_b32', sU, sR, 3); a.I('s_lshr_b32', sT, sM, 1); a.I('s_add_u32', sU, sU, sT)
    a.I('v_and_b32', vN, 15, vL); a.I('v_lshrrev_b32', vG, 4, vL)
    a.I('v_lshrrev_b32', t0, 2, vL); a.I('v_lshlrev_b32', vOff, 7, t0)
    a.I('v_bfe_u32', t0, vL, 1, 1); a.I('v_lshl_add_u32', vOff, t0, 6, vOff)
    a.I('v_and_b32', t0, 1, vL); a.I('v_lshl_add_u32', vOff, t0, 4, vOff)
    a.I('s_lshl_b32', sSrc, sU, 14); a.I('s_lshl_b32', sT, sW, 12); a.I('s_add_u32', sSrc, sSrc, sT)
    a.I('s_and_b32', sT, sM, 1); a.I('s_lshl_b32', sT, sT, 5); a.I('s_add_u32', sSrc, sSrc, sT)
    a.I('s_add_u32', sT2, sSrc, 2048)
    srd(a, srdQ, P_WS, QT, QT_SZ)
    a.I('s_lshl_b32', sT, sW, 11); a.I('s_add_u32', M0, sT, qs)
    c.hq0 = dma16(a, vOff, srdQ, sSrc)
    a.I('s_add_u32', M0, M0, 1024)
    c.hq1 = dma16(a, vOff, srdQ, sT2)
    a.I('s_and_b32', sT, sU, 3); a.I('s_lshl_b32', sRow, sT, 4)
    a.I('s_and_b32', sT, sM, 1); a.I('s_lshl_b32', sT, sT, 3); a.I('s_add_u32', sRow, sRow, sT)
    a.I('s_lshl_b32', sT, sW, 1); a.I('s_add_u32', sRow, sRow, sT); a.I('s_lshl_b32', sRow, sRow, 5)
    a.I('s_lshr_b32', sT, sU, 2); a.I('s_add_u32', sRow, sRow, sT); a.I('s_lshl_b32', sRow, sRow, 10)
    a.I('s_add_u32', sT2, sRow, 32768)
    a.I('v_lshlrev_b32', vXo, 5, vN); a.I('v_lshl_add_u32', vXo, vG, 3, vXo)
    srd(a, srdX, P_X, 0, 2048 * 1024)
    c.Xp = Xp = V(8)
    for r in range(2):
        for t in range(2): bload(a, Xp[4 * r + 2 * t:4 * r + 2 * t + 2], vXo, srdX, (sRow, sT2)[r], 512 * t)

def c1_consts(a, c, V, Sg, qs=QS, us=US):
    sW, sR, sM, sT, sT2, vL, t0, t1, vN, vG = c.sW, c.sR, c.sM, c.sT, c.sT2, c.vL, c.t0, c.t1, c.vN, c.vG
    fN = V(); fG = V(); fNG = V(); a0 = V(); st = V(); C = V(4); S_ = V(4)
    c.tmp8 = R('v', C.i, 8); assert S_.i == C.i + 4
    a.I('v_cvt_f32_u32', fN, vN); a.I('v_cvt_f32_u32', fG, vG); a.I('v_mul_f32', fNG, fN, fG)
    sLo = Sg(2); c.sQ0 = sQ0 = Sg(2); sN0 = Sg(2)
    a.I('v_cmp_gt_u32', sLo, 2, vG)
    a.I('s_mov_b64', sQ0, 0xffff)
    a.I('v_cmp_eq_u32', sN0, 0, vN)
    c.Br = Br = V(4); c.Bi = Bi = V(4); c.Bsr = Bsr = V(4); c.Bsi = Bsi = V(4)
    a.I('v_mul_f32', a0, 0.25, fNG); a.I('v_mul_f32', st, 1.0 / 16, fN)
    angles(a, 4, None, a0, st, C, S_)
    a.I('v_mov_b32', t1, 0x80008000)
    a.I('v_cndmask_b32', t0, t1, 0, sLo); a.I('v_xor_b32', t1, t1, t0)
    for h in range(2):
        cvt(a, Br[h], C[2 * h], C[2 * h + 1]); cvt(a, Bi[h], S_[2 * h], S_[2 * h + 1])
        a.I('v_xor_b32', Br[2 + h], Bi[h], t1); a.I('v_xor_b32', Bi[2 + h], Br[h], t0)
    a.I('v_mul_f32', t0, 8.0, fG); a.I('v_add_f32', t1, -15.0, t0); a.I('v_cndmask_b32', t0, t1, t0, sLo)
    a.I('v_mul_f32', a0, t0, fN); a.I('v_mul_f32', a0, 1.0 / 32, a0)
    angles(a, 4, None, a0, st, C, S_)
    sgn = V()
    a.I('v_and_b32', sgn, 1, vN); a.I('v_lshlrev_b32', sgn, 31, sgn); a.I('v_or_b32', sgn, 1.0, sgn)
    for e in range(4):
        a.I('v_mul_f32', C[e], 2.0, C[e]); a.I('v_mul_f32', S_[e], -2.0, S_[e])
    a.I('v_cndmask_b32', C[0], C[0], 1.0, sQ0); a.I('v_cndmask_b32', S_[0], S_[0], sgn, sQ0)
    for h in range(2):
        cvt(a, t0, C[2 * h], C[2 * h + 1]); cvt(a, t1, S_[2 * h], S_[2 * h + 1])
        a.I('v_cndmask_b32', Bsr[h], 0, t0, sLo); a.I('v_cndmask_b32', Bsi[h], t0, 0, sLo)
        a.I('v_cndmask_b32', Bsr[2 + h], 0, t1, sLo); a.I('v_cndmask_b32', Bsi[2 + h], t1, 0, sLo)
    c.TC = TC = V(4); c.TS = TS = V(4)
    a.I('v_mul_f32', a0, 1.0 / 128, fNG); a.I('v_mul_f32', st, 1.0 / 512, fN)
    angles(a, 4, None, a0, st, TC, TS)
    for e in range(4):
        a.I('v_mul_f32', TC[e], 2.0 ** -20, TC[e]); a.I('v_mul_f32', TS[e], 2.0 ** -20, TS[e])
    c.G = G = V(8)
    a.I('v_mul_f32', a0, 0.125, fNG); a.I('v_mul_f32', st, 1.0 / 32, fN)
    angles(a, 4, None, a0, st, C, S_)
    for e in range(4):
        a.I('v_mul_f32', C[e], 2.0, C[e]); a.I('v_mul_f32', S_[e], -2.0, S_[e])
    a.I('v_cndmask_b32', C[0], C[0], 1.0, sQ0); a.I('v_cndmask_b32', S_[0], S_[0], sgn, sQ0)
    for h in range(2):
        cvt(a, G[h], C[2 * h], C[2 * h + 1]); cvt(a, G[2 + h], S_[2 * h], S_[2 * h + 1])
    for e in range(4): a.I('v_xor_b32', G[4 + e], 0x80000000, G[e])
    c.RA = RA = V(4)
    a.I('v_lshl_add_u32', t0, vG, 7, vN)
    a.I('v_sub_u32', t1, 512, t0)
    a.I('v_cndmask_b32', t1, t1, t0, sLo)
    a.I('v_add_u32', t0, -240, t0)
    a.I('s_andn2_b64', VCC, sN0, sLo)
    a.I('v_cndmask_b32', t1, t1, t0, VCC)
    a.I('s_lshr_b32', sT, sW, 1); a.I('s_lshl_b32', sT, sT, 4); a.I('s_and_b32', sT2, sW, 1); a.I('s_lshl_b32', sT2, sT2, 3)
    a.I('s_add_u32', sT, sT, sT2); a.I('s_add_u32', sT, sT, qs)
    a.I('v_lshl_add_u32', RA[0], t1, 5, sT)
    a.I('s_or_b64', VCC, sN0, sLo)
    a.I('v_mov_b32', t0, -1024); a.I('v_mov_b32', t1, 1024); a.I('v_cndmask_b32', t0, t0, t1, VCC)
    for i in range(1, 4): a.I('v_add_u32', RA[i], RA[i - 1], t0)
    c.UW = UW = V(2); c.UR = UR = V()
    a.I('s_lshl_b32', sT, sW, 1)
    for r in range(2):
        a.I('v_add_u32', t0, sT, vL)
        if r: a.I('v_add_u32', t0, 1, t0)
        a.I('v_and_b32', t0, 7, t0); a.I('v_lshlrev_b32', t0, 4, t0)
        a.I('v_lshl_add_u32', UW[r], vL, 7, t0); a.I('v_add_u32', UW[r], us, UW[r])
    a.I('v_lshrrev_b32', t1, 3, vL); a.I('v_add_u32', t0, t1, vL); a.I('v_and_b32', t0, 7, t0); a.I('v_lshlrev_b32', t0, 4, t0)
    a.I('v_lshl_add_u32', UR, t1, 7, t0)
    a.I('s_lshl_b32', sT, sW, 11); a.I('s_add_u32', sT, sT, us); a.I('v_add_u32', UR, sT, UR)
    c.srdH = Sg(4, 4); c.srdU = Sg(4, 4); c.sHo = Sg(2); c.sUo = Sg(2); c.vUo = V()
    srd(a, c.srdH, P_WS, HH, HH_SZ); srd(a, c.srdU, P_WS, U2, U2_SZ)
    a.I('s_lshl_b32', sT, sR, 4); a.I('s_add_u32', sT, sT, sM)
    a.I('s_lshl_b32', c.sHo[0], sT, 13); a.I('s_lshl_b32', sT2, sW, 11); a.I('s_add_u32', c.sHo[0], c.sHo[0], sT2)
    a.I('s_add_u32', c.sHo[1], c.sHo[0], 1024)
    a.I('v_lshlrev_b32', c.vUo, 4, vL)
    c.sel = Sg(2)
    a.I('s_mov_b32', c.sel[0], 0x05040100); a.I('s_mov_b32', c.sel[1], 0x07060302)
    c.Y = Y = V(16)
    for r in range(2):
        for t in range(2):
            for h in range(2):
                x = c.Xp[4 * r + 2 * t + h]
                a.I('v_lshlrev_b32', Y[8 * r + 4 * t + 2 * h], 16, x); a.I('v_and_b32', Y[8 * r + 4 * t + 2 * h + 1], 0xffff0000, x)

def c1_main(a, c, V, Sg, stmods=''):
    t0, t1 = c.t0, c.t1
    Q = V(8); A = V(8); D = V(32); Y = c.Y; tr = c.tmp8[0:4]; ti = c.tmp8[4:8]
    a.wait(c.hq0, c.hq1)
    a.barrier()
    for i in range(4): dsr(a, Q[2 * i:2 * i + 2], c.RA[i])
    for r in range(2):
        Ar = A[4 * r:4 * r + 4]
        a.I('v_perm_b32', Ar[0], Q[2], Q[0], c.sel[r]); a.I('v_perm_b32', Ar[1], Q[6], Q[4], c.sel[r])
        a.I('v_perm_b32', Ar[2], Q[3], Q[1], c.sel[r]); a.I('v_perm_b32', Ar[3], Q[7], Q[5], c.sel[r])
        o = 16 * r
        a.I(MF16, D[o:o + 4], Ar, c.Br, 0); a.I(MF16, D[o + 4:o + 8], Ar, c.Bi, 0)
        a.I(MF16, D[o + 8:o + 12], Ar, c.Bsr, 0); a.I(MF16, D[o + 12:o + 16], Ar, c.Bsi, 0)
    for r in range(2):
        o = 16 * r
        for e in (1, 2, 3, 0):
            if e == 0:
                a.I('v_cndmask_b32', D[o], D[o], D[o + 8], c.sQ0); a.I('v_cndmask_b32', D[o + 4], D[o + 4], D[o + 12], c.sQ0)
            cmul(a, tr[e], ti[e], D[o + e], D[o + 4 + e], c.TC[e], c.TS[e], True)
        Ar = A[4 * r:4 * r + 4]
        cvt(a, Ar[0], tr[0], tr[1]); cvt(a, Ar[1], tr[2], tr[3]); cvt(a, Ar[2], ti[0], ti[1]); cvt(a, Ar[3], ti[2], ti[3])
        for t in range(2):
            y = Y[8 * r + 4 * t:8 * r + 4 * t + 4]
            a.I(MF16, y, Ar, c.G[4 * t:4 * t + 4], y)
    Hp = c.Xp
    ones = Q[0]; S0, Q0, S1, Q1 = Q[1], Q[2], Q[3], Q[4]
    a.I('v_mov_b32', ones, 0x3f803f80)
    for r in range(2):
        for t in range(2):
            for h in range(2): cvt(a, Hp[4 * r + 2 * t + h], Y[8 * r + 4 * t + 2 * h], Y[8 * r + 4 * t + 2 * h + 1])
            c.hst = bstore(a, Hp[4 * r + 2 * t:4 * r + 2 * t + 2], c.vXo, c.srdH, c.sHo[r], 512 * t, mods=stmods)
    for e in range(4):
        for r, (S_, Q_) in enumerate(((S0, Q0), (S1, Q1))):
            x = Hp[4 * r + e]
            a.I('v_dot2_f32_bf16', S_, x, ones, S_ if e else 0); a.I('v_dot2_f32_bf16', Q_, x, x, Q_ if e else 0)
    a.I('s_nop', 2)
    a.I('v_permlane32_swap_b32', S0, S1); a.I('v_permlane32_swap_b32', Q0, Q1)
    a.I('v_add_f32', S0, S0, S1); a.I('v_add_f32', Q0, Q0, Q1)
    a.I('v_permlane16_swap_b32', S0, Q0)
    a.I('v_add_f32', S0, S0, Q0)
    for k in (1, 2, 4, 8):
        a.I('v_add_f32_dpp', S0, S0, S0, mods='row_ror:%d row_mask:0xf bank_mask:0xf' % k)
    a.I('v_mov_b32', Q0, S0)
    a.I('v_permlane16_swap_b32', S0, Q0)
    m1, v1, mb, r1, m2, r2 = S0, Q0, Q[5], Q[6], Q[7], S1
    a.I('v_mul_f32', m1, 1.0 / 512, m1); a.I('v_mul_f32', v1, 1.0 / 512, v1)
    a.I('v_fma_f32', v1, Neg(m1), m1, v1); a.I('v_max_f32', v1, 0, v1)
    round_bf16(a, mb, m1); round_bf16(a, r1, v1)
    a.I('v_add_f32', r1, 1e-5, r1); round_bf16(a, r1, r1)
    a.I('v_sqrt_f32', r1, r1); round_bf16(a, r1, r1); a.I('v_rcp_f32', r1, r1)
    a.I('v_sub_f32', m2, m1, mb); a.I('v_mul_f32', m2, m2, r1); round_bf16(a, m2, m2)
    a.I('v_mul_f32', v1, v1, r1); a.I('v_mul_f32', v1, v1, r1); round_bf16(a, r2, v1)
    a.I('v_add_f32', r2, 1e-5, r2); round_bf16(a, r2, r2)
    a.I('v_sqrt_f32', r2, r2); round_bf16(a, r2, r2); a.I('v_rcp_f32', r2, r2)
    a.I('v_fmac_f32', m2, mb, r1); a.I('v_mul_f32', m2, m2, r2)
    a.I('v_mul_f32', r1, r1, r2)
    sc = (r1, t0); sh = (m2, t1)
    a.I('v_mov_b32', t0, r1); a.I('v_mov_b32', t1, m2)
    a.I('v_permlane32_swap_b32', r1, t0); a.I('v_permlane32_swap_b32', m2, t1)
    for r in range(2):
        for e in range(8): a.I('v_fma_f32', Y[8 * r + e], Y[8 * r + e], sc[r], Neg(sh[r]))
        Ar = A[4 * r:4 * r + 4]
        for e in range(4): cvt(a, Ar[e], Y[8 * r + 2 * e], Y[8 * r + 2 * e + 1])
        dsw(a, c.UW[r], Ar)
    a.wait_lg0()
    a.barrier()
    for nn in range(2): dsr(a, D[4 * nn:4 * nn + 4], c.UR, 1024 * nn)
    for nn in range(2): c.ust = bstore(a, D[4 * nn:4 * nn + 4], c.vUo, c.srdU, c.sHo[nn], mods=stmods)

def gen_c1(a, L, opt):
    V = Alloc('v', 1, 256); Sg = Alloc('s', 26, 100)
    a.reset_state()
    c = ids(a, L, Sg, V)
    c1_issue(a, c, V, Sg, qs=0)
    c1_consts(a, c, V, Sg, qs=0, us=8192)
    c1_main(a, c, V, Sg)
    a.label(L + '_end')
    a.I('s_endpgm')
    return dict(name=L, grid=256, block=256, lds=16384, nv=V.p, na=0, ns=102)

GC1 = -2.0 * math.sqrt(2.0 / math.pi) * math.log2(math.e)
GC2 = GC1 * 0.044715

def gelu_ops(a, acc, tmp, out, sC2, vC1):
    ops = []
    nt = len(tmp) // 2
    for base in range(0, 16, nt):
        idx = list(range(base, base + nt))
        t = lambda e: tmp[e % nt]
        u = lambda e: tmp[nt + e % nt]
        for e in idx: ops.append(lambda e=e: a.I('v_mul_f32', t(e), acc[e], acc[e]))
        for e in idx: ops.append(lambda e=e: a.I('v_fma_f32', t(e), t(e), sC2, vC1))
        for e in idx: ops.append(lambda e=e: a.I('v_mul_f32', t(e), t(e), acc[e]))
        for e in idx: ops.append(lambda e=e: a.I('v_exp_f32', t(e), t(e)))
        for e in idx: ops.append(lambda e=e: a.I('v_add_f32', t(e), 1.0, t(e)))
        for e in idx: ops.append(lambda e=e: a.I('v_rcp_f32', t(e), t(e)))
        for e in idx: ops.append(lambda e=e: a.I('v_mul_f32', t(e), t(e), acc[e]))
        for e in idx[::2]: ops.append(lambda e=e: cvt(a, out[e // 2], t(e), t(e + 1)))
    return ops

def gen_g1(a, L, opt):
    V = Alloc('v', 1, 256); Sg = Alloc('s', 26, 100); AA = Alloc('a', 0, 256)
    a.reset_state()
    c = ids(a, L, Sg, V)
    sW, sR, sM, sT, sT2, vL, t0, t1 = c.sW, c.sR, c.sM, c.sT, c.sT2, c.vL, c.t0, c.t1
    a.I('s_cmp_ge_u32', sM, 14)
    a.I('s_cbranch_scc1', L + '_end')
    srdU = Sg(4, 4); srdW = Sg(4, 4); srdB = Sg(4, 4); srdH1 = Sg(4, 4)
    vUo = V(); vL16 = V(); vL16b = V(); vBo = V(); vC1 = V(); sC2 = Sg()
    sUo = Sg(2); sWo = Sg(); sHo = Sg()
    TK = V(128, 4); ACC = V(64, 4); TMP = V(32, 4)
    WF = AA(32)
    a.I('v_lshlrev_b32', vL16, 4, vL)
    a.I('v_bfe_u32', t0, vL, 3, 2); a.I('v_lshlrev_b32', vUo, 13, t0)
    a.I('v_lshrrev_b32', t0, 5, vL); a.I('v_lshl_add_u32', vUo, t0, 7, vUo)
    a.I('v_lshlrev_b32', vBo, 4, t0)
    a.I('v_and_b32', t0, 7, vL); a.I('v_lshl_add_u32', vUo, t0, 4, vUo)
    a.I('s_lshl_b32', sT, sR, 2); a.I('s_add_u32', sT, sT, sW)
    a.I('s_lshl_b32', sUo[0], sT, 15); a.I('s_add_u32', sUo[1], sUo[0], 4096)
    a.I('s_mul_i32', sHo, sT, 4 * 28 * 1024); a.I('s_lshl_b32', sT2, sM, 11); a.I('s_add_u32', sHo, sHo, sT2)
    srd(a, srdU, P_WS, U2, U2_SZ); srd(a, srdW, P_WS, W1S, W1S_SZ); srd(a, srdB, P_B1, 0, 3584); srd(a, srdH1, P_WS, H1, H1_SZ)
    a.I('s_lshl_b32', sT, sM, 8)
    for q in range(8): bload(a, TMP[4 * q:4 * q + 4], vBo, srdB, sT, 32 * q)
    a.I('s_lshl_b32', sWo, sM, 17); a.I('s_lshl_b32', sT, sW, 11); a.I('s_add_u32', sWo, sWo, sT)
    sM0 = Sg(); sSo = Sg()
    def wdma(T, q):
        hs = []
        for e in range(2):
            off = (T * 32 + 8 * q + e) * 1024
            a.I('s_add_u32', M0, sT, off); a.I('s_add_u32', sSo, sWo, off)
            hs.append(dma16(a, vL16, srdW, sSo))
        return hs
    chunk = []
    for q in range(4):
        hs = wdma(0, q) + wdma(1, q)
        for f in range(8 * q, 8 * q + 8):
            hs.append(bload(a, TK[4 * f:4 * f + 4], vUo, srdU, sUo[f // 16], 256 * (f % 16)))
        chunk.append(hs)
    a.I('v_add_u32', vL16b, 65536, vL16)
    a.I('v_mov_b32', vC1, GC1); a.I('s_mov_b32', sC2, GC2)
    for TT in range(2):
        for j in range(4):
            for i in range(4):
                x = TMP[4 * (4 * TT + j) + i]
                a.I('v_lshlrev_b32', ACC[16 * (2 * TT) + 4 * j + i], 16, x)
                a.I('v_and_b32', ACC[16 * (2 * TT + 1) + 4 * j + i], 0xffff0000, x)
    late = []
    seq = [(T, f) for f in range(32) for T in (0, 1)] + [(2, f) for f in range(32)] + [(3, f) for f in range(32)]
    NB = 8
    def rd(n):
        T, f = seq[n]
        dsr(a, WF[4 * (n % NB):4 * (n % NB) + 4], vL16 if T < 2 else vL16b, ((T % 2) * 32 + f) * 1024)
    fill = []
    OUT = TMP[16:24]
    hoff = [0]
    def gelu_tile(T):
        ops = gelu_ops(a, ACC[16 * T:16 * T + 16], TMP[0:16], OUT, sC2, vC1)
        def st(u):
            a.I('s_add_u32', sSo, sHo, (T * 28 + u) * 1024)
            bstore(a, OUT[4 * u:4 * u + 4], vL16, srdH1, sSo)
        res = []
        for k, o in enumerate(ops):
            res.append(o)
        half = len(ops) // 2
        res.insert(half, lambda: st(0))
        res.append(lambda: st(1))
        return res
    nread = 0
    for n, (T, f) in enumerate(seq):
        if n < 64 and n % 16 == 0:
            q = n // 16
            a.wait(*chunk[q])
            a.barrier()
            if q == 0:
                for TT in (2, 3):
                    for qq in range(4): late += wdma(TT, qq)
            lim = n + 16
        if n == 64:
            a.wait(*late); a.barrier(); lim = 128
            fill = gelu_tile(0) + gelu_tile(1)
        if n == 96:
            fill += gelu_tile(2)
        while nread < min(n + NB - 1, lim):
            rd(nread); nread += 1
        if nread <= n: rd(nread); nread += 1
        d = ACC[16 * T:16 * T + 16]
        a.I(MF32, d, WF[4 * (n % NB):4 * (n % NB) + 4], TK[4 * f:4 * f + 4], d)
        k = 0
        while fill and k < 5:
            fill.pop(0)(); k += 1
    fill += gelu_tile(3)
    for o in fill: o()
    a.label(L + '_end')
    a.I('s_endpgm')
    return dict(name=L, grid=256, block=256, lds=131072, nv=V.p, na=AA.p, ns=102)

def gen_g2(a, L, opt):
    V = Alloc('v', 1, 256); Sg = Alloc('s', 26, 100)
    a.reset_state()
    c = ids(a, L, Sg, V)
    sW, sR, sM, sT, sT2, vL, t0, t1 = c.sW, c.sR, c.sM, c.sT, c.sT2, c.vL, c.t0, c.t1
    srdH1 = Sg(4, 4); srdW = Sg(4, 4); srdH = Sg(4, 4); srdB = Sg(4, 4); srdO = Sg(4, 4)
    vL16 = V(); vWo = V(); vHo = V(); vBo = V(); vOo = V(); vWr = V(3); vRd = V()
    sTk = Sg(); sA0 = Sg(); sA1 = Sg(); sWo = Sg(); sSo = Sg(); sCol = Sg(); sHo = Sg(); sOo = Sg()
    ACC = V(64, 4)
    NS = 8
    BUF = V(16 * NS, 4)
    HB = V(16, 4)
    a.I('v_lshlrev_b32', vL16, 4, vL)
    a.I('s_and_b32', sT, sW, 1); a.I('s_lshl_b32', sT, sT, 8); a.I('v_xor_b32', vWo, sT, vL16)
    a.I('s_lshl_b32', sTk, sR, 2); a.I('s_lshr_b32', sT, sM, 3); a.I('s_lshl_b32', sT, sT, 1); a.I('s_add_u32', sTk, sTk, sT)
    a.I('s_lshr_b32', sT, sW, 1); a.I('s_add_u32', sTk, sTk, sT)
    a.I('s_mul_i32', sT2, sW, 7 * 1024)
    a.I('s_mul_i32', sA0, sTk, 4 * 28 * 1024); a.I('s_add_u32', sA0, sA0, sT2)
    a.I('s_xor_b32', sT, sTk, 1); a.I('s_mul_i32', sA1, sT, 4 * 28 * 1024); a.I('s_add_u32', sA1, sA1, sT2)
    a.I('s_and_b32', sT, sM, 7); a.I('s_lshl_b32', sT, sT, 2); a.I('s_add_u32', sT, sT, sW); a.I('s_mul_i32', sWo, sT, 28 * 2048)
    srd(a, srdH1, P_WS, H1, H1_SZ); srd(a, srdW, P_WS, W2S, W2S_SZ)
    srd(a, srdH, P_WS, HH, HH_SZ); srd(a, srdB, P_B2, 0, 1024); srd(a, srdO, P_OUT, 0, 2048 * 1024)
    a.I('s_and_b32', sCol, sM, 7); a.I('s_lshl_b32', sCol, sCol, 7); a.I('s_and_b32', sT, sW, 1); a.I('s_lshl_b32', sT, sT, 6); a.I('s_add_u32', sCol, sCol, sT)
    a.I('v_lshrrev_b32', t0, 5, vL); a.I('v_lshlrev_b32', vBo, 4, t0)
    a.I('v_and_b32', t0, 31, vL); a.I('v_lshl_add_u32', vHo, t0, 10, vBo)
    a.I('s_lshl_b32', sHo, sTk, 15); a.I('s_add_u32', sHo, sHo, sCol)
    HP = BUF[16 * (NS - 1):16 * NS]
    for jj in range(2):
        bload(a, HP[4 * jj:4 * jj + 4], vHo, srdH, sHo, 32 * jj)
        bload(a, HP[8 + 4 * jj:12 + 4 * jj], vBo, srdB, sCol, 32 * jj)
    steps = [(T, zz) for T in range(4) for zz in range(7)]
    sAo = Sg(2); sWs = Sg()
    def ld(n):
        T, zz = steps[n]; b = BUF[16 * (n % NS):16 * (n % NS) + 16]
        if zz % 4 == 0:
            a.I('s_add_u32', sAo[0], sA0, (T * 28 + zz) * 1024); a.I('s_add_u32', sAo[1], sA1, (T * 28 + zz) * 1024)
        if n % 2 == 0: a.I('s_add_u32', sWs, sWo, n * 2048)
        bload(a, b[0:4], vWo, srdW, sWs, (n % 2) * 2048); bload(a, b[8:12], vL16, srdH1, sAo[0], (zz % 4) * 1024)
        bload(a, b[4:8], vWo, srdW, sWs, (n % 2) * 2048 + 1024); bload(a, b[12:16], vL16, srdH1, sAo[1], (zz % 4) * 1024)
    for n in range(NS - 1): ld(n)
    a.I('v_bfe_u32', t0, vL, 4, 1); a.I('v_lshl_add_u32', vOo, t0, 19, vBo)
    a.I('v_and_b32', t0, 15, vL); a.I('v_lshl_add_u32', vOo, t0, 15, vOo)
    a.I('s_and_b32', sOo, sTk, 1); a.I('s_lshl_b32', sOo, sOo, 20); a.I('s_lshr_b32', sT, sTk, 1); a.I('s_lshl_b32', sT, sT, 10)
    a.I('s_add_u32', sOo, sOo, sT); a.I('s_add_u32', sOo, sOo, sCol)
    for x in range(1, 4):
        a.I('s_xor_b32', sT, sW, x); a.I('s_mul_i32', sT, sT, 3 * 4096); a.I('s_add_u32', sT, sT, (x - 1) * 4096)
        a.I('v_add_u32', vWr[x - 1], sT, vL16)
    a.I('s_mul_i32', sT, sW, 3 * 4096); a.I('v_add_u32', vRd, sT, vL16)
    for jj in range(2):
        for i in range(4):
            h = HP[4 * jj + i]; b = HP[8 + 4 * jj + i]
            a.I('v_lshlrev_b32', HB[4 * jj + i], 16, h); a.I('v_lshlrev_b32', t0, 16, b); a.I('v_add_f32', HB[4 * jj + i], HB[4 * jj + i], t0)
            a.I('v_and_b32', HB[8 + 4 * jj + i], 0xffff0000, h); a.I('v_and_b32', t0, 0xffff0000, b); a.I('v_add_f32', HB[8 + 4 * jj + i], HB[8 + 4 * jj + i], t0)
    for n in range(28):
        if n + NS - 1 < 28: ld(n + NS - 1)
        b = BUF[16 * (n % NS):16 * (n % NS) + 16]
        for tk in range(2):
            for cp in range(2):
                d = ACC[32 * tk + 16 * cp:32 * tk + 16 * cp + 16]
                a.I(MF32, d, b[4 * cp:4 * cp + 4], b[8 + 4 * tk:12 + 4 * tk], d if n else 0)
    for x in range(1, 4):
        tk = x >> 1; h = x & 1
        for cp in range(2):
            for q in range(2):
                o = 32 * tk + 16 * cp + 8 * h + 4 * q
                dsw(a, vWr[x - 1], ACC[o:o + 4], (2 * cp + q) * 1024)
    for cp in range(2):
        for e in range(8): a.I('v_add_f32', ACC[16 * cp + e], ACC[16 * cp + e], HB[8 * cp + e])
    a.wait_lg0()
    a.barrier()
    for x in range(3):
        for k in range(4): dsr(a, BUF[16 * x + 4 * k:16 * x + 4 * k + 4], vRd, x * 4096 + k * 1024)
    for x in range(3):
        for cp in range(2):
            for e in range(8): a.I('v_add_f32', ACC[16 * cp + e], ACC[16 * cp + e], BUF[16 * x + 8 * cp + e])
    for jj in range(2):
        for i in range(4): cvt(a, HB[4 * jj + i], ACC[4 * jj + i], ACC[16 + 4 * jj + i])
        bstore(a, HB[4 * jj:4 * jj + 4], vOo, srdO, sOo, 32 * jj)
    a.label(L + '_end')
    a.I('s_endpgm')
    return dict(name=L, grid=256, block=256, lds=49152, nv=V.p, na=0, ns=102)
```

```python
import sys, re
from common import *
from k1 import gen_k1
from k2 import gen_k2
from k3 import gen_c1, gen_g1, gen_g2

HEADER = open('cdna_kernels/%s.s.ref' % NAME).read().split('; Override launch')[0]

def build(plan, opt):
    parts = []; launches = []; kds = []
    for label, fn in plan:
        a = Asm()
        info = fn(a, label, opt)
        body = a.finish()
        nv = max(a.maxv + 1, 1); na = a.maxa + 1
        parts.append(khead(label) + body + kd(label, nv, na, 102))
        launches.append('; @launch kernel=%s grid=(%d,1,1) block=(%d,1,1) lds=%d' % (label, info['grid'], info['block'], info['lds']))
        print(label, 'vgpr', nv, 'agpr', na, 'sgpr', a.maxs + 1, 'lines', body.count('\n'), file=sys.stderr)
    return HEADER + '\n'.join(launches) + '\n.amdgcn_target "amdgcn-amd-amdhsa--gfx950"\n' + ''.join(parts)

PLANS = {
    'sep5': [('fa_kernel', gen_k1), ('fb_kernel', gen_k2), ('fc_kernel', gen_c1), ('g1_kernel', gen_g1), ('g2_kernel', gen_g2)],
}
if __name__ == '__main__':
    plan = sys.argv[1]; out = sys.argv[2]
    opt = dict(kv.split('=') for kv in sys.argv[3:])
    open(out, 'w').write(build(PLANS[plan], opt))
```

```python
import re, struct

def f2u(x):
    return struct.unpack('<I', struct.pack('<f', x))[0]

def hexf(x):
    return '0x%08x' % f2u(x)

class R:
    __slots__ = ('k', 'i', 'n')
    def __init__(s, k, i, n=1):
        s.k, s.i, s.n = k, i, n
    def __getitem__(s, x):
        if isinstance(x, slice):
            a = x.start or 0
            b = s.n if x.stop is None else x.stop
            assert 0 <= a < b <= s.n, (s, x)
            return R(s.k, s.i + a, b - a)
        assert 0 <= x < s.n, (s, x)
        return R(s.k, s.i + x, 1)
    def __len__(s):
        return s.n
    def __str__(s):
        return '%s%d' % (s.k, s.i) if s.n == 1 else '%s[%d:%d]' % (s.k, s.i, s.i + s.n - 1)
    __repr__ = __str__
    def regs(s):
        return [(s.k, s.i + j) for j in range(s.n)]

def v(i, n=1): return R('v', i, n)
def a(i, n=1): return R('a', i, n)
def s(i, n=1): return R('s', i, n)
VCC = R('s', 106, 2)
EXEC = R('s', 126, 2)
M0 = R('s', 124, 1)

def opstr(o):
    if isinstance(o, R):
        if o.k == 's' and o.i == 106 and o.n == 2: return 'vcc'
        if o.k == 's' and o.i == 106 and o.n == 1: return 'vcc_lo'
        if o.k == 's' and o.i == 107 and o.n == 1: return 'vcc_hi'
        if o.k == 's' and o.i == 126 and o.n == 2: return 'exec'
        if o.k == 's' and o.i == 126 and o.n == 1: return 'exec_lo'
        if o.k == 's' and o.i == 127 and o.n == 1: return 'exec_hi'
        if o.k == 's' and o.i == 124 and o.n == 1: return 'm0'
        return str(o)
    if isinstance(o, Neg): return '-' + opstr(o.r)
    if isinstance(o, Abs): return '|' + opstr(o.r) + '|'
    if isinstance(o, float):
        if o in (0.5, -0.5, 1.0, -1.0, 2.0, -2.0, 4.0, -4.0): return repr(o)
        if o == 0.0: return '0'
        return hexf(o)
    if isinstance(o, int):
        if -16 <= o <= 64: return str(o)
        return '0x%x' % (o & 0xffffffff)
    return str(o)

class Neg:
    def __init__(s, r): s.r = r
class Abs:
    def __init__(s, r): s.r = r

def regs_of(o):
    if isinstance(o, R): return o.regs()
    if isinstance(o, (Neg, Abs)): return regs_of(o.r)
    return []

TRANS = ('v_exp_f32', 'v_log_f32', 'v_rcp_f32', 'v_rsq_f32', 'v_sqrt_f32', 'v_sin_f32', 'v_cos_f32')

class Inst:
    __slots__ = ('op', 'ops', 'mods', 'defs', 'uses', 'kind', 'region', 'text', 'cdefs', 'cuses', 'passes', 'tag', 'wide_store_data', 'abuses', 'done')
    def __init__(s):
        s.defs = []; s.uses = []; s.kind = ''; s.cuses = []; s.abuses = []; s.passes = 0; s.tag = None
        s.wide_store_data = []; s.done = False

class Asm:
    def __init__(self):
        self.ins = []
        self.region = 0
        self._nreg = 0
        self.vmq = []
        self.lgq = []
        self.pend = {}
        self.out = []
        self.maxv = -1; self.maxa = -1; self.maxs = -1
        self.bg = []; self.bg_every = 0; self._bgc = 0; self._inbg = False

    def raw(self, text):
        i = Inst(); i.op = 'raw'; i.text = text; i.kind = 'raw'; i.region = self.region
        self.ins.append(i); return i
    def comment(self, t):
        return self.raw('; ' + t)
    def label(self, name):
        i = Inst(); i.op = 'label'; i.text = name + ':'; i.kind = 'label'; i.region = self.region
        self.ins.append(i); return i
    def begin_cond(self):
        assert self.region == 0
        self._nreg += 1; self.region = self._nreg
    def end_cond(self):
        self.region = 0
    def snapshot(self):
        return (list(self.vmq), list(self.lgq), dict(self.pend))
    def restore(self, snap):
        self.vmq, self.lgq, self.pend = list(snap[0]), list(snap[1]), dict(snap[2])
        for y in self.vmq + self.lgq: y.done = False
    def reset_state(self):
        self.vmq = []; self.lgq = []; self.pend = {}
        i = Inst(); i.op = 'reset'; i.text = ''; i.kind = 'reset'; i.region = 0
        self.ins.append(i)

    def _count_younger(self, q, x):
        idx = q.index(x)
        return sum(1 for y in q[idx + 1:] if y.region in (0, self.region) or y.region == x.region)
    def _emit_wait(self, vm=None, lg=None):
        parts = []
        if vm is not None: parts.append('vmcnt(%d)' % min(vm, 63))
        if lg is not None: parts.append('lgkmcnt(%d)' % min(lg, 15))
        i = Inst(); i.op = 's_waitcnt'; i.text = 's_waitcnt ' + ' '.join(parts); i.kind = 'salu'; i.region = self.region
        self.ins.append(i)
    def _retire(self, q, x):
        idx = q.index(x)
        for y in q[:idx + 1]:
            y.done = True
            for r in y.defs:
                if self.pend.get(r) is y: del self.pend[r]
        del q[:idx + 1]
    def wait(self, *hs):
        vm = lg = None; vx = lx = None; smem_wait = False
        for h in hs:
            if h is None or h.done: continue
            if h in self.vmq:
                n = self._count_younger(self.vmq, h)
                if vx is None or self.vmq.index(h) > self.vmq.index(vx): vx = h
                vm = n if vm is None else min(vm, n)
            elif h in self.lgq:
                if h.kind == 'smem':
                    lg = 0; lx = self.lgq[-1]; smem_wait = True
                elif not smem_wait:
                    idx = self.lgq.index(h)
                    n = sum(1 for y in self.lgq[idx + 1:] if y.kind != 'smem' and (y.region in (0, self.region) or y.region == h.region))
                    if lx is None or idx > self.lgq.index(lx): lx = h
                    lg = n if lg is None else min(lg, n)
        if vm is None and lg is None: return
        if self.region != 0:
            self._emit_wait(vm, lg)
            self._cond_retire(vx, lx)
            return
        self._emit_wait(vm, lg)
        if vx is not None: self._retire(self.vmq, vx)
        if lx is not None:
            if lg == 0: self._retire(self.lgq, self.lgq[-1])
            else:
                idx = self.lgq.index(lx)
                keep = [y for y in self.lgq[:idx + 1] if y.kind == 'smem']
                for y in keep: self.lgq.remove(y)
                self._retire(self.lgq, lx)
                self.lgq[:0] = keep
    def _cond_retire(self, vx, lx):
        for q, x in ((self.vmq, vx), (self.lgq, lx)):
            if x is None: continue
            idx = q.index(x)
            keep = []
            for j, y in enumerate(q):
                if j <= idx and y.region == self.region:
                    y.done = True
                    for r in y.defs:
                        if self.pend.get(r) is y: del self.pend[r]
                else:
                    keep.append(y)
            q[:] = keep
    def wait_vm0(self):
        self._emit_wait(vm=0)
        if self.vmq:
            if self.region == 0: self._retire(self.vmq, self.vmq[-1])
            else: self._cond_retire(self.vmq[-1], None)
    def wait_lg0(self):
        self._emit_wait(lg=0)
        if self.lgq:
            if self.region == 0: self._retire(self.lgq, self.lgq[-1])
            else: self._cond_retire(None, self.lgq[-1])
    def wait_all(self):
        self._emit_wait(vm=0, lg=0)
        for q in (self.vmq, self.lgq):
            if q:
                if self.region == 0: self._retire(q, q[-1])
        if self.region != 0:
            self._cond_retire(self.vmq[-1] if self.vmq else None, self.lgq[-1] if self.lgq else None)
    def barrier(self):
        self.I('s_barrier')

    def I(self, op, *ops, mods='', defs=None, uses=None):
        i = Inst(); i.op = op; i.ops = ops; i.mods = mods; i.region = self.region
        i.text = op + ((' ' + ', '.join(opstr(o) for o in ops)) if ops else '') + ((' ' + mods) if mods else '')
        d, u = self._du(i)
        if defs is not None: d = [r for o in defs for r in regs_of(o)]
        if uses is not None: u = u + [r for o in uses for r in regs_of(o)]
        i.defs, i.uses = d, u
        for k, n in d + u:
            if k == 'v': self.maxv = max(self.maxv, n)
            elif k == 'a': self.maxa = max(self.maxa, n)
            elif k == 's' and n < 102: self.maxs = max(self.maxs, n)
        need = []
        for r in d + u:
            h = self.pend.get(r)
            if h is not None and h not in need: need.append(h)
        if need:
            if i.kind in ('vmem', 'ds') and not any(r in self.pend for r in u):
                need = [h for h in need if h.kind != i.kind]
            if need: self.wait(*need)
        self.ins.append(i)
        if i.kind == 'vmem':
            self.vmq.append(i)
            assert len(self.vmq) <= 63 or True
            for r in d: self.pend[r] = i
        elif i.kind in ('ds', 'smem'):
            self.lgq.append(i)
            for r in d: self.pend[r] = i
        if self.bg and self.bg_every and not self._inbg and i.kind in ('valu', 'trans', 'mfma') and self.region == 0:
            self._bgc += 1
            if self._bgc >= self.bg_every:
                self._bgc = 0; self._inbg = True
                self.bg.pop(0)()
                self._inbg = False
        return i

    def bg_flush(self):
        self._inbg = True
        while self.bg: self.bg.pop(0)()
        self._inbg = False

    def _du(self, i):
        op, ops = i.op, i.ops
        R_ = lambda *x: [r for o in x for r in regs_of(o)]
        if op.startswith('v_mfma'):
            i.kind = 'mfma'
            i.passes = 8 if '32x32' in op else 4
            i.cuses = R_(ops[3]); i.abuses = R_(ops[1], ops[2])
            return R_(ops[0]), R_(ops[1], ops[2], ops[3])
        if op.startswith('buffer_') or op.startswith('global_'):
            i.kind = 'vmem'
            lds = ' lds' in (' ' + i.mods) or '_lds_' in op
            if op in ('buffer_wbl2', 'buffer_inv'):
                return [], []
            if lds:
                return [], R_(*ops) + [('s', 124)]
            if '_load' in op:
                return R_(ops[0]), R_(*ops[1:])
            if '_store' in op:
                data = ops[0] if op.startswith('buffer_') else ops[1]
                if data.n >= 3: i.wide_store_data = R_(data)
                return [], R_(*ops)
            if '_atomic' in op:
                if 'sc0' in i.mods:
                    if op.startswith('buffer_'): return R_(ops[0]), R_(*ops)
                    return R_(ops[0]), R_(*ops[1:])
                return [], R_(*ops)
            raise ValueError(op)
        if op.startswith('ds_'):
            i.kind = 'ds'
            if op.startswith('ds_read') or op.startswith('ds_bpermute') or op.startswith('ds_swizzle'):
                return R_(ops[0]), R_(*ops[1:])
            return [], R_(*ops)
        if op.startswith('s_load') or op in ('s_memtime', 's_memrealtime'):
            i.kind = 'smem'
            return R_(ops[0]), R_(*ops[1:])
        if op.startswith('s_'):
            i.kind = 'salu'
            if op.startswith('s_cmp') or op.startswith('s_bitcmp'):
                return [], R_(*ops)
            if op in ('s_barrier', 's_endpgm', 's_nop', 's_sleep', 's_setprio', 's_branch') or op.startswith('s_cbranch'):
                return [], []
            if op == 's_and_saveexec_b64':
                return R_(ops[0]) + EXEC.regs(), R_(ops[1]) + EXEC.regs()
            if op.startswith('s_addk') or op.startswith('s_mulk'):
                return R_(ops[0]), R_(ops[0])
            return R_(ops[0]), R_(*ops[1:])
        if op.startswith('v_'):
            i.kind = 'valu'
            if op in TRANS: i.kind = 'trans'
            if 'permlane' in op or op == 'v_swap_b32':
                return R_(ops[0], ops[1]), R_(ops[0], ops[1])
            if op.startswith('v_fmac') or op.startswith('v_dot2c') or op == 'v_writelane_b32':
                return R_(ops[0]), R_(*ops)
            if op.startswith('v_cndmask') and len(ops) == 3:
                return R_(ops[0]), R_(*ops[1:]) + VCC.regs()
            if '_co_' in op:
                return R_(ops[0], ops[1]), R_(*ops[2:])
            return R_(ops[0]), R_(*ops[1:])
        raise ValueError('unknown op ' + op)

    def _need(self, p, c):
        n = 0
        pv = p.kind in ('valu', 'trans')
        cv = c.kind in ('valu', 'trans')
        pd = set(p.defs)
        if pv:
            pvg = set(r for r in pd if r[0] != 's')
            psg = pd - pvg
            if pvg:
                cu = set(c.uses)
                if c.kind == 'mfma' and pvg & cu: n = max(n, 2)
                if cv and pvg & cu:
                    if p.kind == 'trans' and c.kind != 'trans': n = max(n, 1)
                    if p.kind == 'trans' and c.kind == 'trans': n = max(n, 1)
                    if '_dpp' in c.op or 'permlane' in c.op: n = max(n, 2)
                    if 'readlane' in c.op or 'readfirstlane' in c.op: n = max(n, 1)
            if psg:
                cu = set(c.uses)
                if psg & cu:
                    if c.kind == 'vmem': n = max(n, 5)
                    elif cv:
                        n = max(n, 4 if ('readlane' in c.op or 'writelane' in c.op) else 2)
                    elif c.kind == 'mfma': n = max(n, 4)
                    elif c.kind in ('salu', 'smem'): n = max(n, 2)
        if p.kind == 'mfma':
            D = pd
            if c.kind == 'mfma':
                cc = set(c.cuses)
                if D & set(c.abuses): n = max(n, p.passes + 4)
                if D & cc:
                    if cc == D and c.passes == p.passes: pass
                    else: n = max(n, p.passes + 2)
                elif D & set(c.defs):
                    n = max(n, p.passes + 4)
            elif c.kind in ('valu', 'trans', 'vmem', 'ds'):
                if D & (set(c.uses) | set(c.defs)): n = max(n, p.passes + 4)
            if cv and set(p.cuses) & set(c.defs): n = max(n, p.passes - 1)
        if p.wide_store_data:
            if set(p.wide_store_data) & set(c.defs): n = max(n, 2 if cv else 1)
        if p.kind == 'salu' and ('s', 124) in pd and c.kind == 'vmem' and ('s', 124) in c.uses:
            n = max(n, 1)
        if p.kind == 'salu' and (('s', 126) in pd or ('s', 127) in pd) and ('_dpp' in c.op or 'permlane' in c.op):
            n = max(n, 1)
        return n

    def finish(self):
        out = []
        WIN = 14
        for c in self.ins:
            if c.kind == 'reset':
                out.append(c); continue
            if c.kind in ('raw', 'label'):
                out.append(c); continue
            need = 0; dist = 0; j = len(out) - 1; seen = 0
            while j >= 0 and dist < WIN:
                p = out[j]; j -= 1
                if p.kind == 'reset': break
                if p.kind in ('raw', 'label'): continue
                w = self._need(p, c)
                if w > dist: need = max(need, w - dist)
                counts = p.region in (0, c.region)
                if counts:
                    dist += (p.nopn if p.op == 's_nop' and hasattr(p, 'nopn') else 1)
            while need > 0:
                k = min(need, 16)
                nop = NopInst(k); nop.region = c.region
                out.append(nop); need -= k
            out.append(c)
        return '\n'.join(('' if i.kind in ('label', 'reset') else '\t') + i.text for i in out) + '\n'

class NopInst(Inst):
    __slots__ = ('nopn',)
    def __init__(s, k):
        super().__init__()
        s.op = 's_nop'; s.kind = 'salu'; s.nopn = k; s.text = 's_nop %d' % (k - 1)
```

```python
from asmlib import *

NAME = 'sequential_preLN__spectral_gfnet__mixer_channel_mlp__prompt'

ZT = 0x000000; ZT_SZ = 0x200000
WT = 0x200000; WT_SZ = 129 * 16384
QT = 0x410000; QT_SZ = 0x200000
HH = 0x610000; HH_SZ = 0x200000
U2 = 0x810000; U2_SZ = 0x200000
W1S = 0xA10000; W1S_SZ = 0x1C0000
W2S = 0xBD0000; W2S_SZ = 0x1C0000
H1 = 0xD90000; H1_SZ = 0x700000
CNT = 0x1490000; CNT_SZ = 0x30000
STAMP = 0x14D0000; STAMP_SZ = 0x100000

P_X, P_WR, P_WI, P_BX, P_W1, P_B1, P_W2, P_B2 = [s(4 + 2 * i, 2) for i in range(8)]
P_OUT, P_DBG, P_WS = s(20, 2), s(22, 2), s(24, 2)

MF16 = 'v_mfma_f32_16x16x32_bf16'
MF32 = 'v_mfma_f32_32x32x16_bf16'

class Alloc:
    def __init__(self, kind, start, end):
        self.k, self.s, self.e = kind, start, end
        self.used = set(); self._p = start
    @property
    def p(self): return self._p
    @p.setter
    def p(self, x):
        self.used = set(r for r in self.used if r < x); self._p = x
        self.used |= set(range(self.s, x))
    def __call__(self, n=1, align=None):
        if align is None: align = 2 if n >= 2 else 1
        i = (self.s + align - 1) // align * align
        while any(r in self.used for r in range(i, i + n)): i += align
        assert i + n <= self.e, 'out of regs %s %d' % (self.k, i + n)
        self.used |= set(range(i, i + n)); self._p = max(self._p, i + n)
        return R(self.k, i, n)
    def snapshot(self): return (set(self.used), self._p)
    def restore(self, sn): self.used, self._p = set(sn[0]), sn[1]
    def free(self, *rs):
        for r in rs:
            for k in range(r.i, r.i + r.n): self.used.discard(k)

def kernarg(a):
    a.I('s_load_dwordx16', s(4, 16), s(0, 2), 0)
    a.I('s_load_dwordx4', s(20, 4), s(0, 2), 64)
    a.I('s_load_dwordx2', s(24, 2), s(0, 2), 80)

def srd(a, d, base, off, size):
    assert d.n == 4 and d.i % 4 == 0
    if off:
        a.I('s_add_u32', d[0], base[0], off)
        a.I('s_addc_u32', d[1], base[1], 0)
    else:
        a.I('s_mov_b32', d[0], base[0])
        a.I('s_mov_b32', d[1], base[1])
    a.I('s_mov_b32', d[2], size)
    a.I('s_mov_b32', d[3], 0x20000)

def round_bf16(a, dst, src):
    a.I('v_cvt_pk_bf16_f32', dst, src, src)
    a.I('v_lshlrev_b32', dst, 16, dst)

def cvt(a, dst, lo, hi):
    a.I('v_cvt_pk_bf16_f32', dst, lo, hi)

def bload(a, dst, voff, srd_, soff=0, off=0, mods=''):
    n = dst.n
    op = {1: 'buffer_load_dword', 2: 'buffer_load_dwordx2', 4: 'buffer_load_dwordx4'}[n]
    assert 0 <= off < 4096
    m = 'offen' + (' offset:%d' % off if off else '') + (' ' + mods if mods else '')
    return a.I(op, dst, voff, srd_, soff, mods=m)

def bstore(a, src, voff, srd_, soff=0, off=0, mods=''):
    n = src.n
    op = {1: 'buffer_store_dword', 2: 'buffer_store_dwordx2', 4: 'buffer_store_dwordx4'}[n]
    assert 0 <= off < 4096
    m = 'offen' + (' offset:%d' % off if off else '') + (' ' + mods if mods else '')
    return a.I(op, src, voff, srd_, soff, mods=m)

def dma16(a, voff, srd_, soff=0, mods=''):
    m = 'offen' + (' ' + mods if mods else '') + ' lds'
    return a.I('buffer_load_dwordx4', voff, srd_, soff, mods=m)

def dsr(a, dst, addr, off=0):
    op = {1: 'ds_read_b32', 2: 'ds_read_b64', 4: 'ds_read_b128'}[dst.n]
    assert 0 <= off < 65536
    return a.I(op, dst, addr, mods=('offset:%d' % off if off else ''))

def dsw(a, addr, src, off=0):
    op = {1: 'ds_write_b32', 2: 'ds_write_b64', 4: 'ds_write_b128'}[src.n]
    assert 0 <= off < 65536
    return a.I(op, addr, src, mods=('offset:%d' % off if off else ''))

def wave_id(a, sdst, tmp):
    a.I('v_lshrrev_b32', tmp, 6, v(0))
    a.I('v_readfirstlane_b32', sdst, tmp)

def angles(a, n, ang, a0, st, C, S):
    for e in range(n):
        if e: a.I('v_add_f32', a0, a0, st)
        if C is not None: a.I('v_cos_f32', C[e], a0)
        if S is not None: a.I('v_sin_f32', S[e], a0)

def stamp(a, idx, srd_st, sbase, tmp_s, tmp_v, enable):
    if not enable: return
    a.I('s_memrealtime', tmp_s)
    a.wait_lg0()
    a.I('v_mov_b32', tmp_v[0], tmp_s[0])
    a.I('v_mov_b32', tmp_v[1], sbase)
    bstore(a, tmp_v[0], tmp_v[1], srd_st, 0, idx * 4)

def kd(name, nv, na, ns):
    acc = max(4, (nv + 3) // 4 * 4)
    tot = acc + na if na else nv
    return '''.section .rodata,"a"
.p2align 6
.amdhsa_kernel %s
  .amdhsa_next_free_vgpr %d
  .amdhsa_next_free_sgpr %d
  .amdhsa_accum_offset %d
  .amdhsa_group_segment_fixed_size 0
  .amdhsa_kernarg_size 88
  .amdhsa_user_sgpr_count 2
  .amdhsa_user_sgpr_kernarg_segment_ptr 1
  .amdhsa_system_sgpr_workgroup_id_x 1
  .amdhsa_float_denorm_mode_32 3
.end_amdhsa_kernel
.text
''' % (name, tot, min(102, ns), acc)

def khead(name):
    return '.text\n.globl %s\n.p2align 8\n.type %s,@function\n%s:\n' % (name, name, name)

def ln_reduce_pairs(a, S, Q, t):
    a.I('v_permlane32_swap_b32', S, Q)
    a.I('v_add_f32', S, S, Q)
    a.I('v_add_f32_dpp', S, S, S, mods='quad_perm:[1,0,3,2] row_mask:0xf bank_mask:0xf')
    a.I('v_add_f32_dpp', S, S, S, mods='row_ror:4 row_mask:0xf bank_mask:0xf')
    a.I('v_add_f32_dpp', S, S, S, mods='row_ror:8 row_mask:0xf bank_mask:0xf')
    a.I('v_mov_b32', t, S)
    a.I('v_permlane16_swap_b32', S, t)
    a.I('v_add_f32', S, S, t)
    a.I('v_mov_b32', Q, S)
    a.I('v_permlane32_swap_b32', S, Q)

class Stamps:
    def __init__(self, a, kidx, opt, vreg=255):
        self.a, self.k, self.on = a, kidx, bool(int(opt.get('stamp', 0)))
        self.v = v(vreg); self.map = None; self.op = 's_memtime' if int(opt.get('cyc', 0)) else 's_memrealtime'
    def __call__(self, idx):
        if not self.on: return
        if self.map is not None and idx in self.map:
            idx = self.map[idx]
            if idx is None: return
        assert idx < 15
        a = self.a
        a.I(self.op, s(98, 2)); a.wait_lg0()
        if idx == 0: a.I('v_mov_b32', self.v, -1)
        a.I('v_writelane_b32', self.v, s(98), idx)
    def flush(self, sW, nslots=None):
        if not self.on: return
        a = self.a
        a.wait_all()
        self.map = None
        self(14)
        q = s(92, 4)
        a.I('s_load_dwordx2', s(96, 2), s(0, 2), 80); a.wait_lg0()
        srd(a, q, s(96, 2), STAMP, STAMP_SZ)
        a.I('s_lshl_b32', s(96), s(2), 3); a.I('s_add_u32', s(96), s(96), sW); a.I('s_lshl_b32', s(96), s(96), 6)
        a.I('s_add_u32', s(96), s(96), self.k * 256 * 8 * 64)
        a.I('s_mov_b64', EXEC, 0xffff)
        a.I('v_and_b32', v(1), 15, v(0)); a.I('v_lshlrev_b32', v(1), 2, v(1))
        bstore(a, self.v, v(1), q, s(96), 0)

def w2_swizzle_issue(a, V, Sg, sTau, vL, sT):
    h = type('H', (), {})()
    srdS = Sg(4, 4); h.srdD = Sg(4, 4); sA = Sg(); sB = Sg(); sC = Sg(); so = Sg(8)
    vS = V(); h.vD = V(); h.IN = V(8); h.O = V(8); h.sTau = sTau; h.sD = sA; h.sel = so[0:2]
    a.I('v_lshrrev_b32', vS, 5, vL); a.I('v_and_b32', h.vD, 31, vL); a.I('v_lshlrev_b32', h.vD, 2, h.vD)
    a.I('v_lshl_add_u32', vS, vS, 12, h.vD); a.I('v_lshlrev_b32', h.vD, 4, vL)
    srd(a, srdS, P_W2, 0, 1792 * 1024); srd(a, h.srdD, P_WS, W2S, W2S_SZ)
    a.I('s_mul_i32', sC, sTau, 9363); a.I('s_lshr_b32', sC, sC, 20)
    a.I('s_mul_i32', sT, sC, 112); a.I('s_sub_u32', sA, sTau, sT)
    a.I('s_lshl_b32', sC, sC, 7)
    a.I('s_mul_i32', sB, sA, 4682); a.I('s_lshr_b32', sB, sB, 16)
    a.I('s_mul_i32', sT, sB, 14); a.I('s_sub_u32', sA, sA, sT)
    a.I('s_lshr_b32', sT, sB, 1); a.I('s_lshl_b32', sT, sT, 5)
    a.I('s_and_b32', sB, sB, 1); a.I('s_lshl_b32', sB, sB, 7); a.I('s_add_u32', sB, sB, sT)
    a.I('s_lshr_b32', sT, sA, 1); a.I('s_lshl_b32', sT, sT, 8); a.I('s_add_u32', sB, sB, sT)
    a.I('s_and_b32', sT, sA, 1); a.I('s_lshl_b32', sT, sT, 4); a.I('s_add_u32', sB, sB, sT)
    a.I('s_lshl_b32', sB, sB, 10); a.I('s_add_u32', sB, sB, sC)
    for e in range(8):
        a.I('s_add_u32', so[e], sB, (8 * (e // 4) + (e % 4)) * 1024)
        bload(a, h.IN[e], vS, srdS, so[e])
    return h

def w2_swizzle_finish(a, h):
    a.I('s_lshl_b32', h.sD, h.sTau, 11)
    a.I('s_mov_b32', h.sel[0], 0x05040100); a.I('s_mov_b32', h.sel[1], 0x07060302)
    for p in range(4):
        a.I('v_perm_b32', h.O[p], h.IN[2 * p + 1], h.IN[2 * p], h.sel[0])
        a.I('v_perm_b32', h.O[4 + p], h.IN[2 * p + 1], h.IN[2 * p], h.sel[1])
    bstore(a, h.O[0:4], h.vD, h.srdD, h.sD, 0); bstore(a, h.O[4:8], h.vD, h.srdD, h.sD, 1024)

def touch(a, srd_, vP, sBase, n, PF, sT):
    for e in range(n):
        if e: a.I('s_add_u32', sT, sBase, 8192 * e)
        bload(a, PF[e % len(PF)], vP, srd_, sT if e else sBase)
```

```python
from common import *

LDS_K1 = 8 * 2064

def gen_k1(a, L, opt):
    name = L
    V = Alloc('v', 1, 255); Sg = Alloc('s', 26, 92)
    ST = Stamps(a, 0, opt)
    a.reset_state()
    ST(0)
    a.I('s_cmp_ge_u32', s(2), 256)
    a.I('s_cbranch_scc1', L + '_end')
    kernarg(a)
    sW = Sg(); sXcd = Sg(); sIdx = Sg(); sT = Sg(); sT2 = Sg()
    vL = V(); vN = V(); vG = V(); t0 = V(); t1 = V()
    wave_id(a, sW, t0)
    a.I('v_and_b32', vL, 63, v(0))
    a.I('s_and_b32', sXcd, s(2), 7)
    a.I('s_lshr_b32', sIdx, s(2), 3)
    a.I('s_cmp_ge_u32', sIdx, 16)
    a.I('s_cbranch_scc1', L + '_helper')
    mark_v, mark_s = V.p, Sg.p
    srdX = Sg(4, 4); srdZ = Sg(4, 4)
    sU = Sg(); sRow = Sg()
    a.I('s_lshl_b32', sU, sXcd, 4); a.I('s_add_u32', sU, sU, sIdx)
    a.I('s_and_b32', sT, sU, 3); a.I('s_lshl_b32', sT, sT, 4)
    a.I('s_lshl_b32', sT2, sW, 1); a.I('s_add_u32', sT, sT, sT2); a.I('s_lshl_b32', sT, sT, 5)
    a.I('s_lshr_b32', sT2, sU, 2); a.I('s_add_u32', sT, sT, sT2); a.I('s_lshl_b32', sRow, sT, 10)
    vOff = V()
    a.I('v_and_b32', vN, 15, vL); a.I('v_lshrrev_b32', vG, 4, vL)
    a.I('v_bfe_u32', t0, vL, 1, 1); a.I('v_lshlrev_b32', vOff, 15, t0)
    a.I('v_lshl_add_u32', vOff, vG, 5, vOff)
    a.I('v_bfe_u32', t0, vL, 2, 2); a.I('v_lshl_add_u32', vOff, t0, 3, vOff)
    a.I('v_and_b32', t0, 1, vL); a.I('v_lshl_add_u32', vOff, t0, 2, vOff)
    srd(a, srdX, P_X, 0, 2048 * 1024)
    X = V(8)
    for j in range(8): hx = bload(a, X[j], vOff, srdX, sRow, 128 * j)
    srd(a, srdZ, P_WS, ZT, ZT_SZ)
    fN = V(); fG = V(); a0 = V(); st = V(); C = V(8); S_ = V(8)
    a.I('v_cvt_f32_u32', fN, vN); a.I('v_cvt_f32_u32', fG, vG)
    sM0 = Sg(2); sLo = Sg(2); sQ0 = Sg(2)
    a.I('v_cmp_eq_u32', sM0, 0, vN)
    a.I('v_cmp_gt_u32', sLo, 8, vN)
    a.I('s_mov_b64', sQ0, 0xffff)
    fNG = V()
    a.I('v_mul_f32', fNG, fN, fG)
    B1r = V(4); B1i = V(4)
    a.I('v_mul_f32', a0, 1.0 / 32, fNG); a.I('v_mul_f32', st, 0.125, fN)
    angles(a, 8, None, a0, st, C, S_)
    a.I('v_and_b32', t0, 1, vG); a.I('v_mul_u32_u24', t0, 0x8000, t0); a.I('v_lshl_or_b32', t0, t0, 16, t0)
    a.I('v_or_b32', t0, 0x3f803f80, t0)
    for jj in range(4):
        cvt(a, B1r[jj], C[2 * jj], C[2 * jj + 1])
        cvt(a, B1i[jj], Neg(S_[2 * jj]), Neg(S_[2 * jj + 1]))
        a.I('v_cndmask_b32', B1i[jj], B1i[jj], t0, sM0)
    TC = V(4); TS = V(4)
    a.I('v_mul_f32', a0, 1.0 / 128, fNG); a.I('v_mul_f32', st, 1.0 / 512, fN)
    angles(a, 4, None, a0, st, TC, TS)
    B2r = V(4); B2i = V(4); B2sr = V(4); B2si = V(4)
    a.I('v_mul_f32', a0, 0.25, fNG); a.I('v_mul_f32', st, 1.0 / 16, fN)
    angles(a, 4, None, a0, st, C, S_)
    a.I('v_mov_b32', t1, 0x80008000)
    a.I('v_cndmask_b32', t0, t1, 0, sLo)
    a.I('v_xor_b32', t1, t1, t0)
    for h in range(2):
        cvt(a, B2r[h], C[2 * h], C[2 * h + 1]); cvt(a, B2r[2 + h], S_[2 * h], S_[2 * h + 1])
        a.I('v_xor_b32', B2i[h], B2r[2 + h], t1)
        a.I('v_xor_b32', B2i[2 + h], B2r[h], t0)
    a.I('v_add_f32', t0, fN, fN); a.I('v_add_f32', t1, -15.0, t0); a.I('v_cndmask_b32', t0, t1, t0, sLo)
    a.I('v_mul_f32', st, 1.0 / 32, t0); a.I('v_mul_f32', a0, fG, st); a.I('v_mul_f32', a0, 4.0, a0)
    angles(a, 4, None, a0, st, C, S_)
    a.I('v_mov_b32', t1, 0xbf803f80)
    for h in range(2):
        cvt(a, t0, C[2 * h], C[2 * h + 1])
        a.I('v_cndmask_b32', B2sr[h], 0, t0, sLo); a.I('v_cndmask_b32', B2sr[2 + h], t0, 0, sLo)
        cvt(a, t0, Neg(S_[2 * h]), Neg(S_[2 * h + 1]))
        a.I('v_cndmask_b32', t0, t0, t1, sM0)
        a.I('v_cndmask_b32', B2si[h], 0, t0, sLo); a.I('v_cndmask_b32', B2si[2 + h], t0, 0, sLo)
    WA = V(4)
    a.I('s_mul_i32', sT, sW, 2064)
    a.I('v_lshl_add_u32', t1, vG, 7, sT)
    for i in range(4):
        a.I('v_add_u32', t0, i, vN); a.I('v_and_b32', t0, 15, t0)
        a.I('v_lshl_add_u32', WA[i], t0, 3, t1)
        if i: a.I('v_add_u32', WA[i], 512 * i, WA[i])
    RA = V(2); vZ = V(); vK1 = V(); vNn = V()
    a.I('v_lshrrev_b32', vZ, 2, vL)
    def sigma_addr(dst, k1, nn):
        a.I('v_and_b32', t0, 3, k1)
        a.I('v_add_u32', t1, nn, t0); a.I('v_and_b32', t1, 15, t1)
        a.I('v_lshl_add_u32', t1, t0, 6, t1)
        a.I('v_lshrrev_b32', t0, 2, k1); a.I('v_lshl_add_u32', t1, t0, 4, t1)
        a.I('v_and_b32', t0, 3, vL); a.I('v_mul_u32_u24', t0, 4128, t0)
        a.I('v_lshl_add_u32', dst, t1, 3, t0)
    a.I('v_mov_b32', vNn, sW)
    sigma_addr(RA[0], vZ, vNn)
    a.I('v_cmp_eq_u32', VCC, 0, vZ)
    a.I('v_sub_u32', vK1, 16, vZ); a.I('v_and_b32', vK1, 15, vK1)
    a.I('s_sub_u32', sT, 15, sW); a.I('s_add_u32', sT2, sW, 8)
    a.I('v_mov_b32', vNn, sT); a.I('v_mov_b32', t0, sT2)
    a.I('v_cndmask_b32', vNn, vNn, t0, VCC)
    sigma_addr(RA[1], vK1, vNn)
    vZo = V(); sZo = Sg(); sZo1 = Sg()
    a.I('v_lshrrev_b32', t0, 3, vL); a.I('v_and_b32', t1, 7, vL)
    a.I('v_lshlrev_b32', t1, 4, t1); a.I('v_lshl_add_u32', vZo, t0, 14, t1)
    a.I('s_lshl_b32', sZo, sW, 18); a.I('s_lshl_b32', sT, sU, 7); a.I('s_add_u32', sZo, sZo, sT)
    a.I('s_add_u32', sZo1, sZo, 8 * 16384)
    ST(1)
    a.wait(hx)
    ST(2)
    Ssum = V(); Q = V(); ones = V()
    a.I('v_mov_b32', ones, 0x3f803f80)
    a.I('v_dot2_f32_bf16', Ssum, X[0], ones, 0); a.I('v_dot2_f32_bf16', Q, X[0], X[0], 0)
    for j in range(1, 8):
        a.I('v_dot2_f32_bf16', Ssum, X[j], ones, Ssum); a.I('v_dot2_f32_bf16', Q, X[j], X[j], Q)
    a.I('s_nop', 2)
    xf = V(16)
    ln_reduce_pairs(a, Ssum, Q, t0)
    for j in range(8):
        a.I('v_lshlrev_b32', xf[2 * j], 16, X[j]); a.I('v_and_b32', xf[2 * j + 1], 0xffff0000, X[j])
    a.I('v_mul_f32', Ssum, 1.0 / 512, Ssum); a.I('v_mul_f32', Q, 1.0 / 512, Q)
    a.I('v_fma_f32', Q, Neg(Ssum), Ssum, Q); a.I('v_max_f32', Q, 0, Q)
    round_bf16(a, Ssum, Ssum); round_bf16(a, Q, Q)
    a.I('v_add_f32', Q, 1e-5, Q); round_bf16(a, Q, Q)
    a.I('v_sqrt_f32', Q, Q); round_bf16(a, Q, Q)
    a.I('v_rcp_f32', Q, Q)
    a.I('v_mul_f32', Ssum, Ssum, Q)
    for e in range(16): a.I('v_fma_f32', xf[e], xf[e], Q, Neg(Ssum))
    P = V(8)
    for b in range(2):
        for jj in range(4): cvt(a, P[4 * b + jj], xf[4 * jj + b], xf[4 * jj + 2 + b])
    D = V(16)
    for b in range(2):
        a.I(MF16, D[8 * b:8 * b + 4], P[4 * b:4 * b + 4], B1r, 0)
        a.I(MF16, D[8 * b + 4:8 * b + 8], P[4 * b:4 * b + 4], B1i, 0)
    A2 = V(8); tr = xf[0:4]; ti = xf[4:8]
    D2 = V(32)
    for r in range(2):
        for db in range(2):
            for b in range(2):
                e = 2 * db + b; Tr = D[8 * b + 2 * r + db]; Ti = D[8 * b + 4 + 2 * r + db]
                a.I('v_mul_f32', tr[e], Tr, TC[e]); a.I('v_mul_f32', ti[e], Ti, TC[e])
                a.I('v_fmac_f32', tr[e], Ti, TS[e]); a.I('v_fma_f32', ti[e], Neg(Tr), TS[e], ti[e])
        A = A2[4 * r:4 * r + 4]
        cvt(a, A[0], tr[0], tr[1]); cvt(a, A[1], tr[2], tr[3]); cvt(a, A[2], ti[0], ti[1]); cvt(a, A[3], ti[2], ti[3])
        o = 16 * r
        a.I(MF16, D2[o:o + 4], A, B2r, 0); a.I(MF16, D2[o + 4:o + 8], A, B2i, 0)
        a.I(MF16, D2[o + 8:o + 12], A, B2sr, 0); a.I(MF16, D2[o + 12:o + 16], A, B2si, 0)
    O = xf[8:16]
    for i in (1, 2, 3, 0):
        if i == 0:
            for r in range(2):
                for c in range(2):
                    a.I('v_cndmask_b32', D2[16 * r + 4 * c], D2[16 * r + 4 * c], D2[16 * r + 8 + 4 * c], sQ0)
        cvt(a, O[2 * i], D2[i], D2[16 + i]); cvt(a, O[2 * i + 1], D2[4 + i], D2[20 + i])
        dsw(a, WA[i], O[2 * i:2 * i + 2])
    ST(3)
    a.wait_lg0()
    a.barrier()
    ST(4)
    for it in range(2):
        dsr(a, P[4 * it:4 * it + 2], RA[it], 0); dsr(a, P[4 * it + 2:4 * it + 4], RA[it], 2064)
    bstore(a, P[0:4], vZo, srdZ, sZo); bstore(a, P[4:8], vZo, srdZ, sZo1)
    ST(5)
    ST.flush(sW, 6)
    a.I('s_endpgm')
    maxv = V.p
    a.reset_state()
    a.label(L + '_helper')
    V.p, Sg.p = mark_v, mark_s
    a.lgq = []
    a.wait_lg0()
    srdR = Sg(4, 4); srdI = Sg(4, 4); srdW = Sg(4, 4); srdC = Sg(4, 4)
    sHb = Sg(); sJp = Sg(); sQ = Sg(); sBase = Sg(); sDst = Sg(); so = Sg(8)
    a.I('s_sub_u32', sHb, sIdx, 16); a.I('s_lshl_b32', sHb, sHb, 3); a.I('s_add_u32', sHb, sHb, sXcd)
    a.I('s_lshr_b32', sJp, sHb, 2); a.I('s_and_b32', sQ, sHb, 3)
    srd(a, srdR, P_WR, 0, 2048 * 514); srd(a, srdI, P_WI, 0, 2048 * 514)
    a.I('s_lshl_b32', sT, sJp, 1); a.I('s_lshl_b32', sT2, sQ, 8); a.I('s_add_u32', sT, sT, sT2); a.I('s_mul_i32', sBase, sT, 514)
    for tj in range(2):
        for rho in range(4):
            a.I('s_add_u32', so[4 * tj + rho], sBase, (1024 * tj + 64 * rho) * 514)
    vK = V(); vH = V(); vS = V(); vD = V(); vS2 = V(); vD2 = V()
    a.I('v_and_b32', vK, 255, v(0)); a.I('v_lshrrev_b32', vH, 8, v(0))
    a.I('v_mul_u32_u24', vS, 514, vH); a.I('v_lshl_add_u32', vS, vK, 1, vS)
    WRr = V(8); WIr = V(8); WR2 = V(8); WI2 = V(8)
    for e in range(8):
        a.I('buffer_load_ushort', WRr[e], vS, srdR, so[e], mods='offen')
        a.I('buffer_load_ushort', WIr[e], vS, srdI, so[e], mods='offen')
    a.I('v_mul_u32_u24', vS2, 514, vL); a.I('v_add_u32', vS2, 512, vS2)
    a.I('v_lshlrev_b32', vD2, 5, vL); a.I('v_add_u32', vD2, 128 * 16384 + 64, vD2)
    a.I('s_cmp_lg_u32', sW, 0)
    a.I('s_cbranch_scc1', L + '_h1')
    a.begin_cond()
    a.I('s_mov_b64', EXEC, 3)
    for e in range(8):
        a.I('buffer_load_ushort', WR2[e], vS2, srdR, so[e], mods='offen')
        a.I('buffer_load_ushort', WI2[e], vS2, srdI, so[e], mods='offen')
    a.I('s_mov_b64', EXEC, -1)
    a.end_cond()
    a.label(L + '_h1')
    if int(opt.get('pf_code', 0)):
        a.I('s_cmp_lg_u32', sW, 1)
        a.I('s_cbranch_scc1', L + '_p1')
        a.begin_cond()
        pc = Sg(2); PF = V(4)
        a.I('s_getpc_b64', pc)
        a.label(L + '_pc')
        a.raw('s_add_u32 s%d, s%d, %s-%s' % (pc.i, pc.i, opt['code_lo'], L + '_pc'))
        a.raw('s_addc_u32 s%d, s%d, 0' % (pc.i + 1, pc.i + 1))
        srd(a, srdC, pc, 0, 0)
        a.raw('s_mov_b32 s%d, %s-%s' % (srdC.i + 2, opt['code_hi'], opt['code_lo']))
        a.I('v_lshlrev_b32', t0, 7, vL)
        for e in range(4):
            a.I('s_mov_b32', sT, 8192 * e)
            bload(a, PF[e], t0, srdC, sT)
        a.end_cond()
        a.label(L + '_p1')
    sw = int(opt.get('sw_in', 1)) == 1
    if sw:
        sTau = Sg()
        a.I('s_lshl_b32', sTau, sHb, 3); a.I('s_add_u32', sTau, sTau, sW); a.I('s_min_u32', sTau, sTau, 895)
        H = w2_swizzle_issue(a, V, Sg, sTau, vL, sT)
    if int(opt.get('pf_tlb', 0)):
        a.I('s_cmp_lg_u32', sW, 2)
        a.I('s_cbranch_scc1', L + '_p2')
        a.begin_cond()
        PG = V(6); g = int(opt['pf_tlb'])
        srd(a, srdC, P_WS, 0, CNT + CNT_SZ)
        a.I('v_lshlrev_b32', t0, g, vL)
        for e in range(2 if g >= 18 else 6):
            a.I('s_mov_b32', sT, (64 << g) * e)
            bload(a, PG[e], t0, srdC, sT)
        srd(a, srdC, P_W1, 0, 512 * 3584); bload(a, PG[2], t0, srdC, 0)
        srd(a, srdC, P_W2, 0, 512 * 3584); bload(a, PG[3], t0, srdC, 0)
        srd(a, srdC, P_OUT, 0, 2048 * 1024); bload(a, PG[4], t0, srdC, 0)
        srd(a, srdC, P_B1, 0, 3584); bload(a, PG[5], t0, srdC, 0)
        srd(a, srdC, P_B2, 0, 1024); bload(a, PG[5], t0, srdC, 0)
        a.end_cond()
        a.label(L + '_p2')
    srd(a, srdW, P_WS, WT, WT_SZ)
    a.I('v_lshrrev_b32', t0, 1, vK); a.I('v_mov_b32', t1, 128)
    a.I('v_cmp_eq_u32', VCC, 0, vK); a.I('v_cndmask_b32', t0, t0, t1, VCC)
    a.I('v_and_b32', t1, 1, vK); a.I('v_lshlrev_b32', t1, 6, t1); a.I('v_lshl_add_u32', vD, t0, 14, t1)
    a.I('v_lshl_add_u32', vD, vH, 5, vD)
    a.I('s_lshr_b32', sT, sJp, 3); a.I('s_lshl_b32', sDst, sT, 12)
    a.I('s_and_b32', sT, sJp, 7); a.I('s_lshl_b32', sT2, sQ, 3); a.I('s_add_u32', sT, sT, sT2); a.I('s_lshl_b32', sT, sT, 7)
    a.I('s_add_u32', sDst, sDst, sT)
    if opt.get('clear_cnt'):
        srd(a, srdC, P_WS, CNT, CNT_SZ)
        Z4 = V(4); vZ = V()
        for e in range(4): a.I('v_mov_b32', Z4[e], 0)
        a.I('v_lshlrev_b32', vZ, 4, v(0)); a.I('v_mov_b32', t1, 0x10000000)
        a.I('v_cmp_gt_u32', VCC, 96, v(0)); a.I('v_cndmask_b32', vZ, t1, vZ, VCC)
        a.I('s_mul_i32', sT, sHb, 1536)
        bstore(a, Z4, vZ, srdC, sT)
    ST(1)
    for e in range(8): a.I('v_lshl_or_b32', WRr[e], WIr[e], 16, WRr[e])
    ST(2)
    bstore(a, WRr[0:4], vD, srdW, sDst, 0); bstore(a, WRr[4:8], vD, srdW, sDst, 16)
    hi1 = int(opt.get('k1_w1_hi', 0))
    if hi1:
        PF = V(4); vP = V(); sB = Sg(); n = -(-hi1 // (128 * 8))
        srd(a, srdC, P_W1, 0, hi1 * 1024)
        a.I('v_lshlrev_b32', vP, 7, vL)
        a.I('s_sub_u32', sB, sIdx, 16); a.I('s_lshl_b32', sB, sB, 3); a.I('s_add_u32', sB, sB, sW); a.I('s_mul_i32', sB, sB, n * 8192)
        touch(a, srdC, vP, sB, n, PF, sT)
    if sw: w2_swizzle_finish(a, H)
    a.I('s_cmp_lg_u32', sW, 0)
    a.I('s_cbranch_scc1', L + '_h3')
    a.begin_cond()
    a.I('s_mov_b64', EXEC, 3)
    for e in range(8): a.I('v_lshl_or_b32', WR2[e], WI2[e], 16, WR2[e])
    bstore(a, WR2[0:4], vD2, srdW, sDst, 0); bstore(a, WR2[4:8], vD2, srdW, sDst, 16)
    a.end_cond()
    a.label(L + '_h3')
    ST.flush(sW, 3)
    a.label(L + '_end')
    a.I('s_endpgm')
    maxv = max(maxv, V.p)
    return dict(name=name, grid=256, block=512, lds=LDS_K1, nv=maxv, na=0, ns=102)
```

```python
from common import *

LDS_K2 = 32768

def cmul(a, outr, outi, xr, xi, c, sn, conj):
    a.I('v_mul_f32', outr, xr, c); a.I('v_mul_f32', outi, xi, c)
    if not conj:
        a.I('v_fmac_f32', outr, xi, sn); a.I('v_fma_f32', outi, Neg(xr), sn, outi)
    else:
        a.I('v_fma_f32', outr, Neg(xi), sn, outr); a.I('v_fmac_f32', outi, xr, sn)

def pack_tuples(a, re, im, C, S):
    cvt(a, re[0], C[0], C[1]); cvt(a, re[1], S[0], S[1]); cvt(a, re[2], C[2], C[3]); cvt(a, re[3], S[2], S[3])
    a.I('v_xor_b32', im[0], 0x80008000, re[1]); a.I('v_mov_b32', im[1], re[0])
    a.I('v_xor_b32', im[2], 0x80008000, re[3]); a.I('v_mov_b32', im[3], re[2])

def gen_k2(a, L, opt):
    V = Alloc('v', 1, 255); Sg = Alloc('s', 26, 92)
    ST = Stamps(a, 1, opt)
    a.reset_state()
    ST(0)
    a.I('s_cmp_ge_u32', s(2), 256)
    a.I('s_cbranch_scc1', L + '_end')
    kernarg(a)
    sW = Sg(); sT = Sg(); sT2 = Sg()
    vL = V(); vN = V(); vG = V(); t0 = V(); t1 = V()
    wave_id(a, sW, t0)
    a.I('v_and_b32', vL, 63, v(0))
    a.I('s_cmp_ge_u32', s(2), 129)
    a.I('s_cbranch_scc1', L + '_helper')
    mark_v, mark_s = V.p, Sg.p
    srdZ = Sg(4, 4); srdW = Sg(4, 4); srdQ = Sg(4, 4)
    sPar = Sg(); sV = Sg(); sP = Sg(); sPz = Sg(); sParz = Sg(); sSrc = Sg(); sWo = Sg(); sQo = Sg()
    a.I('s_lshr_b32', sPar, sW, 2); a.I('s_and_b32', sV, sW, 3)
    a.I('s_cmp_eq_u32', s(2), 128)
    a.I('s_cselect_b32', sPz, 0, s(2)); a.I('s_cselect_b32', sParz, 0, sPar)
    a.I('v_and_b32', vN, 15, vL); a.I('v_lshrrev_b32', vG, 4, vL)
    vOff = V()
    a.I('v_lshlrev_b32', vOff, 9, vN); a.I('v_lshl_add_u32', vOff, vG, 4, vOff)
    a.I('s_lshl_b32', sSrc, sPz, 14); a.I('s_lshl_b32', sT, sParz, 6); a.I('s_add_u32', sSrc, sSrc, sT)
    a.I('s_bfe_u32', sT, sW, 0x10001); a.I('s_lshl_b32', sT, sT, 13); a.I('s_add_u32', sSrc, sSrc, sT)
    a.I('s_and_b32', sT, sW, 1); a.I('s_lshl_b32', sT, sT, 8); a.I('s_add_u32', sSrc, sSrc, sT)
    a.I('s_add_u32', sT2, sSrc, 128)
    srd(a, srdZ, P_WS, ZT, ZT_SZ)
    a.I('s_lshl_b32', M0, sW, 11)
    h0 = dma16(a, vOff, srdZ, sSrc)
    a.I('s_add_u32', M0, M0, 1024)
    h1 = dma16(a, vOff, srdZ, sT2)
    srd(a, srdW, P_WS, WT, WT_SZ)
    vWo = V(); Wp = V(8)
    a.I('v_lshrrev_b32', t0, 1, vL); a.I('v_and_b32', t1, 1, vL); a.I('v_lshlrev_b32', t1, 5, t1); a.I('v_lshl_add_u32', vWo, t0, 7, t1)
    a.I('s_lshl_b32', sWo, s(2), 14); a.I('s_lshl_b32', sT, sV, 12); a.I('s_add_u32', sWo, sWo, sT)
    a.I('s_lshl_b32', sT, sPar, 6); a.I('s_add_u32', sWo, sWo, sT)
    bload(a, Wp[0:4], vWo, srdW, sWo, 0); bload(a, Wp[4:8], vWo, srdW, sWo, 16)
    srd(a, srdQ, P_WS, QT, QT_SZ)
    fN = V(); fG4 = V(); fJ = V(); a0 = V(); st = V(); C = V(4); S_ = V(4)
    a.I('v_cvt_f32_u32', fN, vN); a.I('v_cvt_f32_u32', fG4, vG); a.I('v_mul_f32', fG4, 4.0, fG4)
    a.I('s_lshl_b32', sT, sV, 4); a.I('v_add_u32', t0, sT, vN); a.I('v_cvt_f32_u32', fJ, t0)
    B1 = V(32)
    a.I('v_mul_f32', st, 1.0 / 64, fJ)
    for aa in range(4):
        a.I('v_add_f32', a0, float(16 * aa), fG4); a.I('v_mul_f32', a0, a0, st)
        angles(a, 4, None, a0, st, C, S_)
        pack_tuples(a, B1[8 * aa:8 * aa + 4], B1[8 * aa + 4:8 * aa + 8], C, S_)
    A2 = V(32)
    sg = V()
    a.I('v_mul_f32', st, 1.0 / 32, fN); a.I('v_mul_f32', a0, fG4, st)
    angles(a, 4, None, a0, st, C, S_)
    pack_tuples(a, A2[0:4], A2[4:8], C, S_)
    a.I('v_and_b32', sg, 1, vN); a.I('v_mul_u32_u24', sg, 0x8000, sg); a.I('v_lshl_or_b32', sg, sg, 16, sg)
    for e in range(8):
        a.I('v_xor_b32', A2[8 + e], A2[e], sg)
        a.I('v_xor_b32', A2[16 + e], 0x80000000, A2[e])
        a.I('v_xor_b32', A2[24 + e], A2[16 + e], sg)
    T1c = V(8); T1s = V(8); T2c = V(8); T2s = V(8)
    a.I('v_mul_f32', st, 1.0 / 2048, fJ)
    for t in range(2):
        a.I('v_add_f32', a0, float(16 * t), fG4); a.I('v_mul_f32', a0, a0, st)
        angles(a, 4, None, a0, st, T1c[4 * t:4 * t + 4], T1s[4 * t:4 * t + 4])
    fV = V()
    a.I('s_lshl_b32', sT, sV, 4); a.I('v_cvt_f32_u32', fV, sT); a.I('v_add_f32', fV, fV, fG4)
    for t in range(2):
        a.I('v_add_f32', st, float(16 * t), fN); a.I('v_mul_f32', st, 1.0 / 2048, st); a.I('v_mul_f32', a0, fV, st)
        angles(a, 4, None, a0, st, T2c[4 * t:4 * t + 4], T2s[4 * t:4 * t + 4])
    vRd = V(); vWr = V(); vQo = V()
    a.I('s_lshl_b32', sT, sPar, 13); a.I('v_lshl_add_u32', vRd, vL, 4, sT)
    a.I('s_lshl_b32', sT2, sV, 10); a.I('v_add_u32', vWr, sT2, vRd)
    a.I('v_lshlrev_b32', vQo, 16, vN); a.I('v_lshl_add_u32', vQo, vG, 4, vQo)
    a.I('s_lshl_b32', sQo, sV, 14); a.I('s_lshl_b32', sT, sPz, 7); a.I('s_add_u32', sQo, sQo, sT)
    a.I('s_lshl_b32', sT, sParz, 6); a.I('s_add_u32', sQo, sQo, sT)
    sQo1 = Sg(); a.I('s_add_u32', sQo1, sQo, 64 * 16384)
    ZF = V(32)
    ST(1)
    a.wait(h0, h1)
    ST(2)
    a.barrier()
    ST(3)
    for t in range(2):
        for aa in range(4): dsr(a, ZF[16 * t + 4 * aa:16 * t + 4 * aa + 4], vRd, (4 * t + aa) * 1024)
    a.I('s_cmp_lg_u32', s(2), 128)
    a.I('s_cbranch_scc1', L + '_nosp')
    a.begin_cond()
    a.wait_lg0()
    a.I('s_cmp_eq_u32', sPar, 1)
    a.I('s_cselect_b64', VCC, -1, 0)
    for f in range(8):
        for h in range(2):
            a.I('v_cndmask_b32', ZF[4 * f + 2 * h], ZF[4 * f + 2 * h], ZF[4 * f + 2 * h + 1], VCC)
            a.I('v_mov_b32', ZF[4 * f + 2 * h + 1], 0)
    a.I('s_nop', 1)
    a.end_cond()
    a.label(L + '_nosp')
    D = V(16)
    for t in range(2):
        for aa in range(4):
            for c in range(2):
                d = D[8 * t + 4 * c:8 * t + 4 * c + 4]
                a.I(MF16, d, ZF[16 * t + 4 * aa:16 * t + 4 * aa + 4], B1[8 * aa + 4 * c:8 * aa + 4 * c + 4], d if aa else 0)
    Wr = V(8); Wi = V(8)
    for e in range(8):
        a.I('v_lshlrev_b32', Wr[e], 16, Wp[e]); a.I('v_and_b32', Wi[e], 0xffff0000, Wp[e])
    tr = V(4); ti = V(4); TB = V(8); D2 = V(16)
    for t in range(2):
        for e in range(4): cmul(a, tr[e], ti[e], D[8 * t + e], D[8 * t + 4 + e], T1c[4 * t + e], T1s[4 * t + e], False)
        B = TB[4 * t:4 * t + 4]
        cvt(a, B[0], tr[0], tr[1]); cvt(a, B[1], ti[0], ti[1]); cvt(a, B[2], tr[2], tr[3]); cvt(a, B[3], ti[2], ti[3])
        for tj in range(2):
            for c in range(2):
                d = D2[8 * tj + 4 * c:8 * tj + 4 * c + 4]
                o = 16 * tj + 8 * t + 4 * c
                a.I(MF16, d, A2[o:o + 4], B, d if t else 0)
    for tj in range(2):
        for e in range(4):
            xr = D2[8 * tj + e]; xi = D2[8 * tj + 4 + e]; wr = Wr[4 * tj + e]; wi = Wi[4 * tj + e]
            a.I('v_mul_f32', tr[e], xr, wr); a.I('v_mul_f32', ti[e], xr, wi)
            a.I('v_fma_f32', tr[e], Neg(xi), wi, tr[e]); a.I('v_fmac_f32', ti[e], xi, wr)
        B = TB[4 * tj:4 * tj + 4]
        cvt(a, B[0], ti[0], ti[1]); cvt(a, B[1], tr[0], tr[1]); cvt(a, B[2], ti[2], ti[3]); cvt(a, B[3], tr[2], tr[3])
        for ts in range(2):
            for c in range(2):
                d = D[8 * ts + 4 * c:8 * ts + 4 * c + 4]
                o = 16 * ts + 8 * tj + 4 * (1 - c)
                a.I(MF16, d, B, A2[o:o + 4], d if tj else 0)
    for ts in range(2):
        for e in range(4): cmul(a, tr[e], ti[e], D[8 * ts + e], D[8 * ts + 4 + e], T2c[4 * ts + e], T2s[4 * ts + e], True)
        B = TB[4 * ts:4 * ts + 4]
        cvt(a, B[0], ti[0], ti[1]); cvt(a, B[1], tr[0], tr[1]); cvt(a, B[2], ti[2], ti[3]); cvt(a, B[3], tr[2], tr[3])
        dsw(a, vWr, B, 16384 + ts * 4096)
    ST(4)
    a.wait_lg0()
    a.barrier()
    ST(5)
    for ts in range(2):
        for aa in range(4): dsr(a, ZF[16 * ts + 4 * aa:16 * ts + 4 * aa + 4], vRd, 16384 + (4 * ts + aa) * 1024)
    for ts in range(2):
        for aa in range(4):
            for c in range(2):
                d = D2[8 * ts + 4 * c:8 * ts + 4 * c + 4]
                o = 8 * aa + 4 * (1 - c)
                a.I(MF16, d, B1[o:o + 4], ZF[16 * ts + 4 * aa:16 * ts + 4 * aa + 4], d if aa else 0)
    for ts in range(2):
        B = TB[4 * ts:4 * ts + 4]; d = D2[8 * ts:8 * ts + 8]
        cvt(a, B[0], d[0], d[1]); cvt(a, B[1], d[4], d[5]); cvt(a, B[2], d[2], d[3]); cvt(a, B[3], d[6], d[7])
    a.I('s_cmp_eq_u32', s(2), 128)
    a.I('s_cbranch_scc1', L + '_spst')
    a.I('s_lshl_b32', sT, s(2), 1); a.I('s_or_b32', sT, sT, sPar)
    a.I('s_cmp_eq_u32', sT, 0)
    a.I('s_cbranch_scc1', L + '_end')
    bstore(a, TB[0:4], vQo, srdQ, sQo); bstore(a, TB[4:8], vQo, srdQ, sQo1)
    ST(6)
    ST.flush(sW, 7)
    a.I('s_endpgm')
    a.reset_state()
    a.label(L + '_spst')
    a.I('s_lshl_b32', sT, sPar, 2); a.I('v_add_u32', vQo, sT, vQo)
    for ts in range(2):
        bstore(a, TB[4 * ts], vQo, srdQ, (sQo, sQo1)[ts], 0); bstore(a, TB[4 * ts + 2], vQo, srdQ, (sQo, sQo1)[ts], 8)
    a.I('s_endpgm')
    maxv = V.p
    a.reset_state()
    a.label(L + '_helper')
    V.p, Sg.p = mark_v, mark_s
    a.wait_lg0()
    sTau = Sg(); srdP = Sg(4, 4); vP = V(); PF = V(4); sB = Sg()
    a.I('v_lshlrev_b32', vP, 7, vL)
    sw = int(opt.get('sw_in', 1)) == 2
    if sw:
        a.I('s_sub_u32', sTau, s(2), 129); a.I('s_lshl_b32', sTau, sTau, 3); a.I('s_add_u32', sTau, sTau, sW)
        a.I('s_min_u32', sTau, sTau, 895)
        H = w2_swizzle_issue(a, V, Sg, sTau, vL, sT)
    a.I('s_lshr_b32', sB, s(2), 3); a.I('s_cmp_lt_u32', sB, 17)
    a.I('s_cbranch_scc1', L + '_nopf')
    a.begin_cond()
    a.I('s_sub_u32', sB, sB, 17); a.I('s_lshl_b32', sB, sB, 3); a.I('s_add_u32', sB, sB, sW)
    lo1 = int(opt.get('k2_w1_lo', 0)); hi1 = int(opt.get('k2_w1_hi', 1792)); hi2 = int(opt.get('k2_w2_hi', 0))
    for (P, off, lo, hi) in ((P_W1, 0, lo1, hi1), (P_WS, W2S, 0, hi2)):
        if hi <= lo: continue
        n = -(-(hi - lo) // (120 * 8))
        srd(a, srdP, P, off, hi * 1024)
        a.I('s_mul_i32', sT2, sB, n * 8192); a.I('s_add_u32', sT2, sT2, lo * 1024)
        touch(a, srdP, vP, sT2, n, PF, sT)
    a.end_cond()
    a.label(L + '_nopf')
    ST(1)
    if sw: w2_swizzle_finish(a, H)
    ST(2)
    ST.flush(sW)
    a.label(L + '_end')
    a.I('s_endpgm')
    maxv = max(maxv, V.p)
    return dict(name=L, grid=256, block=512, lds=LDS_K2, nv=maxv, na=0, ns=102)
```

```python
from common import *
from k2 import cmul
import math

QS = 0x20000
US = 0x22000

class Ctx: pass

def ids(a, L, Sg, V, ST):
    c = Ctx(); c.ST = ST
    ST(0)
    a.I('s_cmp_ge_u32', s(2), 256)
    a.I('s_cbranch_scc1', L + '_end')
    kernarg(a)
    c.sW = Sg(); c.sR = Sg(); c.sM = Sg(); c.sT = Sg(); c.sT2 = Sg()
    c.vL = V(); c.t0 = V(); c.t1 = V()
    wave_id(a, c.sW, c.t0)
    a.I('v_and_b32', c.vL, 63, v(0))
    a.I('s_and_b32', c.sT, s(2), 7); a.I('s_lshl_b32', c.sR, c.sT, 1)
    a.I('s_lshr_b32', c.sT, s(2), 7); a.I('s_add_u32', c.sR, c.sR, c.sT)
    a.I('s_bfe_u32', c.sM, s(2), 0x40003)
    return c

def c1_issue(a, c, V, Sg, qs=QS):
    sW, sR, sM, sT, sT2, vL, t0, t1 = c.sW, c.sR, c.sM, c.sT, c.sT2, c.vL, c.t0, c.t1
    c.srdQ = srdQ = Sg(4, 4); c.srdX = srdX = Sg(4, 4)
    sU = Sg(); sSrc = Sg(); sRow = Sg()
    if not hasattr(c, 'vN'):
        c.vN = V(); c.vG = V()
        a.I('v_and_b32', c.vN, 15, vL); a.I('v_lshrrev_b32', c.vG, 4, vL)
    vN, vG = c.vN, c.vG
    vOff = V(); c.vXo = vXo = V()
    a.I('s_lshl_b32', sU, sR, 3); a.I('s_lshr_b32', sT, sM, 1); a.I('s_add_u32', sU, sU, sT)
    a.I('v_lshrrev_b32', t0, 2, vL); a.I('v_lshlrev_b32', vOff, 7, t0)
    a.I('v_bfe_u32', t0, vL, 1, 1); a.I('v_lshl_add_u32', vOff, t0, 6, vOff)
    a.I('v_and_b32', t0, 1, vL); a.I('v_lshl_add_u32', vOff, t0, 4, vOff)
    a.I('s_lshl_b32', sSrc, sU, 14); a.I('s_lshl_b32', sT, sW, 12); a.I('s_add_u32', sSrc, sSrc, sT)
    a.I('s_and_b32', sT, sM, 1); a.I('s_lshl_b32', sT, sT, 5); a.I('s_add_u32', sSrc, sSrc, sT)
    a.I('s_add_u32', sT2, sSrc, 2048)
    srd(a, srdQ, P_WS, QT, QT_SZ)
    a.I('s_lshl_b32', sT, sW, 11); a.I('s_add_u32', M0, sT, qs)
    c.hq0 = dma16(a, vOff, srdQ, sSrc)
    a.I('s_add_u32', M0, M0, 1024)
    c.hq1 = dma16(a, vOff, srdQ, sT2)
    a.I('s_and_b32', sT, sU, 3); a.I('s_lshl_b32', sRow, sT, 4)
    a.I('s_and_b32', sT, sM, 1); a.I('s_lshl_b32', sT, sT, 3); a.I('s_add_u32', sRow, sRow, sT)
    a.I('s_lshl_b32', sT, sW, 1); a.I('s_add_u32', sRow, sRow, sT); a.I('s_lshl_b32', sRow, sRow, 5)
    a.I('s_lshr_b32', sT, sU, 2); a.I('s_add_u32', sRow, sRow, sT); a.I('s_lshl_b32', sRow, sRow, 10)
    a.I('s_add_u32', sT2, sRow, 32768)
    a.I('v_lshlrev_b32', vXo, 5, vN); a.I('v_lshl_add_u32', vXo, vG, 3, vXo)
    srd(a, srdX, P_X, 0, 2048 * 1024)
    c.Xp = Xp = V(8)
    for r in range(2):
        for t in range(2): bload(a, Xp[4 * r + 2 * t:4 * r + 2 * t + 2], vXo, srdX, (sRow, sT2)[r], 512 * t)

def c1_consts(a, c, V, Sg, qs=QS, us=US):
    c1_consts_a(a, c, V, Sg); c1_consts_b(a, c, V, Sg, qs, us)

def c1_consts_a(a, c, V, Sg):
    if not hasattr(c, 'vN'):
        c.vN = V(); c.vG = V()
        a.I('v_and_b32', c.vN, 15, c.vL); a.I('v_lshrrev_b32', c.vG, 4, c.vL)
    sW, sR, sM, sT, sT2, vL, t0, t1, vN, vG = c.sW, c.sR, c.sM, c.sT, c.sT2, c.vL, c.t0, c.t1, c.vN, c.vG
    fN = V(); fG = V(); fNG = V(); a0 = V(); st = V(); c.tmp8 = V(8); C = c.tmp8[0:4]; S_ = c.tmp8[4:8]
    a.I('v_cvt_f32_u32', fN, vN); a.I('v_cvt_f32_u32', fG, vG); a.I('v_mul_f32', fNG, fN, fG)
    sLo = Sg(2); c.sQ0 = sQ0 = Sg(2); sN0 = Sg(2)
    a.I('v_cmp_gt_u32', sLo, 2, vG)
    a.I('s_mov_b64', sQ0, 0xffff)
    a.I('v_cmp_eq_u32', sN0, 0, vN)
    c.Br = Br = V(4); c.Bi = Bi = V(4); c.Bsr = Bsr = V(4); c.Bsi = Bsi = V(4)
    a.I('v_mul_f32', a0, 0.25, fNG); a.I('v_mul_f32', st, 1.0 / 16, fN)
    angles(a, 4, None, a0, st, C, S_)
    a.I('v_mov_b32', t1, 0x80008000)
    a.I('v_cndmask_b32', t0, t1, 0, sLo); a.I('v_xor_b32', t1, t1, t0)
    for h in range(2):
        cvt(a, Br[h], C[2 * h], C[2 * h + 1]); cvt(a, Bi[h], S_[2 * h], S_[2 * h + 1])
        a.I('v_xor_b32', Br[2 + h], Bi[h], t1); a.I('v_xor_b32', Bi[2 + h], Br[h], t0)
    a.I('v_mul_f32', t0, 8.0, fG); a.I('v_add_f32', t1, -15.0, t0); a.I('v_cndmask_b32', t0, t1, t0, sLo)
    a.I('v_mul_f32', a0, t0, fN); a.I('v_mul_f32', a0, 1.0 / 32, a0)
    angles(a, 4, None, a0, st, C, S_)
    sgn = V()
    a.I('v_and_b32', sgn, 1, vN); a.I('v_lshlrev_b32', sgn, 31, sgn); a.I('v_or_b32', sgn, 1.0, sgn)
    for e in range(4):
        a.I('v_mul_f32', C[e], 2.0, C[e]); a.I('v_mul_f32', S_[e], -2.0, S_[e])
    a.I('v_cndmask_b32', C[0], C[0], 1.0, sQ0); a.I('v_cndmask_b32', S_[0], S_[0], sgn, sQ0)
    for h in range(2):
        cvt(a, t0, C[2 * h], C[2 * h + 1]); cvt(a, t1, S_[2 * h], S_[2 * h + 1])
        a.I('v_cndmask_b32', Bsr[h], 0, t0, sLo); a.I('v_cndmask_b32', Bsi[h], t0, 0, sLo)
        a.I('v_cndmask_b32', Bsr[2 + h], 0, t1, sLo); a.I('v_cndmask_b32', Bsi[2 + h], t1, 0, sLo)
    c.TC = TC = V(4); c.TS = TS = V(4)
    a.I('v_mul_f32', a0, 1.0 / 128, fNG); a.I('v_mul_f32', st, 1.0 / 512, fN)
    angles(a, 4, None, a0, st, TC, TS)
    for e in range(4):
        a.I('v_mul_f32', TC[e], 2.0 ** -20, TC[e]); a.I('v_mul_f32', TS[e], 2.0 ** -20, TS[e])
    c.k = (fN, fNG, a0, st, C, S_, sgn, sLo, sQ0, sN0)

def c1_consts_b(a, c, V, Sg, qs, us):
    sW, sR, sM, sT, sT2, vL, t0, t1, vN, vG = c.sW, c.sR, c.sM, c.sT, c.sT2, c.vL, c.t0, c.t1, c.vN, c.vG
    fN, fNG, a0, st, C, S_, sgn, sLo, sQ0, sN0 = c.k
    c.G = G = V(8)
    a.I('v_mul_f32', a0, 0.125, fNG); a.I('v_mul_f32', st, 1.0 / 32, fN)
    angles(a, 4, None, a0, st, C, S_)
    for e in range(4):
        a.I('v_mul_f32', C[e], 2.0, C[e]); a.I('v_mul_f32', S_[e], -2.0, S_[e])
    a.I('v_cndmask_b32', C[0], C[0], 1.0, sQ0); a.I('v_cndmask_b32', S_[0], S_[0], sgn, sQ0)
    for h in range(2):
        cvt(a, G[h], C[2 * h], C[2 * h + 1]); cvt(a, G[2 + h], S_[2 * h], S_[2 * h + 1])
    for e in range(4): a.I('v_xor_b32', G[4 + e], 0x80000000, G[e])
    c.RA = RA = V(4)
    a.I('v_lshl_add_u32', t0, vG, 7, vN)
    a.I('v_sub_u32', t1, 512, t0)
    a.I('v_cndmask_b32', t1, t1, t0, sLo)
    a.I('v_add_u32', t0, -240, t0)
    a.I('s_andn2_b64', VCC, sN0, sLo)
    a.I('v_cndmask_b32', t1, t1, t0, VCC)
    a.I('s_lshr_b32', sT, sW, 1); a.I('s_lshl_b32', sT, sT, 4); a.I('s_and_b32', sT2, sW, 1); a.I('s_lshl_b32', sT2, sT2, 3)
    a.I('s_add_u32', sT, sT, sT2); a.I('s_add_u32', sT, sT, qs)
    a.I('v_lshl_add_u32', RA[0], t1, 5, sT)
    a.I('s_or_b64', VCC, sN0, sLo)
    a.I('v_mov_b32', t0, -1024); a.I('v_mov_b32', t1, 1024); a.I('v_cndmask_b32', t0, t0, t1, VCC)
    for i in range(1, 4): a.I('v_add_u32', RA[i], RA[i - 1], t0)
    c.UW = UW = V(2); c.UR = UR = V()
    a.I('s_lshl_b32', sT, sW, 1)
    for r in range(2):
        a.I('v_add_u32', t0, sT, vL)
        if r: a.I('v_add_u32', t0, 1, t0)
        a.I('v_and_b32', t0, 7, t0); a.I('v_lshlrev_b32', t0, 4, t0)
        a.I('v_lshl_add_u32', UW[r], vL, 7, t0); a.I('v_add_u32', UW[r], us, UW[r])
    a.I('v_lshrrev_b32', t1, 3, vL); a.I('v_add_u32', t0, t1, vL); a.I('v_and_b32', t0, 7, t0); a.I('v_lshlrev_b32', t0, 4, t0)
    a.I('v_lshl_add_u32', UR, t1, 7, t0)
    a.I('s_lshl_b32', sT, sW, 11); a.I('s_add_u32', sT, sT, us); a.I('v_add_u32', UR, sT, UR)
    c.srdH = Sg(4, 4); c.srdU = Sg(4, 4); c.sHo = Sg(2); c.vUo = V()
    srd(a, c.srdH, P_WS, HH, HH_SZ); srd(a, c.srdU, P_WS, U2, U2_SZ)
    a.I('s_lshl_b32', sT, sR, 4); a.I('s_add_u32', sT, sT, sM)
    a.I('s_lshl_b32', c.sHo[0], sT, 13); a.I('s_lshl_b32', sT2, sW, 11); a.I('s_add_u32', c.sHo[0], c.sHo[0], sT2)
    a.I('s_add_u32', c.sHo[1], c.sHo[0], 1024)
    a.I('v_lshlrev_b32', c.vUo, 4, vL)
    c.sel = Sg(2)
    a.I('s_mov_b32', c.sel[0], 0x05040100); a.I('s_mov_b32', c.sel[1], 0x07060302)
    c.Y = Y = V(16)
    for r in range(2):
        for t in range(2):
            for h in range(2):
                x = c.Xp[4 * r + 2 * t + h]
                a.I('v_lshlrev_b32', Y[8 * r + 4 * t + 2 * h], 16, x); a.I('v_and_b32', Y[8 * r + 4 * t + 2 * h + 1], 0xffff0000, x)

def c1_main(a, c, V, Sg, stmods='', defer=False):
    t0, t1 = c.t0, c.t1
    Q = V(8); A = V(8); D = V(32); Y = c.Y; tr = c.tmp8[0:4]; ti = c.tmp8[4:8]
    c.ST(1)
    a.wait(c.hq0, c.hq1)
    c.ST(2)
    a.barrier()
    c.ST(3)
    if hasattr(c, 'hook_after_q'): c.hook_after_q()
    for i in range(4): dsr(a, Q[2 * i:2 * i + 2], c.RA[i])
    for r in range(2):
        Ar = A[4 * r:4 * r + 4]
        a.I('v_perm_b32', Ar[0], Q[2], Q[0], c.sel[r]); a.I('v_perm_b32', Ar[1], Q[6], Q[4], c.sel[r])
        a.I('v_perm_b32', Ar[2], Q[3], Q[1], c.sel[r]); a.I('v_perm_b32', Ar[3], Q[7], Q[5], c.sel[r])
        o = 16 * r
        a.I(MF16, D[o:o + 4], Ar, c.Br, 0); a.I(MF16, D[o + 4:o + 8], Ar, c.Bi, 0)
        a.I(MF16, D[o + 8:o + 12], Ar, c.Bsr, 0); a.I(MF16, D[o + 12:o + 16], Ar, c.Bsi, 0)
    for r in range(2):
        o = 16 * r
        for e in (1, 2, 3, 0):
            if e == 0:
                a.I('v_cndmask_b32', D[o], D[o], D[o + 8], c.sQ0); a.I('v_cndmask_b32', D[o + 4], D[o + 4], D[o + 12], c.sQ0)
            cmul(a, tr[e], ti[e], D[o + e], D[o + 4 + e], c.TC[e], c.TS[e], True)
        Ar = A[4 * r:4 * r + 4]
        cvt(a, Ar[0], tr[0], tr[1]); cvt(a, Ar[1], tr[2], tr[3]); cvt(a, Ar[2], ti[0], ti[1]); cvt(a, Ar[3], ti[2], ti[3])
        for t in range(2):
            y = Y[8 * r + 4 * t:8 * r + 4 * t + 4]
            a.I(MF16, y, Ar, c.G[4 * t:4 * t + 4], y)
    if hasattr(c, 'hook_mid'): c.hook_mid()
    Hp = c.Xp
    ones = Q[0]; S0, Q0, S1, Q1 = Q[1], Q[2], Q[3], Q[4]
    a.I('v_mov_b32', ones, 0x3f803f80)
    for r in range(2):
        for t in range(2):
            for h in range(2): cvt(a, Hp[4 * r + 2 * t + h], Y[8 * r + 4 * t + 2 * h], Y[8 * r + 4 * t + 2 * h + 1])
            if not defer: c.hst = bstore(a, Hp[4 * r + 2 * t:4 * r + 2 * t + 2], c.vXo, c.srdH, c.sHo[r], 512 * t, mods=stmods)
    for e in range(4):
        for r, (S_, Q_) in enumerate(((S0, Q0), (S1, Q1))):
            x = Hp[4 * r + e]
            a.I('v_dot2_f32_bf16', S_, x, ones, S_ if e else 0); a.I('v_dot2_f32_bf16', Q_, x, x, Q_ if e else 0)
    a.I('s_nop', 2)
    a.I('v_permlane32_swap_b32', S0, S1); a.I('v_permlane32_swap_b32', Q0, Q1)
    a.I('v_add_f32', S0, S0, S1); a.I('v_add_f32', Q0, Q0, Q1)
    a.I('v_permlane16_swap_b32', S0, Q0)
    a.I('v_add_f32', S0, S0, Q0)
    for k in (1, 2, 4, 8):
        a.I('v_add_f32_dpp', S0, S0, S0, mods='row_ror:%d row_mask:0xf bank_mask:0xf' % k)
    a.I('v_mov_b32', Q0, S0)
    a.I('v_permlane16_swap_b32', S0, Q0)
    m1, v1, mb, r1, m2, r2 = S0, Q0, Q[5], Q[6], Q[7], S1
    a.I('v_mul_f32', m1, 1.0 / 512, m1); a.I('v_mul_f32', v1, 1.0 / 512, v1)
    a.I('v_fma_f32', v1, Neg(m1), m1, v1); a.I('v_max_f32', v1, 0, v1)
    round_bf16(a, mb, m1); round_bf16(a, r1, v1)
    a.I('v_add_f32', r1, 1e-5, r1); round_bf16(a, r1, r1)
    a.I('v_sqrt_f32', r1, r1); round_bf16(a, r1, r1); a.I('v_rcp_f32', r1, r1)
    a.I('v_sub_f32', m2, m1, mb); a.I('v_mul_f32', m2, m2, r1); round_bf16(a, m2, m2)
    a.I('v_mul_f32', v1, v1, r1); a.I('v_mul_f32', v1, v1, r1); round_bf16(a, r2, v1)
    a.I('v_add_f32', r2, 1e-5, r2); round_bf16(a, r2, r2)
    a.I('v_sqrt_f32', r2, r2); round_bf16(a, r2, r2); a.I('v_rcp_f32', r2, r2)
    a.I('v_fmac_f32', m2, mb, r1); a.I('v_mul_f32', m2, m2, r2)
    a.I('v_mul_f32', r1, r1, r2)
    sc = (r1, t0); sh = (m2, t1)
    a.I('v_mov_b32', t0, r1); a.I('v_mov_b32', t1, m2)
    a.I('v_permlane32_swap_b32', r1, t0); a.I('v_permlane32_swap_b32', m2, t1)
    for r in range(2):
        for e in range(8): a.I('v_fma_f32', Y[8 * r + e], Y[8 * r + e], sc[r], Neg(sh[r]))
        Ar = A[4 * r:4 * r + 4]
        for e in range(4): cvt(a, Ar[e], Y[8 * r + 2 * e], Y[8 * r + 2 * e + 1])
        dsw(a, c.UW[r], Ar)
    c.ST(4)
    a.wait_lg0()
    a.barrier()
    c.ST(5)
    for nn in range(2): dsr(a, D[4 * nn:4 * nn + 4], c.UR, 1024 * nn)
    if hasattr(c, 'hook_before_st'): c.hook_before_st()
    c.UD = D
    if defer: return
    for nn in range(2): c.ust = bstore(a, D[4 * nn:4 * nn + 4], c.vUo, c.srdU, c.sHo[nn], mods=stmods)

def gen_c1(a, L, opt):
    ST = Stamps(a, 2, opt)
    V = Alloc('v', 1, 255); Sg = Alloc('s', 26, 92)
    a.reset_state()
    c = ids(a, L, Sg, V, ST)
    c1_issue(a, c, V, Sg, qs=0)
    c1_consts(a, c, V, Sg, qs=0, us=8192)
    c1_main(a, c, V, Sg)
    ST(6)
    ST.flush(c.sW, 7)
    a.label(L + '_end')
    a.I('s_endpgm')
    return dict(name=L, grid=256, block=256, lds=16384, nv=V.p, na=0, ns=102)

GC1 = -2.0 * math.sqrt(2.0 / math.pi) * math.log2(math.e)
GC2 = GC1 * 0.044715

def gelu_ops(a, acc, tmp, out, sC2, vC1):
    ops = []
    nt = len(tmp) // 2
    for base in range(0, 16, nt):
        idx = list(range(base, base + nt))
        t = lambda e: tmp[e % nt]
        u = lambda e: tmp[nt + e % nt]
        for e in idx: ops.append(lambda e=e: a.I('v_mul_f32', t(e), acc[e], acc[e]))
        for e in idx: ops.append(lambda e=e: a.I('v_fma_f32', t(e), t(e), sC2, vC1))
        for e in idx: ops.append(lambda e=e: a.I('v_mul_f32', t(e), t(e), acc[e]))
        for e in idx: ops.append(lambda e=e: a.I('v_exp_f32', t(e), t(e)))
        for e in idx: ops.append(lambda e=e: a.I('v_add_f32', t(e), 1.0, t(e)))
        for e in idx: ops.append(lambda e=e: a.I('v_rcp_f32', t(e), t(e)))
        for e in idx: ops.append(lambda e=e: a.I('v_mul_f32', t(e), t(e), acc[e]))
        for e in idx[::2]: ops.append(lambda e=e: cvt(a, out[e // 2], t(e), t(e + 1)))
    return ops

def gen_g1(a, L, opt):
    ST = Stamps(a, 3, opt)
    V = Alloc('v', 1, 255); Sg = Alloc('s', 26, 92); AA = Alloc('a', 0, 256)
    a.reset_state()
    c = ids(a, L, Sg, V, ST)
    sW, sR, sM, sT, sT2, vL, t0, t1 = c.sW, c.sR, c.sM, c.sT, c.sT2, c.vL, c.t0, c.t1
    a.I('s_cmp_ge_u32', sM, 14)
    a.I('s_cbranch_scc1', L + '_end')
    srdU = Sg(4, 4); srdW = Sg(4, 4); srdB = Sg(4, 4); srdH1 = Sg(4, 4)
    vUo = V(); vL16 = V(); vL16b = V(); vBo = V(); vC1 = V(); sC2 = Sg()
    sUo = Sg(2); sWo = Sg(); sHo = Sg()
    TK = V(128, 4); ACC = V(64, 4); TMP = V(32, 4)
    WF = AA(32)
    a.I('v_lshlrev_b32', vL16, 4, vL)
    a.I('v_bfe_u32', t0, vL, 3, 2); a.I('v_lshlrev_b32', vUo, 13, t0)
    a.I('v_lshrrev_b32', t0, 5, vL); a.I('v_lshl_add_u32', vUo, t0, 7, vUo)
    a.I('v_lshlrev_b32', vBo, 4, t0)
    a.I('v_and_b32', t0, 7, vL); a.I('v_lshl_add_u32', vUo, t0, 4, vUo)
    a.I('s_lshl_b32', sT, sR, 2); a.I('s_add_u32', sT, sT, sW)
    a.I('s_lshl_b32', sUo[0], sT, 15); a.I('s_add_u32', sUo[1], sUo[0], 4096)
    a.I('s_mul_i32', sHo, sT, 4 * 28 * 1024); a.I('s_lshl_b32', sT2, sM, 11); a.I('s_add_u32', sHo, sHo, sT2)
    srd(a, srdU, P_WS, U2, U2_SZ); srd(a, srdW, P_WS, W1S, W1S_SZ); srd(a, srdB, P_B1, 0, 3584); srd(a, srdH1, P_WS, H1, H1_SZ)
    a.I('s_lshl_b32', sT, sM, 8)
    for q in range(8): bload(a, TMP[4 * q:4 * q + 4], vBo, srdB, sT, 32 * q)
    a.I('s_lshl_b32', sWo, sM, 17); a.I('s_lshl_b32', sT, sW, 11); a.I('s_add_u32', sWo, sWo, sT)
    sM0 = Sg(); sSo = Sg()
    def wdma(T, q):
        hs = []
        for e in range(2):
            off = (T * 32 + 8 * q + e) * 1024
            a.I('s_add_u32', M0, sT, off); a.I('s_add_u32', sSo, sWo, off)
            hs.append(dma16(a, vL16, srdW, sSo))
        return hs
    chunk = []
    for q in range(4):
        hs = wdma(0, q) + wdma(1, q)
        for f in range(8 * q, 8 * q + 8):
            hs.append(bload(a, TK[4 * f:4 * f + 4], vUo, srdU, sUo[f // 16], 256 * (f % 16)))
        chunk.append(hs)
    a.I('v_add_u32', vL16b, 65536, vL16)
    a.I('v_mov_b32', vC1, GC1); a.I('s_mov_b32', sC2, GC2)
    for TT in range(2):
        for j in range(4):
            for i in range(4):
                x = TMP[4 * (4 * TT + j) + i]
                a.I('v_lshlrev_b32', ACC[16 * (2 * TT) + 4 * j + i], 16, x)
                a.I('v_and_b32', ACC[16 * (2 * TT + 1) + 4 * j + i], 0xffff0000, x)
    late = []
    seq = [(T, f) for f in range(32) for T in (0, 1)] + [(2, f) for f in range(32)] + [(3, f) for f in range(32)]
    NB = 8
    def rd(n):
        T, f = seq[n]
        dsr(a, WF[4 * (n % NB):4 * (n % NB) + 4], vL16 if T < 2 else vL16b, ((T % 2) * 32 + f) * 1024)
    fill = []
    OUT = TMP[16:24]
    hoff = [0]
    def gelu_tile(T):
        ops = gelu_ops(a, ACC[16 * T:16 * T + 16], TMP[0:16], OUT, sC2, vC1)
        def st(u):
            a.I('s_add_u32', sSo, sHo, (T * 28 + u) * 1024)
            bstore(a, OUT[4 * u:4 * u + 4], vL16, srdH1, sSo)
        res = []
        for k, o in enumerate(ops):
            res.append(o)
        half = len(ops) // 2
        res.insert(half, lambda: st(0))
        res.append(lambda: st(1))
        return res
    nread = 0
    for n, (T, f) in enumerate(seq):
        if n < 64 and n % 16 == 0:
            q = n // 16
            if q == 0: ST(1)
            a.wait(*chunk[q])
            a.barrier()
            ST(2 + q)
            if q == 0:
                for TT in (2, 3):
                    for qq in range(4): late += wdma(TT, qq)
            lim = n + 16
        if n == 64:
            ST(6)
            a.wait(*late); a.barrier(); lim = 128
            ST(7)
            fill = gelu_tile(0) + gelu_tile(1)
        if n == 96:
            fill += gelu_tile(2)
        while nread < min(n + NB - 1, lim):
            rd(nread); nread += 1
        if nread <= n: rd(nread); nread += 1
        d = ACC[16 * T:16 * T + 16]
        a.I(MF32, d, WF[4 * (n % NB):4 * (n % NB) + 4], TK[4 * f:4 * f + 4], d)
        k = 0
        while fill and k < 5:
            fill.pop(0)(); k += 1
    ST(8)
    fill += gelu_tile(3)
    for o in fill: o()
    ST.flush(sW, 9)
    a.label(L + '_end')
    a.I('s_endpgm')
    return dict(name=L, grid=256, block=256, lds=131072, nv=V.p, na=AA.p, ns=102)

def gen_g2(a, L, opt):
    ST = Stamps(a, 4, opt)
    V = Alloc('v', 1, 255); Sg = Alloc('s', 26, 92)
    a.reset_state()
    c = ids(a, L, Sg, V, ST)
    sW, sR, sM, sT, sT2, vL, t0, t1 = c.sW, c.sR, c.sM, c.sT, c.sT2, c.vL, c.t0, c.t1
    srdH1 = Sg(4, 4); srdW = Sg(4, 4); srdH = Sg(4, 4); srdB = Sg(4, 4); srdO = Sg(4, 4)
    vL16 = V(); vWo = V(); vHo = V(); vBo = V(); vOo = V(); vWr = V(3); vRd = V()
    sTk = Sg(); sA0 = Sg(); sA1 = Sg(); sWo = Sg(); sSo = Sg(); sCol = Sg(); sHo = Sg(); sOo = Sg()
    ACC = V(64, 4)
    NS = 8
    BUF = V(16 * NS, 4)
    HB = V(16, 4)
    a.I('v_lshlrev_b32', vL16, 4, vL)
    a.I('s_and_b32', sT, sW, 1); a.I('s_lshl_b32', sT, sT, 8); a.I('v_xor_b32', vWo, sT, vL16)
    a.I('s_lshl_b32', sTk, sR, 2); a.I('s_lshr_b32', sT, sM, 3); a.I('s_lshl_b32', sT, sT, 1); a.I('s_add_u32', sTk, sTk, sT)
    a.I('s_lshr_b32', sT, sW, 1); a.I('s_add_u32', sTk, sTk, sT)
    a.I('s_mul_i32', sT2, sW, 7 * 1024)
    a.I('s_mul_i32', sA0, sTk, 4 * 28 * 1024); a.I('s_add_u32', sA0, sA0, sT2)
    a.I('s_xor_b32', sT, sTk, 1); a.I('s_mul_i32', sA1, sT, 4 * 28 * 1024); a.I('s_add_u32', sA1, sA1, sT2)
    a.I('s_and_b32', sT, sM, 7); a.I('s_lshl_b32', sT, sT, 2); a.I('s_add_u32', sT, sT, sW); a.I('s_mul_i32', sWo, sT, 28 * 2048)
    srd(a, srdH1, P_WS, H1, H1_SZ); srd(a, srdW, P_WS, W2S, W2S_SZ)
    srd(a, srdH, P_WS, HH, HH_SZ); srd(a, srdB, P_B2, 0, 1024); srd(a, srdO, P_OUT, 0, 2048 * 1024)
    a.I('s_and_b32', sCol, sM, 7); a.I('s_lshl_b32', sCol, sCol, 7); a.I('s_and_b32', sT, sW, 1); a.I('s_lshl_b32', sT, sT, 6); a.I('s_add_u32', sCol, sCol, sT)
    a.I('v_lshrrev_b32', t0, 5, vL); a.I('v_lshlrev_b32', vBo, 4, t0)
    a.I('v_and_b32', t0, 31, vL); a.I('v_lshl_add_u32', vHo, t0, 10, vBo)
    a.I('s_lshl_b32', sHo, sTk, 15); a.I('s_add_u32', sHo, sHo, sCol)
    HP = BUF[16 * (NS - 1):16 * NS]
    for jj in range(2):
        bload(a, HP[4 * jj:4 * jj + 4], vHo, srdH, sHo, 32 * jj)
        bload(a, HP[8 + 4 * jj:12 + 4 * jj], vBo, srdB, sCol, 32 * jj)
    steps = [(T, zz) for T in range(4) for zz in range(7)]
    sAo = Sg(2); sWs = Sg()
    def ld(n):
        T, zz = steps[n]; b = BUF[16 * (n % NS):16 * (n % NS) + 16]
        if zz % 4 == 0:
            a.I('s_add_u32', sAo[0], sA0, (T * 28 + zz) * 1024); a.I('s_add_u32', sAo[1], sA1, (T * 28 + zz) * 1024)
        if n % 2 == 0: a.I('s_add_u32', sWs, sWo, n * 2048)
        bload(a, b[0:4], vWo, srdW, sWs, (n % 2) * 2048); bload(a, b[8:12], vL16, srdH1, sAo[0], (zz % 4) * 1024)
        bload(a, b[4:8], vWo, srdW, sWs, (n % 2) * 2048 + 1024); bload(a, b[12:16], vL16, srdH1, sAo[1], (zz % 4) * 1024)
    for n in range(NS - 1): ld(n)
    a.I('v_bfe_u32', t0, vL, 4, 1); a.I('v_lshl_add_u32', vOo, t0, 19, vBo)
    a.I('v_and_b32', t0, 15, vL); a.I('v_lshl_add_u32', vOo, t0, 15, vOo)
    a.I('s_and_b32', sOo, sTk, 1); a.I('s_lshl_b32', sOo, sOo, 20); a.I('s_lshr_b32', sT, sTk, 1); a.I('s_lshl_b32', sT, sT, 10)
    a.I('s_add_u32', sOo, sOo, sT); a.I('s_add_u32', sOo, sOo, sCol)
    for x in range(1, 4):
        a.I('s_xor_b32', sT, sW, x); a.I('s_mul_i32', sT, sT, 3 * 4096); a.I('s_add_u32', sT, sT, (x - 1) * 4096)
        a.I('v_add_u32', vWr[x - 1], sT, vL16)
    a.I('s_mul_i32', sT, sW, 3 * 4096); a.I('v_add_u32', vRd, sT, vL16)
    for jj in range(2):
        for i in range(4):
            h = HP[4 * jj + i]; b = HP[8 + 4 * jj + i]
            a.I('v_lshlrev_b32', HB[4 * jj + i], 16, h); a.I('v_lshlrev_b32', t0, 16, b); a.I('v_add_f32', HB[4 * jj + i], HB[4 * jj + i], t0)
            a.I('v_and_b32', HB[8 + 4 * jj + i], 0xffff0000, h); a.I('v_and_b32', t0, 0xffff0000, b); a.I('v_add_f32', HB[8 + 4 * jj + i], HB[8 + 4 * jj + i], t0)
    ST(1)
    for n in range(28):
        if n in (1, 7, 14, 21): ST({1: 2, 7: 3, 14: 4, 21: 5}[n])
        if n + NS - 1 < 28: ld(n + NS - 1)
        b = BUF[16 * (n % NS):16 * (n % NS) + 16]
        for tk in range(2):
            for cp in range(2):
                d = ACC[32 * tk + 16 * cp:32 * tk + 16 * cp + 16]
                a.I(MF32, d, b[4 * cp:4 * cp + 4], b[8 + 4 * tk:12 + 4 * tk], d if n else 0)
    ST(6)
    for x in range(1, 4):
        tk = x >> 1; h = x & 1
        for cp in range(2):
            for q in range(2):
                o = 32 * tk + 16 * cp + 8 * h + 4 * q
                dsw(a, vWr[x - 1], ACC[o:o + 4], (2 * cp + q) * 1024)
    for cp in range(2):
        for e in range(8): a.I('v_add_f32', ACC[16 * cp + e], ACC[16 * cp + e], HB[8 * cp + e])
    a.wait_lg0()
    a.barrier()
    ST(7)
    for x in range(3):
        for k in range(4): dsr(a, BUF[16 * x + 4 * k:16 * x + 4 * k + 4], vRd, x * 4096 + k * 1024)
    for x in range(3):
        for cp in range(2):
            for e in range(8): a.I('v_add_f32', ACC[16 * cp + e], ACC[16 * cp + e], BUF[16 * x + 8 * cp + e])
    for jj in range(2):
        for i in range(4): cvt(a, HB[4 * jj + i], ACC[4 * jj + i], ACC[16 + 4 * jj + i])
        bstore(a, HB[4 * jj:4 * jj + 4], vOo, srdO, sOo, 32 * jj)
    ST(8)
    ST.flush(sW, 9)
    a.label(L + '_end')
    a.I('s_endpgm')
    return dict(name=L, grid=256, block=256, lds=49152, nv=V.p, na=0, ns=102)

def c1_stores(a, c, stmods):
    for nn in range(2): c.ust = bstore(a, c.UD[4 * nn:4 * nn + 4], c.vUo, c.srdU, c.sHo[nn], mods=stmods)
    for r in range(2):
        for t in range(2): c.ust = bstore(a, c.Xp[4 * r + 2 * t:4 * r + 2 * t + 2], c.vXo, c.srdH, c.sHo[r], 512 * t, mods=stmods)
```

```python
from common import *
from k3 import ids, c1_issue, c1_consts, c1_main, gelu_ops, GC1, GC2, Ctx

CA = 0
CB = 64 * 128
SPIN = 1 << 16

def spoll(a, L, tag, addrs, word, target, tmp, cnt):
    a.wait_lg0()
    a.I('s_mov_b32', cnt, SPIN)
    a.label(L + '_poll' + tag)
    for k, ad in enumerate(addrs): a.I('s_load_dword', tmp[k], ad, word, mods='glc')
    a.wait_lg0()
    if len(addrs) == 2: a.I('s_min_u32', tmp[0], tmp[0], tmp[1])
    a.I('s_cmp_ge_u32', tmp[0], target)
    a.I('s_cbranch_scc1', L + '_done' + tag)
    a.I('s_sub_u32', cnt, cnt, 1)
    a.I('s_cmp_lg_u32', cnt, 0)
    a.I('s_cbranch_scc1', L + '_poll' + tag)
    a.label(L + '_done' + tag)

def gen_k3f(a, L, opt):
    ST = Stamps(a, 2, opt, vreg=23)
    Vp = Alloc('v', 1, 23); Sg = Alloc('s', 26, 92)
    a.reset_state()
    c = ids(a, L, Sg, Vp, ST)
    ST.map = {1: None, 2: 1, 3: None, 4: None, 5: 2}
    sW, sR, sM, sT, sT2, vL, t0, t1 = c.sW, c.sR, c.sM, c.sT, c.sT2, c.vL, c.t0, c.t1
    ACC = v(24, 64); TK = v(88, 128); TMP = v(216, 40)
    W2 = R('a', 0, 224); WF = R('a', 224, 32)
    V = Alloc('v', 88, 256)
    n_early = int(opt.get('w2_early', 0))
    c1_issue(a, c, V, Sg, qs=0x20000)
    vL16 = Vp(); vSig = Vp(); vOne = Vp(); vBo = Vp()
    srdA = Sg(4, 4); srdB = Sg(4, 4)
    a.I('v_lshlrev_b32', vL16, 4, vL)
    BI = v(24, 64)[32:64]
    a.I('v_lshrrev_b32', t0, 5, vL); a.I('v_lshlrev_b32', vBo, 3, t0)
    srd(a, srdB, P_B1, 0, 3584)
    a.I('s_lshl_b32', sT, sM, 8)
    for T in range(4):
        for j in range(4): bload(a, BI[8 * T + 2 * j:8 * T + 2 * j + 2], vBo, srdB, sT, 64 * T + 16 * j)
    vW1 = Vp(); sSo = Sg()
    a.I('v_lshrrev_b32', t0, 4, vL); a.I('v_mul_u32_u24', vW1, 3584, t0)
    a.I('v_lshlrev_b32', t0, 2, t0); a.I('v_and_b32', t1, 15, vL); a.I('v_xor_b32', t0, t0, t1); a.I('v_lshl_add_u32', vW1, t0, 4, vW1)
    srd(a, srdA, P_W1, 0, 512 * 3584)
    a.I('s_cmp_ge_u32', sM, 14)
    a.I('s_cselect_b32', srdA[2], 0, 512 * 3584)
    sM0 = Sg(); hdma = []
    a.I('s_mul_i32', sSo, sW, 14336); a.I('s_lshl_b32', sT, sM, 8); a.I('s_add_u32', sSo, sSo, sT)
    a.I('s_lshl_b32', sM0, sW, 10)
    def w1dma(i):
        a.I('s_add_u32', M0, sM0, 4096 * i)
        hdma.append(dma16(a, vW1, srdA, sSo))
        if i < 31: a.I('s_add_u32', sSo, sSo, 4 * 14336)
    a.bg = [lambda i=i: w1dma(i) for i in range(32)]
    a.bg_every = int(opt.get('dma_every', 12))
    c1_consts(a, c, V, Sg, qs=0x20000, us=0x22000)
    for T in (0, 1):
        for e in range(8):
            x = BI[8 * T + e]
            a.I('v_lshlrev_b32', ACC[16 * T + 2 * e], 16, x); a.I('v_and_b32', ACC[16 * T + 2 * e + 1], 0xffff0000, x)
    for e in range(8):
        x = BI[16 + e]
        a.I('v_lshlrev_b32', ACC[32 + 2 * e], 16, x); a.I('v_and_b32', ACC[32 + 2 * e + 1], 0xffff0000, x)
    for e in range(8):
        x = BI[24 + e]
        a.I('v_lshlrev_b32', ACC[48 + 2 * e], 16, x)
        a.I('v_and_b32', ACC[48 + 2 * e + 1], 0xffff0000, x)
    a.I('v_mov_b32', vOne, 1)
    a.I('v_cmp_eq_u32', VCC, 0, vL); a.I('v_mov_b32', t0, 0x10000000); a.I('v_cndmask_b32', vSig, t0, 0, VCC)
    c1_main(a, c, V, Sg, stmods='sc1')
    ST.map = None
    a.bg_flush()
    srdC = Sg(4, 4); sCa = Sg(2); sCb0 = Sg(2); sCb1 = Sg(2); sPt = s(22, 2); sPc = s(11)
    srd(a, srdC, P_WS, CNT, CNT_SZ)
    srdW2 = c.srdX; vWo = Vp(); sWo = Sg()
    srd(a, srdW2, P_WS, W2S, W2S_SZ)
    a.I('s_and_b32', sT, sW, 1); a.I('s_lshl_b32', sT, sT, 8); a.I('v_xor_b32', vWo, sT, vL16)
    a.I('s_and_b32', sT, sM, 7); a.I('s_lshl_b32', sT, sT, 2); a.I('s_add_u32', sT, sT, sW); a.I('s_mul_i32', sWo, sT, 28 * 2048)
    nw2 = [0]
    def w2load():
        n = nw2[0]; nw2[0] += 1
        if n % 4 == 0 and n: a.I('s_add_u32', sWo, sWo, 4096)
        return bload(a, W2[4 * n:4 * n + 4], vWo, srdW2, sWo, (n % 4) * 1024)
    ust = c.ust
    for _ in range(n_early): w2load()
    a.wait(ust)
    a.barrier()
    a.I('s_cmp_lg_u32', sW, 0)
    a.I('s_cbranch_scc1', L + '_nosig')
    a.begin_cond()
    a.I('s_lshr_b32', sT, sM, 2); a.I('s_lshl_b32', sT2, sR, 2); a.I('s_add_u32', sT, sT, sT2); a.I('s_lshl_b32', sT, sT, 7)
    a.I('buffer_atomic_add', vOne, vSig, srdC, sT, mods='offen sc1')
    a.end_cond()
    a.label(L + '_nosig')
    ST(3)
    sTk = Sg(); sA0 = Sg(); sA1 = Sg(); sCol = Sg(); sHo = Sg(); sOo = Sg()
    srdH1 = c.srdQ
    srd(a, srdH1, P_WS, H1, H1_SZ)
    a.I('s_lshl_b32', sTk, sR, 2); a.I('s_lshr_b32', sT, sM, 3); a.I('s_lshl_b32', sT, sT, 1); a.I('s_add_u32', sTk, sTk, sT)
    a.I('s_lshr_b32', sT, sW, 1); a.I('s_add_u32', sTk, sTk, sT)
    a.I('s_mul_i32', sT2, sW, 7 * 1024)
    a.I('s_mul_i32', sA0, sTk, 4 * 28 * 1024); a.I('s_add_u32', sA0, sA0, sT2)
    a.I('s_xor_b32', sT, sTk, 1); a.I('s_mul_i32', sA1, sT, 4 * 28 * 1024); a.I('s_add_u32', sA1, sA1, sT2)
    a.I('s_lshl_b32', sT2, sTk, 7); a.I('s_add_u32', sT2, sT2, CB)
    a.I('s_add_u32', sCb0[0], srdC[0], sT2); a.I('s_addc_u32', sCb0[1], srdC[1], 0)
    a.I('s_xor_b32', sT2, sT2, 128)
    a.I('s_add_u32', sCb1[0], srdC[0], sT2); a.I('s_addc_u32', sCb1[1], srdC[1], 0)
    a.I('s_and_b32', sCol, sM, 7); a.I('s_lshl_b32', sCol, sCol, 7); a.I('s_and_b32', sT, sW, 1); a.I('s_lshl_b32', sT, sT, 6); a.I('s_add_u32', sCol, sCol, sT)
    a.I('s_cmp_ge_u32', sM, 14)
    a.I('s_cbranch_scc1', L + '_nog1')
    vUo = Vp(); vC1 = Vp(); TA = Vp(8); sC2 = s(10); sUo = s(6, 2); sH1o = s(8); sTt = s(9)
    a.I('s_lshl_b32', sTt, sR, 2); a.I('s_add_u32', sTt, sTt, sW)
    a.I('s_lshl_b32', sT, sTt, 7)
    a.I('s_add_u32', sCa[0], srdC[0], sT); a.I('s_addc_u32', sCa[1], srdC[1], 0)
    a.I('v_bfe_u32', t0, vL, 3, 2); a.I('v_lshlrev_b32', vUo, 13, t0)
    a.I('v_lshrrev_b32', t0, 5, vL); a.I('v_lshl_add_u32', vUo, t0, 7, vUo)
    a.I('v_and_b32', t0, 7, vL); a.I('v_lshl_add_u32', vUo, t0, 4, vUo)
    a.I('s_lshl_b32', sUo[0], sTt, 15); a.I('s_add_u32', sUo[1], sUo[0], 4096)
    a.I('s_mul_i32', sH1o, sTt, 4 * 28 * 1024); a.I('s_lshl_b32', sT2, sM, 11); a.I('s_add_u32', sH1o, sH1o, sT2)
    a.I('s_lshl_b32', sTt, sTt, 7); a.I('s_add_u32', sTt, sTt, CB)
    a.I('v_bfe_u32', t0, vL, 2, 2)
    a.I('v_lshrrev_b32', t1, 5, vL); a.I('v_lshl_add_u32', t1, t1, 4, t0); a.I('v_lshlrev_b32', TA[0], 8, t1)
    a.I('v_and_b32', t1, 3, vL); a.I('v_lshl_add_u32', TA[0], t1, 3, TA[0])
    a.I('v_bfe_u32', t1, vL, 4, 1); a.I('v_lshl_add_u32', TA[0], t1, 5, TA[0])
    a.I('v_lshlrev_b32', t0, 6, t0)
    for T in (3, 2, 1, 0):
        a.I('v_xor_b32', t1, 64 * T, t0); a.I('v_add_u32', TA[2 * T], t1, TA[0])
        a.I('v_add_u32', TA[2 * T + 1], 65536, TA[2 * T])
    a.I('v_mov_b32', vC1, GC1); a.I('s_mov_b32', sC2, GC2)
    if not hdma[-1].done:
        a.wait(hdma[-1]); a.barrier()
    spoll(a, L, 'a', [sCa], 0, 4, sPt, sPc)
    ST(4)
    for f in range(32): bload(a, TK[4 * f:4 * f + 4], vUo, c.srdU, sUo[f // 16], 256 * (f % 16), 'sc1')
    seq = [(T, f) for f in range(32) for T in (0, 1)] + [(2, f) for f in range(32)] + [(3, f) for f in range(32)]
    NB = 8
    def rd(n):
        T, f = seq[n]; b = WF[4 * (n % NB):4 * (n % NB) + 4]; off = (32 * (f % 8) + 4 * (f // 8)) * 256
        for h in range(2): a.I('ds_read_b64_tr_b16', b[2 * h:2 * h + 2], TA[2 * T + h], mods='offset:%d' % off)
    OUT = TMP[16:24]
    lastst = {}
    def signal(T):
        a.wait(lastst[T])
        a.I('buffer_atomic_add', vOne, vSig, srdC, sTt, mods='offen offset:%d sc1' % (4 * T))
    def gelu_tile(T):
        ops = gelu_ops(a, ACC[16 * T:16 * T + 16], TMP[0:16], OUT, sC2, vC1)
        def st(u):
            a.I('s_add_u32', sSo, sH1o, (T * 28 + u) * 1024)
            lastst[T] = bstore(a, OUT[4 * u:4 * u + 4], vL16, srdH1, sSo, 0, 'sc1')
        half = len(ops) // 2
        return ops[:half] + [lambda: st(0)] + ops[half:] + [lambda: st(1)]
    fill = []; nread = 0
    per = int(opt.get('fill', 5)); sd = int(opt.get('sigdelay', 100))
    def with_signals(lst):
        out = list(lst)
        for T in (2, 1, 0):
            pos = 122 * (T + 1) + sd
            if pos <= len(lst): out.insert(pos, lambda T=T: signal(T))
        return out
    allops = gelu_tile(0) + gelu_tile(1) + gelu_tile(2) + gelu_tile(3)
    late_sig = [T for T in (0, 1, 2) if 122 * (T + 1) + sd > len(allops)]
    allops = with_signals(allops)
    done = 0; w2s = int(opt.get('w2_start', 1)); w2e = int(opt.get('w2_every', 2))
    for n, (T, f) in enumerate(seq):
        while nread < min(n + NB - 1, 128):
            rd(nread); nread += 1
        d = ACC[16 * T:16 * T + 16]
        a.I(MF32, d, WF[4 * (n % NB):4 * (n % NB) + 4], TK[4 * f:4 * f + 4], d)
        if n == 63: ST(5)
        if nw2[0] < 56 and n >= w2s and (n - w2s) % w2e == 0: w2load()
        if n >= 64:
            for k in range(per):
                if done >= 244 and n < 97: break
                if done >= 366: break
                allops[done](); done += 1
    while nw2[0] < 56: w2load()
    tail = allops[done:]
    BUF = v(88, 128); XB = v(240, 16)
    ACC2 = ACC
    steps = [(T, zz) for T in range(4) for zz in range(7)]
    sAo = s(16, 2)
    def ldstage(T):
        for zz in range(7):
            n = 7 * T + zz; b = BUF[8 * (n % 16):8 * (n % 16) + 8]
            if zz % 4 == 0:
                a.I('s_add_u32', sAo[0], sA0, (T * 28 + zz) * 1024); a.I('s_add_u32', sAo[1], sA1, (T * 28 + zz) * 1024)
            bload(a, b[0:4], vL16, srdH1, sAo[0], (zz % 4) * 1024, 'sc1'); bload(a, b[4:8], vL16, srdH1, sAo[1], (zz % 4) * 1024, 'sc1')
    def mm(T):
        for zz in range(7):
            n = 7 * T + zz; b = BUF[8 * (n % 16):8 * (n % 16) + 8]
            for tk in range(2):
                for cp in range(2):
                    d = ACC2[32 * tk + 16 * cp:32 * tk + 16 * cp + 16]
                    a.I(MF32, d, W2[8 * n + 4 * cp:8 * n + 4 * cp + 4], b[4 * tk:4 * tk + 4], d if n else 0)
    ST(6)
    spoll(a, L, 'b0', [sCb0, sCb1], 0, 14, sPt, sPc)
    ldstage(0)
    for o in tail: o()
    for T in late_sig: signal(T)
    spoll(a, L, 'b1', [sCb0, sCb1], 4, 14, sPt, sPc)
    ldstage(1)
    signal(3)
    a.I('s_branch', L + '_g2')
    saved = (list(a.vmq), dict(a.pend), list(a.lgq))
    a.reset_state()
    a.label(L + '_nog1')
    nw2[0] = n_early
    while nw2[0] < 56: w2load()
    spoll(a, L, 'c0', [sCb0, sCb1], 0, 14, sPt, sPc)
    ldstage(0)
    spoll(a, L, 'c1', [sCb0, sCb1], 4, 14, sPt, sPc)
    ldstage(1)
    a.wait_vm0()
    a.label(L + '_g2')
    a.vmq, a.pend, a.lgq = saved
    ST(7)
    srdH = c.srdH; srdB2 = srdB; srdO = srdA
    vHo = TA[0]; vOo = TA[1]; vWr = TA[2:5]; vRd = TA[5]; HP = TMP[0:16]; HB = XB
    srd(a, srdB2, P_B2, 0, 1024); srd(a, srdO, P_OUT, 0, 2048 * 1024)
    a.I('v_lshrrev_b32', t0, 5, vL); a.I('v_lshlrev_b32', vBo, 4, t0)
    a.I('v_and_b32', t0, 31, vL); a.I('v_lshl_add_u32', vHo, t0, 10, vBo)
    a.I('s_lshl_b32', sHo, sTk, 15); a.I('s_add_u32', sHo, sHo, sCol)
    for jj in range(2):
        bload(a, HP[4 * jj:4 * jj + 4], vHo, srdH, sHo, 32 * jj, 'sc1')
        bload(a, HP[8 + 4 * jj:12 + 4 * jj], vBo, srdB2, sCol, 32 * jj)
    a.I('v_bfe_u32', t0, vL, 4, 1); a.I('v_lshl_add_u32', vOo, t0, 19, vBo)
    a.I('v_and_b32', t0, 15, vL); a.I('v_lshl_add_u32', vOo, t0, 15, vOo)
    a.I('s_and_b32', sOo, sTk, 1); a.I('s_lshl_b32', sOo, sOo, 20); a.I('s_lshr_b32', sT, sTk, 1); a.I('s_lshl_b32', sT, sT, 10)
    a.I('s_add_u32', sOo, sOo, sT); a.I('s_add_u32', sOo, sOo, sCol)
    for x in range(1, 4):
        a.I('s_xor_b32', sT, sW, x); a.I('s_mul_i32', sT, sT, 3 * 4096); a.I('s_add_u32', sT, sT, (x - 1) * 4096)
        a.I('v_add_u32', vWr[x - 1], sT, vL16)
    a.I('s_mul_i32', sT, sW, 3 * 4096); a.I('v_add_u32', vRd, sT, vL16)
    mm(0)
    spoll(a, L, 'b2', [sCb0, sCb1], 8, 14, sPt, sPc)
    ldstage(2)
    ST(8)
    mm(1)
    spoll(a, L, 'b3', [sCb0, sCb1], 12, 14, sPt, sPc)
    ldstage(3)
    ST(9)
    for jj in range(2):
        for i in range(4):
            h = HP[4 * jj + i]; b = HP[8 + 4 * jj + i]
            a.I('v_lshlrev_b32', HB[4 * jj + i], 16, h); a.I('v_lshlrev_b32', t0, 16, b); a.I('v_add_f32', HB[4 * jj + i], HB[4 * jj + i], t0)
            a.I('v_and_b32', HB[8 + 4 * jj + i], 0xffff0000, h); a.I('v_and_b32', t0, 0xffff0000, b); a.I('v_add_f32', HB[8 + 4 * jj + i], HB[8 + 4 * jj + i], t0)
    mm(2)
    mm(3)
    ST(10)
    a.barrier()
    for x in range(1, 4):
        tk = x >> 1; h = x & 1
        for cp in range(2):
            for q in range(2):
                o = 32 * tk + 16 * cp + 8 * h + 4 * q
                dsw(a, vWr[x - 1], ACC2[o:o + 4], (2 * cp + q) * 1024)
    for cp in range(2):
        for e in range(8): a.I('v_add_f32', ACC2[16 * cp + e], ACC2[16 * cp + e], HB[8 * cp + e])
    a.wait_lg0()
    a.barrier()
    for x in range(3):
        for k in range(4): dsr(a, BUF[16 * x + 4 * k:16 * x + 4 * k + 4], vRd, x * 4096 + k * 1024)
    for x in range(3):
        for cp in range(2):
            for e in range(8): a.I('v_add_f32', ACC2[16 * cp + e], ACC2[16 * cp + e], BUF[16 * x + 8 * cp + e])
    for jj in range(2):
        for i in range(4): cvt(a, HB[4 * jj + i], ACC2[4 * jj + i], ACC2[16 + 4 * jj + i])
        bstore(a, HB[4 * jj:4 * jj + 4], vOo, srdO, sOo, 32 * jj)
    ST.flush(sW)
    a.label(L + '_end')
    a.I('s_endpgm')
    return dict(name=L, grid=256, block=256, lds=0x24000, nv=256, na=256, ns=102)
```

```python
from common import *
from k3 import ids, c1_issue, c1_consts_a, c1_consts_b, c1_main, gelu_ops, GC1, GC2, Ctx

CA = 0
CB = 256 * 128
SPIN = 1 << 16
SLEEP = [0]

def spoll(a, L, tag, base, soff, target, tmp, cnt):
    a.wait_lg0()
    a.I('s_mov_b32', cnt, SPIN)
    a.label(L + '_poll' + tag)
    a.I('s_load_dword', tmp, base, soff, mods='glc')
    a.wait_lg0()
    a.I('s_cmp_ge_u32', tmp, target)
    a.I('s_cbranch_scc1', L + '_done' + tag)
    if SLEEP[0]: a.I('s_sleep', SLEEP[0])
    a.I('s_sub_u32', cnt, cnt, 1)
    a.I('s_cmp_lg_u32', cnt, 0)
    a.I('s_cbranch_scc1', L + '_poll' + tag)
    a.label(L + '_done' + tag)

def apoll_issue(a, base, soff, tmp):
    return a.I('s_load_dwordx4', tmp, base, soff, mods='glc')

def apoll_check(a, L, tag, base, soff, tmp, word, target, cnt):
    a.wait_lg0()
    a.I('s_cmp_ge_u32', tmp[word], target)
    a.I('s_cbranch_scc1', L + '_done' + tag)
    a.I('s_mov_b32', cnt, SPIN)
    a.label(L + '_poll' + tag)
    a.I('s_load_dwordx4', tmp, base, soff, mods='glc')
    a.wait_lg0()
    a.I('s_cmp_ge_u32', tmp[word], target)
    a.I('s_cbranch_scc1', L + '_done' + tag)
    a.I('s_sub_u32', cnt, cnt, 1)
    a.I('s_cmp_lg_u32', cnt, 0)
    a.I('s_cbranch_scc1', L + '_poll' + tag)
    a.label(L + '_done' + tag)

def gelu_pk_ops(a, acc, tmp, out, sC2x2, vC1x2):
    ops = []
    P = lambda r, e: r[2 * e:2 * e + 2]
    for e in range(8): ops.append(lambda e=e: a.I('v_pk_mul_f32', P(tmp, e), P(acc, e), P(acc, e)))
    for e in range(8): ops.append(lambda e=e: a.I('v_pk_fma_f32', P(tmp, e), P(tmp, e), sC2x2, vC1x2))
    for e in range(8): ops.append(lambda e=e: a.I('v_pk_mul_f32', P(tmp, e), P(tmp, e), P(acc, e)))
    for e in range(16): ops.append(lambda e=e: a.I('v_exp_f32', tmp[e], tmp[e]))
    for e in range(8): ops.append(lambda e=e: a.I('v_pk_add_f32', P(tmp, e), P(tmp, e), 1.0, mods='op_sel_hi:[1,0]'))
    for e in range(16): ops.append(lambda e=e: a.I('v_rcp_f32', tmp[e], tmp[e]))
    for e in range(8): ops.append(lambda e=e: a.I('v_pk_mul_f32', P(tmp, e), P(tmp, e), P(acc, e)))
    for e in range(8): ops.append(lambda e=e: cvt(a, out[e], tmp[2 * e], tmp[2 * e + 1]))
    return ops

def gen_k3g(a, L, opt):
    ST = Stamps(a, 2, opt, vreg=23)
    SLEEP[0] = int(opt.get('sleep', 0))
    det = opt.get('det', '')
    Vp = Alloc('v', 1, 23); Sg = Alloc('s', 26, 92)
    a.reset_state()
    c = ids(a, L, Sg, Vp, ST)
    ST.map = {1: None, 2: 1, 3: None, 4: None, 5: 2}
    sW, sR, sM, sT, sT2, vL, t0, t1 = c.sW, c.sR, c.sM, c.sT, c.sT2, c.vL, c.t0, c.t1
    ACC = v(24, 64); BIAS = v(240, 16); BR = v(24, 8); ACC2 = v(24, 64)
    W2V = v(88, 96); RING = v(184, 32); TMP = v(216, 40)
    W1 = R('a', 0, 128); W2A = R('a', 128, 128)
    W2 = lambda n: W2A[4 * n:4 * n + 4] if n < 32 else W2V[4 * (n - 32):4 * (n - 32) + 4]
    V = Alloc('v', 88, 240)
    c1_consts_a(a, c, V, Sg)
    c1_issue(a, c, V, Sg, qs=0x20000)
    vL16 = Vp(); vSig = Vp(); vSigA = Vp(); vOne = Vp(); vBo = Vp()
    srdA = Sg(4, 4); srdB = Sg(4, 4)
    a.I('v_lshlrev_b32', vL16, 4, vL)
    a.I('v_lshrrev_b32', t0, 5, vL); a.I('v_lshlrev_b32', vBo, 3, t0)
    srd(a, srdB, P_B1, 0, 3584)
    a.I('s_lshl_b32', sT, sM, 8); a.I('s_lshl_b32', sT2, sW, 6); a.I('s_add_u32', sT, sT, sT2)
    for j in range(4): bload(a, BR[2 * j:2 * j + 2], vBo, srdB, sT, 16 * j)
    vW1 = Vp(); sSo = Sg(); sM0 = Sg(); hdma = []
    a.I('v_lshrrev_b32', t0, 4, vL); a.I('v_mul_u32_u24', vW1, 3584, t0)
    a.I('v_lshlrev_b32', t0, 2, t0); a.I('v_and_b32', t1, 15, vL); a.I('v_xor_b32', t0, t0, t1); a.I('v_lshl_add_u32', vW1, t0, 4, vW1)
    srd(a, srdA, P_W1, 0, 512 * 3584)
    a.I('s_cmp_ge_u32', sM, 14)
    a.I('s_cselect_b32', srdA[2], 0, 512 * 3584)
    a.I('s_mul_i32', sSo, sW, 14336); a.I('s_lshl_b32', sT, sM, 8); a.I('s_add_u32', sSo, sSo, sT)
    a.I('s_lshl_b32', sM0, sW, 10)
    def w1dma(i):
        a.I('s_add_u32', M0, sM0, 4096 * i)
        hdma.append(dma16(a, vW1, srdA, sSo))
        if i < 31: a.I('s_add_u32', sSo, sSo, 4 * 14336)
    n0 = int(opt.get('dma0', 4))
    for i in range(n0): w1dma(i)
    c1_consts_b(a, c, V, Sg, 0x20000, 0x22000)
    for e in range(8):
        a.I('v_lshlrev_b32', BIAS[2 * e], 16, BR[e]); a.I('v_and_b32', BIAS[2 * e + 1], 0xffff0000, BR[e])
    a.I('v_mov_b32', vOne, 1)
    a.I('v_mov_b32', t0, 0x10000000)
    a.I('v_cmp_gt_u32', VCC, 16, vL); a.I('v_lshlrev_b32', t1, 7, vL); a.I('v_cndmask_b32', vSigA, t0, t1, VCC)
    a.I('v_cmp_gt_u32', VCC, 8, vL); a.I('v_lshlrev_b32', t1, 9, vL); a.I('v_cndmask_b32', vSig, t0, t1, VCC)
    srdC = Sg(4, 4); srdW2 = c.srdX; srdH1 = c.srdQ; vWo = Vp(); sWo = Sg(); sTh = Sg()
    sCnt = s(6, 2); sPt = s(22); sPc = s(23)
    srd(a, srdC, P_WS, CNT, CNT_SZ)
    a.I('s_mov_b32', sCnt[0], srdC[0]); a.I('s_mov_b32', sCnt[1], srdC[1])
    srd(a, srdW2, P_WS, W2S, W2S_SZ); srd(a, srdH1, P_WS, H1, H1_SZ)
    a.I('s_and_b32', sT, sW, 1); a.I('s_lshl_b32', sT, sT, 8); a.I('v_xor_b32', vWo, sT, vL16)
    a.I('s_lshr_b32', sTh, sM, 3)
    a.I('s_and_b32', sT, sM, 7); a.I('s_lshl_b32', sT, sT, 2); a.I('s_add_u32', sT, sT, sW); a.I('s_mul_i32', sWo, sT, 56 * 1024)
    sWg = s(8, 2)
    a.I('s_mul_i32', sT, sTh, 28 * 1024); a.I('s_add_u32', sWg[0], sWo, sT)
    a.I('s_xor_b32', sT, sTh, 1); a.I('s_mul_i32', sT, sT, 28 * 1024); a.I('s_add_u32', sWg[1], sWo, sT)
    nw2 = [0]
    def w2load():
        n = nw2[0]; nw2[0] += 1; k = n % 28
        if k % 4 == 0: a.I('s_add_u32', sWo, sWg[n // 28], k * 1024)
        return bload(a, W2(n), vWo, srdW2, sWo, (k % 4) * 1024)
    a.bg = [lambda i=i: w1dma(i) for i in range(n0, 32)]
    c.hook_after_q = lambda: setattr(a, 'bg_every', int(opt.get('dma_every', 12)))
    c.hook_before_st = lambda: setattr(a, 'bg_every', 0)
    c1_main(a, c, V, Sg, stmods='sc1')
    ST.map = None
    a.bg_flush()
    a.wait(c.ust)
    dma_done = hdma[-1].done
    a.barrier()
    a.I('s_cmp_lg_u32', sW, 0)
    a.I('s_cbranch_scc1', L + '_nosig')
    a.begin_cond()
    a.I('s_lshl_b32', sT, sR, 11)
    a.I('buffer_atomic_add', vOne, vSigA, srdC, sT, mods='offen sc1')
    a.end_cond()
    a.label(L + '_nosig')
    ST(3)
    sTk = Sg(); sA = Sg(2); sCb = Sg(); sCol = Sg(); sHo = Sg(); sOo = Sg(); sPv = s(12, 4)
    a.I('s_lshl_b32', sTk, sR, 2); a.I('s_lshl_b32', sT, sTh, 1); a.I('s_add_u32', sTk, sTk, sT)
    for g in range(2):
        if g: a.I('s_xor_b32', sT2, sTh, 1)
        p = sT2 if g else sTh
        a.I('s_lshl_b32', sT, sTk, 2); a.I('s_add_u32', sT, sT, sW); a.I('s_lshl_b32', sT, sT, 1); a.I('s_add_u32', sT, sT, p)
        a.I('s_mul_i32', sA[g], sT, 14 * 1024)
    a.I('s_lshl_b32', sCb, sR, 4); a.I('s_add_u32', sCb, sCb, sM); a.I('s_lshl_b32', sCb, sCb, 2); a.I('s_add_u32', sCb, sCb, sW)
    a.I('s_lshl_b32', sCb, sCb, 7); a.I('s_add_u32', sCb, sCb, CB)
    a.I('s_and_b32', sCol, sM, 7); a.I('s_lshl_b32', sCol, sCol, 7); a.I('s_and_b32', sT, sW, 1); a.I('s_lshl_b32', sT, sT, 6); a.I('s_add_u32', sCol, sCol, sT)
    nw2_branch = nw2[0]
    a.I('s_cmp_ge_u32', sM, 14)
    a.I('s_cbranch_scc1', L + '_nog1')
    vUo = Vp(); vC1 = Vp(2); TA = Vp(2); sC2 = s(10, 2); sPar = Sg(); sTile = Sg(4); sX = s(16); sY = s(17)
    a.I('v_bfe_u32', t0, vL, 2, 2)
    a.I('v_lshrrev_b32', t1, 5, vL); a.I('v_lshl_add_u32', t1, t1, 4, t0); a.I('v_lshlrev_b32', TA[0], 8, t1)
    a.I('v_and_b32', t1, 3, vL); a.I('v_lshl_add_u32', TA[0], t1, 3, TA[0])
    a.I('v_bfe_u32', t1, vL, 4, 1); a.I('v_lshl_add_u32', TA[0], t1, 5, TA[0])
    a.I('v_xor_b32', t0, sW, t0); a.I('v_lshl_add_u32', TA[0], t0, 6, TA[0]); a.I('v_add_u32', TA[1], 65536, TA[0])
    if not dma_done:
        a.wait(hdma[-1]); a.barrier()
    ne = int(opt.get('w2_early', 12)); ne0 = nw2[0]
    for f in range(32):
        off = (32 * (f % 8) + 4 * (f // 8)) * 256
        for h in range(2): a.I('ds_read_b64_tr_b16', W1[4 * f + 2 * h:4 * f + 2 * h + 2], TA[h], mods='offset:%d' % off)
        if nw2[0] - ne0 < ne and nw2[0] - ne0 < (f + 1) * ne // 32 + 1: w2load()
    while nw2[0] - ne0 < ne: w2load()
    a.I('v_bfe_u32', t0, vL, 3, 2); a.I('v_lshlrev_b32', vUo, 13, t0)
    a.I('v_lshrrev_b32', t0, 5, vL); a.I('v_lshl_add_u32', vUo, t0, 7, vUo)
    a.I('v_and_b32', t0, 7, vL); a.I('v_lshl_add_u32', vUo, t0, 4, vUo)
    a.I('s_and_b32', sPar, sM, 1)
    for sg in range(4):
        a.I('s_lshl_b32', sT, sPar, 1); a.I('s_xor_b32', sT, sT, 2 * (sg & 1) + (sg >> 1)); a.I('s_lshl_b32', sT2, sR, 2); a.I('s_add_u32', sTile[sg], sT, sT2)
    for e in range(2): a.I('v_mov_b32', vC1[e], GC1); a.I('s_mov_b32', sC2[e], GC2)
    vL16b = TA[1]
    a.wait_lg0()
    a.I('s_cmp_lg_u32', sW, 0)
    a.I('s_cbranch_scc1', L + '_nopoll')
    a.I('s_lshl_b32', sT, sR, 4); a.I('s_add_u32', sT, sT, sM); a.I('s_lshl_b32', sT, sT, 7)
    spoll(a, L, 'a', sCnt, sT, 16, sPt, sPc)
    a.label(L + '_nopoll')
    a.barrier()
    ST(4)
    a.I('v_add_u32', vL16b, 65536, vL16)
    hslot = {}
    def tokdma(sg, i):
        if i == 0:
            a.I('s_lshl_b32', sX, sTile[sg], 15); a.I('s_lshl_b32', sT, sW, 11); a.I('s_add_u32', sX, sX, sT)
            a.I('s_lshl_b32', sY, sW, 13); a.I('s_add_u32', sY, sY, sg * 32768)
        a.I('s_add_u32', M0, sY, 1024 * i)
        a.I('s_add_u32', sT, sX, 256 * i)
        hslot[sg] = dma16(a, vUo, c.srdU, sT, 'sc1')
    for sg in range(2):
        for i in range(8): tokdma(sg, i)
    sH1o = sSo; sSig = sM0; sQ = s(4)
    a.I('s_lshr_b32', sT, sM, 1); a.I('s_mul_i32', sT2, sPar, 7); a.I('s_add_u32', sT, sT, sT2); a.I('s_lshl_b32', sQ, sT, 11)
    a.I('s_mul_i32', sT, sW, 28 * 1024); a.I('s_add_u32', sQ, sQ, sT)
    sSg = sTile_sig = (sPar, sPt)
    a.I('s_lshl_b32', sT, sR, 4); a.I('s_lshl_b32', sT2, sPar, 3); a.I('s_add_u32', sT2, sT2, sT)
    a.I('s_lshl_b32', sT2, sT2, 2); a.I('s_add_u32', sT2, sT2, sW); a.I('s_lshl_b32', sT2, sT2, 7); a.I('s_add_u32', sPar, sT2, CB)
    a.I('s_xor_b32', sPt, sPar, 8 * 512)
    NB = 8
    def rd(n):
        sg, f = n // 32, n % 32
        dsr(a, RING[4 * (n % NB):4 * (n % NB) + 4], vL16 if sg < 2 else vL16b, (sg % 2) * 32768 + f * 1024)
    OUT = TMP[16:24]
    lastst = {}
    def signal(sg):
        a.wait(lastst[sg])
        a.I('buffer_atomic_add', vOne, vSig, srdC, sSg[sg & 1], mods='offen offset:%d sc1' % (4 * sg))
    def gelu_tile(sg, pk=False):
        acc = ACC[32 * (sg % 2):32 * (sg % 2) + 16]
        def st(u):
            if u == 0:
                a.I('s_mul_i32', sH1o, sTile[sg], 112 * 1024); a.I('s_add_u32', sH1o, sH1o, sQ)
            lastst[sg] = bstore(a, OUT[4 * u:4 * u + 4], vL16, srdH1, sH1o, 1024 * u, 'sc1')
        if pk:
            return gelu_pk_ops(a, acc, TMP[0:16], OUT, sC2, vC1) + [lambda: st(0), lambda: st(1)]
        ops = gelu_ops(a, acc, TMP[0:16], OUT, sC2[0], vC1[0])
        half = len(ops) // 2
        return ops[:half] + [lambda: st(0)] + ops[half:] + [lambda: st(1)]
    w2s = int(opt.get('w2_start', 48)); w2e = int(opt.get('w2_every', 2)); sigat = int(opt.get('sigat', 26))
    fill = []; nread = 0; lim = 0; nl0 = 0
    apf = int(opt.get('apf', 6)); l0f = int(opt.get('l0f', 17))
    sAo = sX
    def ldfrag(sg, k):
        n = (14 * sg + k) % 28
        if k % 4 == 0: a.I('s_add_u32', sAo, sA[sg % 2], (sg >> 1) * 112 * 1024 + k * 1024)
        bload(a, W1[4 * n:4 * n + 4], vL16, srdH1, sAo, (k % 4) * 1024, 'sc1')
    for n in range(128):
        sg, f = n // 32, n % 32
        if n == 0 or (f == 32 - NB and sg < 3):
            nx = 0 if n == 0 else sg + 1
            if det == 'g1' and n: ST(5 + 2 * nx - 1)
            a.wait(hslot[nx]); a.barrier(); lim = 32 * (nx + 1)
            if n == 0: ST(5)
            elif det == 'g1': ST(5 + 2 * nx)
        if f == 0 and sg > 0:
            assert not fill
            fill = gelu_tile(sg - 1)
        while nread < min(n + NB - 1, lim):
            rd(nread); nread += 1
        d = ACC[32 * (sg % 2):32 * (sg % 2) + 16]
        a.I(MF32, d, W1[4 * f:4 * f + 4], RING[4 * (n % NB):4 * (n % NB) + 4], d if f else BIAS)
        if sg < 2 and f % 2 == 0 and f < 16: tokdma(sg + 2, f // 2)
        if n == 96 + apf: apoll_issue(a, sCnt, sCb, sPv)
        if n == 96 + l0f:
            if det == 'g1': ST(12)
            apoll_check(a, L, 'b0', sCnt, sCb, sPv, 0, 7, sPc)
            if det == 'g1': ST(13)
        if n > 96 + l0f and nl0 < 14: ldfrag(0, nl0); nl0 += 1
        if nw2[0] < 56 and n >= w2s and (n - w2s) % w2e == 0: w2load()
        if f >= 1:
            for k in range(4):
                if fill: fill.pop(0)()
        if sg >= 2 and f == sigat:
            if det == 'g1' and sg == 2: ST(1)
            signal(sg - 2)
            if det == 'g1' and sg == 2: ST(2)
    while nw2[0] < 56: w2load()
    ST(3 if det == 'g1' else 6)
    if det == 'g1': ST.on = False
    HB = TMP[24:40]; HP = TMP[0:16]
    def ldstage(sg):
        for k in range(14): ldfrag(sg, k)
    def pollb(tag, sg, issue=False):
        if issue: apoll_issue(a, sCnt, sCb, sPv)
        apoll_check(a, L, tag, sCnt, sCb, sPv, sg, 7, sPc)
    def mm(sg, nxt=None, extra=()):
        extra = dict(extra)
        for k in range(14):
            n = (14 * sg + k) % 28
            if nxt is not None: ldfrag(nxt, k)
            for cp in range(2):
                d = ACC2[32 * (sg >> 1) + 16 * cp:32 * (sg >> 1) + 16 * cp + 16]
                a.I(MF32, d, W2(28 * (sg % 2) + 2 * k + cp), W1[4 * n:4 * n + 4], d if (k or sg % 2) else 0)
            if k in extra: extra[k]()
    assert nl0 == 14 and not fill
    apoll_issue(a, sCnt, sCb, sPv)
    for o in gelu_tile(3, pk=True): o()
    ST(7)
    pollb('b1', 1)
    s2k = int(opt.get('s2k', 4)); s3k = int(opt.get('s3k', 12))
    mm(0, 1, {s2k: lambda: signal(2), s3k: lambda: signal(3)})
    a.I('s_branch', L + '_g2')
    saved = (list(a.vmq), dict(a.pend), list(a.lgq))
    a.reset_state()
    a.label(L + '_nog1')
    nw2[0] = nw2_branch
    while nw2[0] < 56: w2load()
    pollb('c0', 0, True)
    ldstage(0)
    pollb('c1', 1)
    mm(0, 1)
    a.wait_vm0()
    a.label(L + '_g2')
    a.vmq, a.pend, a.lgq = saved
    ST(8)
    srdH = c.srdH; srdB2 = srdB; srdO = srdA
    vHo = TA[0]; vOo = TA[1]; vWr = Vp(3); vRd = vUo
    srd(a, srdB2, P_B2, 0, 1024); srd(a, srdO, P_OUT, 0, 2048 * 1024)
    a.I('s_lshr_b32', sT, sW, 1); a.I('s_add_u32', sTk, sTk, sT)
    a.I('v_lshrrev_b32', t0, 5, vL); a.I('v_lshlrev_b32', vBo, 4, t0)
    a.I('v_and_b32', t0, 31, vL); a.I('v_lshl_add_u32', vHo, t0, 10, vBo)
    a.I('s_lshl_b32', sHo, sTk, 15); a.I('s_add_u32', sHo, sHo, sCol)
    for jj in range(2):
        bload(a, HP[4 * jj:4 * jj + 4], vHo, srdH, sHo, 32 * jj, 'sc1')
        bload(a, HP[8 + 4 * jj:12 + 4 * jj], vBo, srdB2, sCol, 32 * jj)
    apoll_issue(a, sCnt, sCb, sPv)
    a.I('v_bfe_u32', t0, vL, 4, 1); a.I('v_lshl_add_u32', vOo, t0, 19, vBo)
    a.I('v_and_b32', t0, 15, vL); a.I('v_lshl_add_u32', vOo, t0, 15, vOo)
    a.I('s_and_b32', sOo, sTk, 1); a.I('s_lshl_b32', sOo, sOo, 20); a.I('s_lshr_b32', sT, sTk, 1); a.I('s_lshl_b32', sT, sT, 10)
    a.I('s_add_u32', sOo, sOo, sT); a.I('s_add_u32', sOo, sOo, sCol)
    for x in range(1, 4):
        a.I('s_xor_b32', sT, sW, x); a.I('s_mul_i32', sT, sT, 3 * 4096); a.I('s_add_u32', sT, sT, (x - 1) * 4096)
        a.I('v_add_u32', vWr[x - 1], sT, vL16)
    a.I('s_mul_i32', sT, sW, 3 * 4096); a.I('v_add_u32', vRd, sT, vL16)
    pollb('b2', 2)
    mm(1, 2, {7: lambda: apoll_issue(a, sCnt, sCb, sPv)})
    ST(9)
    pollb('b3', 3)
    ST(10)
    hb = []
    for jj in range(2):
        for i in range(4):
            h = HP[4 * jj + i]; b = HP[8 + 4 * jj + i]
            hb.append(lambda h=h, b=b, jj=jj, i=i: (a.I('v_lshlrev_b32', HB[4 * jj + i], 16, h), a.I('v_lshlrev_b32', t0, 16, b), a.I('v_add_f32', HB[4 * jj + i], HB[4 * jj + i], t0),
                      a.I('v_and_b32', HB[8 + 4 * jj + i], 0xffff0000, h), a.I('v_and_b32', t0, 0xffff0000, b), a.I('v_add_f32', HB[8 + 4 * jj + i], HB[8 + 4 * jj + i], t0)))
    mm(2, 3)
    mm(3, None, dict(enumerate(hb)))
    ST(11)
    a.I('s_cmp_ge_u32', sW, 2)
    a.I('s_cbranch_scc1', L + '_epi1')
    saved = (list(a.vmq), dict(a.pend), list(a.lgq))
    for var in range(2):
        if var:
            a.reset_state()
            a.label(L + '_epi1')
            a.vmq, a.pend, a.lgq = saved
            a.I('s_nop', 11)
        A2 = lambda tk, o, n: ACC2[32 * (tk ^ var) + o:32 * (tk ^ var) + o + n]
        for x in range(1, 4):
            tk = x >> 1; h = x & 1
            for cp in range(2):
                for q in range(2):
                    dsw(a, vWr[x - 1], A2(tk, 16 * cp + 8 * h + 4 * q, 4), (2 * cp + q) * 1024)
        for cp in range(2):
            for e in range(0, 8, 2): a.I('v_pk_add_f32', A2(0, 16 * cp + e, 2), A2(0, 16 * cp + e, 2), HB[8 * cp + e:8 * cp + e + 2])
        a.wait_lg0()
        a.barrier()
        BUF = W2V
        for x in range(3):
            for k in range(4): dsr(a, BUF[16 * x + 4 * k:16 * x + 4 * k + 4], vRd, x * 4096 + k * 1024)
        for x in range(3):
            for cp in range(2):
                for e in range(0, 8, 2): a.I('v_pk_add_f32', A2(0, 16 * cp + e, 2), A2(0, 16 * cp + e, 2), BUF[16 * x + 8 * cp + e:16 * x + 8 * cp + e + 2])
        for jj in range(2):
            for i in range(4): cvt(a, HB[4 * jj + i], A2(0, 4 * jj + i, 1), A2(0, 16 + 4 * jj + i, 1))
            bstore(a, HB[4 * jj:4 * jj + 4], vOo, srdO, sOo, 32 * jj)
        ST.on = bool(int(opt.get('stamp', 0)))
        if det != 'g1': ST(12)
        ST.flush(sW)
        if var == 0: a.I('s_endpgm')
    a.label(L + '_end')
    a.I('s_endpgm')
    return dict(name=L, grid=256, block=256, lds=0x24000, nv=256, na=256, ns=102)
```

```python
from common import *
from k3 import ids, c1_issue, c1_consts_a, c1_consts_b, c1_main, c1_stores, gelu_ops, GC1, GC2, Ctx
from k3g import gelu_pk_ops, apoll_issue, apoll_check

CA = 0
CB = 256 * 128
CX = CB + 1024 * 128
SPIN = 1 << 16

def gen_k3h(a, L, opt):
    ST = Stamps(a, 2, opt, vreg=23)
    det = opt.get('det', '')
    O = lambda k, d: int(opt.get(k, d))
    Vp = Alloc('v', 1, 23); Sg = Alloc('s', 26, 92)
    a.reset_state()
    c = ids(a, L, Sg, Vp, ST)
    ST.map = {1: None, 2: 1, 3: None, 4: None, 5: 2}
    sW, sR, sM, sT, sT2, vL, t0, t1 = c.sW, c.sR, c.sM, c.sT, c.sT2, c.vL, c.t0, c.t1
    ACC = v(24, 64); BIAS = v(240, 16); BR = v(24, 8); ACC2 = v(24, 64)
    W2V = v(88, 96); RING = v(184, 32); TMP = v(216, 40)
    W1 = R('a', 0, 128); W2A = R('a', 128, 128)
    W2 = lambda n: W2A[4 * n:4 * n + 4] if n < 32 else W2V[4 * (n - 32):4 * (n - 32) + 4]
    V = Alloc('v', 88, 240)
    vL16 = Vp(); vSig = Vp(); vSigA = Vp(); vOne = Vp(); vBo = Vp(); vPa = Vp(); vPoll = Vp()
    AT = O('atomic', 1)
    sXc = Sg()
    if not AT: a.I('s_getreg_b32', sXc, 'hwreg(HW_REG_XCC_ID, 0, 4)')
    c1_consts_a(a, c, V, Sg)
    a.I('v_mov_b32', t0, 0x10000000)
    a.I('v_cmp_gt_u32', VCC, 16, vL); a.I('v_lshlrev_b32', t1, 7, vL); a.I('v_cndmask_b32', vSigA, t0, t1, VCC)
    a.I('v_cmp_gt_u32', VCC, 8, vL); a.I('v_lshlrev_b32', t1, 9, vL); a.I('v_cndmask_b32', vSig, t0, t1, VCC)
    a.I('v_cmp_gt_u32', VCC, 32, vL); a.I('v_lshlrev_b32', t1, 2, vL); a.I('v_cndmask_b32', vPa, t0, t1, VCC)
    if not AT:
        a.I('s_mul_i32', sT, sXc, sXc); a.I('s_lshl_b32', sT, sT, 8); a.I('s_add_u32', sT, sT, sXc); a.I('s_lshl_b32', sT, sT, 8)
        a.I('s_add_u32', sXc, sT, 1)
        a.I('v_mov_b32', vOne, sXc)
    c1_issue(a, c, V, Sg, qs=0x20000)
    srdC = Sg(4, 4); sCnt = s(6, 2); sPc = s(23); sAg = s(22)
    srd(a, srdC, P_WS, CNT, CNT_SZ)
    if not AT:
        a.I('s_cmp_lg_u32', sW, 0)
        a.I('s_cbranch_scc1', L + '_noxc')
        a.begin_cond()
        a.I('s_lshl_b32', sT, sR, 11); a.I('s_add_u32', sT, sT, CX)
        a.I('buffer_atomic_add', vOne, vSigA, srdC, sT, mods='offen sc1')
        a.end_cond()
        a.label(L + '_noxc')
    srdA = Sg(4, 4); srdB = Sg(4, 4)
    a.I('v_lshlrev_b32', vL16, 4, vL)
    a.I('v_lshrrev_b32', t0, 5, vL); a.I('v_lshlrev_b32', vBo, 3, t0)
    srd(a, srdB, P_B1, 0, 3584)
    a.I('s_lshl_b32', sT, sM, 8); a.I('s_lshl_b32', sT2, sW, 6); a.I('s_add_u32', sT, sT, sT2)
    for j in range(4): bload(a, BR[2 * j:2 * j + 2], vBo, srdB, sT, 16 * j)
    vW1 = Vp(); sSo = Sg(); sM0 = Sg(); hdma = []
    a.I('v_lshrrev_b32', t0, 4, vL); a.I('v_mul_u32_u24', vW1, 3584, t0)
    a.I('v_lshlrev_b32', t0, 2, t0); a.I('v_and_b32', t1, 15, vL); a.I('v_xor_b32', t0, t0, t1); a.I('v_lshl_add_u32', vW1, t0, 4, vW1)
    srd(a, srdA, P_W1, 0, 512 * 3584)
    a.I('s_cmp_ge_u32', sM, 14)
    a.I('s_cselect_b32', srdA[2], 0, 512 * 3584)
    a.I('s_mul_i32', sSo, sW, 14336); a.I('s_lshl_b32', sT, sM, 8); a.I('s_add_u32', sSo, sSo, sT)
    a.I('s_lshl_b32', sM0, sW, 10)
    def w1dma(i):
        a.I('s_add_u32', M0, sM0, 4096 * i)
        hdma.append(dma16(a, vW1, srdA, sSo))
        if i < 31: a.I('s_add_u32', sSo, sSo, 4 * 14336)
    n0 = O('dma0', 4)
    for i in range(n0): w1dma(i)
    c1_consts_b(a, c, V, Sg, 0x20000, 0x22000)
    for e in range(8):
        a.I('v_lshlrev_b32', BIAS[2 * e], 16, BR[e]); a.I('v_and_b32', BIAS[2 * e + 1], 0xffff0000, BR[e])
    srdW2 = c.srdX; srdH1 = c.srdQ; vWo = Vp(); sWo = Sg(); sTh = Sg(); sWg = [s(8), s(9)]; sOwn = Sg()
    a.I('s_mov_b32', sCnt[0], srdC[0]); a.I('s_mov_b32', sCnt[1], srdC[1])
    srd(a, srdW2, P_WS, W2S, W2S_SZ); srd(a, srdH1, P_WS, H1, H1_SZ)
    a.I('s_and_b32', sT, sW, 1); a.I('s_lshl_b32', sT, sT, 8); a.I('v_xor_b32', vWo, sT, vL16)
    a.I('s_lshr_b32', sTh, sM, 3)
    a.I('s_and_b32', sT, sM, 7); a.I('s_lshl_b32', sT, sT, 2); a.I('s_add_u32', sT, sT, sW); a.I('s_mul_i32', sWo, sT, 56 * 1024)
    a.I('s_mul_i32', sT, sTh, 28 * 1024); a.I('s_add_u32', sWg[0], sWo, sT)
    a.I('s_xor_b32', sT, sTh, 1); a.I('s_mul_i32', sT, sT, 28 * 1024); a.I('s_add_u32', sWg[1], sWo, sT)
    a.I('s_lshl_b32', sOwn, sR, 4); a.I('s_add_u32', sOwn, sOwn, sM); a.I('s_lshl_b32', sOwn, sOwn, 7)
    if O('force_slow', 0): a.I('s_mov_b32', sXc, 0)
    if not AT: a.I('s_lshl_b32', sXc, sXc, 4)
    sTk = Sg(); sA = Sg(2); sCb = Sg(); sCol = Sg(); sHo = Sg(); sOo = Sg()
    a.I('s_lshl_b32', sTk, sR, 2); a.I('s_lshl_b32', sT, sTh, 1); a.I('s_add_u32', sTk, sTk, sT)
    for g in range(2):
        if g: a.I('s_xor_b32', sT2, sTh, 1)
        p = sT2 if g else sTh
        a.I('s_lshl_b32', sT, sTk, 2); a.I('s_add_u32', sT, sT, sW); a.I('s_lshl_b32', sT, sT, 1); a.I('s_add_u32', sT, sT, p)
        a.I('s_mul_i32', sA[g], sT, 14 * 1024)
    a.I('s_lshl_b32', sCb, sOwn, 2); a.I('s_lshl_b32', sT, sW, 7); a.I('s_add_u32', sCb, sCb, sT); a.I('s_add_u32', sCb, sCb, CB)
    a.I('s_and_b32', sCol, sM, 7); a.I('s_lshl_b32', sCol, sCol, 7); a.I('s_and_b32', sT, sW, 1); a.I('s_lshl_b32', sT, sT, 6); a.I('s_add_u32', sCol, sCol, sT)
    sCx = None if AT else Sg()
    if not AT: a.I('s_add_u32', sCx, sOwn, CX)
    a.bg = [lambda i=i: w1dma(i) for i in range(n0, 32)]
    c.hook_after_q = lambda: setattr(a, 'bg_every', O('dma_every', 12))
    if not AT: c.hook_mid = lambda: a.I('s_load_dword', sAg, sCnt, sCx, mods='glc')
    c.hook_before_st = lambda: setattr(a, 'bg_every', 0)
    c1_main(a, c, V, Sg, defer=True)
    ST.map = None
    a.I('v_mov_b32', vOne, 1)
    if not AT:
        a.wait_lg0()
        a.I('s_cmp_eq_u32', sAg, sXc)
        a.I('s_cbranch_scc1', L + 'f_go')
        a.I('s_mov_b32', sPc, SPIN)
        a.label(L + '_pollx')
        a.I('s_and_b32', sT, sAg, 255); a.I('s_cmp_ge_u32', sT, 16)
        a.I('s_cbranch_scc1', L + '_donex')
        a.I('s_load_dword', sAg, sCnt, sCx, mods='glc'); a.wait_lg0()
        a.I('s_sub_u32', sPc, sPc, 1); a.I('s_cmp_lg_u32', sPc, 0)
        a.I('s_cbranch_scc1', L + '_pollx')
        a.label(L + '_donex')
        a.I('s_cmp_eq_u32', sAg, sXc)
        a.I('s_cbranch_scc0', L + 's_go')
    snap = (a.snapshot(), Vp.snapshot(), Sg.snapshot(), list(a.bg), list(hdma))

    def body(L, fast):
        SM = '' if (fast and not O('usc1', 0)) else 'sc1'
        SM1 = 'sc1' if (not fast or O('h1sc1', 0)) else ''
        LM = '' if (fast and O('ldplain', 0) and not O('usc1', 0)) else 'sc1'
        LM1 = '' if (fast and O('ldplain', 0) and not O('h1sc1', 0)) else 'sc1'
        a.label(L + '_go')
        nw2 = [0]
        def w2load():
            n = nw2[0]; nw2[0] += 1; k = n % 28
            if k % 4 == 0: a.I('s_add_u32', sWo, sWg[n // 28], k * 1024)
            return bload(a, W2(n), vWo, srdW2, sWo, (k % 4) * 1024)
        sPv = Sg(4, 4) if AT else None
        def vpoll_issue(soff):
            if AT: return apoll_issue(a, sCnt, soff, sPv)
            return bload(a, vPoll, vPa, srdC, soff, 0, 'sc1')
        def vpoll_check(tag, soff, mask, h=None):
            if AT:
                word, target = {0xffff: (0, 16), 0x7f: (0, 7), 0x7f00: (1, 7), 0x7f0000: (2, 7), 0x7f000000: (3, 7)}[mask]
                return apoll_check(a, L, tag, sCnt, soff, sPv, word, target, sPc)
            def test():
                a.I('v_cmp_ne_u32', VCC, 0, vPoll)
                a.I('s_and_b32', sT, VCC[0], mask); a.I('s_cmp_eq_u32', sT, mask)
                a.I('s_cbranch_scc1', L + '_done' + tag)
            test()
            a.I('s_mov_b32', sPc, SPIN)
            a.label(L + '_poll' + tag)
            a.raw('buffer_load_dword %s, %s, %s, %s offen sc1' % (vPoll, vPa, srdC, soff))
            a.raw('s_waitcnt vmcnt(0)')
            test()
            a.I('s_sub_u32', sPc, sPc, 1); a.I('s_cmp_lg_u32', sPc, 0)
            a.I('s_cbranch_scc1', L + '_poll' + tag)
            a.label(L + '_done' + tag)
        c1_stores(a, c, SM)
        for _ in range(O('dma_post', 6)):
            if a.bg: a.bg.pop(0)()
        a.wait(c.ust)
        a.barrier()
        a.I('s_cmp_lg_u32', sW, 0)
        a.I('s_cbranch_scc1', L + '_nosig')
        a.begin_cond()
        a.I('s_lshl_b32', sT, sR, 11)
        if AT: a.I('buffer_atomic_add', vOne, vSigA, srdC, sT, mods='offen sc1')
        else:
            a.I('s_lshl_b32', sT2, sM, 2); a.I('s_add_u32', sT, sT, sT2)
            bstore(a, vOne, vSigA, srdC, sT, 0, SM)
        a.end_cond()
        a.label(L + '_nosig')
        ST(3)
        a.I('s_cmp_ge_u32', sM, 14)
        a.I('s_cbranch_scc1', L + '_nog1')
        snap_br = a.snapshot()
        a.bg_flush()
        if not AT: vpoll_issue(sOwn)
        vUo = Vp(); vC1 = Vp(2); TA = Vp(2); sC2 = s(10, 2); sPar = s(5); sTile = s(12, 4); sX = s(16); sY = s(17)
        a.I('v_bfe_u32', t0, vL, 2, 2)
        a.I('v_lshrrev_b32', t1, 5, vL); a.I('v_lshl_add_u32', t1, t1, 4, t0); a.I('v_lshlrev_b32', TA[0], 8, t1)
        a.I('v_and_b32', t1, 3, vL); a.I('v_lshl_add_u32', TA[0], t1, 3, TA[0])
        a.I('v_bfe_u32', t1, vL, 4, 1); a.I('v_lshl_add_u32', TA[0], t1, 5, TA[0])
        a.I('v_xor_b32', t0, sW, t0); a.I('v_lshl_add_u32', TA[0], t0, 6, TA[0]); a.I('v_add_u32', TA[1], 65536, TA[0])
        a.I('v_bfe_u32', t0, vL, 3, 2); a.I('v_lshlrev_b32', vUo, 13, t0)
        a.I('v_lshrrev_b32', t0, 5, vL); a.I('v_lshl_add_u32', vUo, t0, 7, vUo)
        a.I('v_and_b32', t0, 7, vL); a.I('v_lshl_add_u32', vUo, t0, 4, vUo)
        a.I('s_and_b32', sPar, sM, 1)
        for sg in range(4):
            a.I('s_lshl_b32', sT, sPar, 1); a.I('s_xor_b32', sT, sT, 2 * (sg & 1) + (sg >> 1)); a.I('s_lshl_b32', sT2, sR, 2); a.I('s_add_u32', sTile[sg], sT, sT2)
        for e in range(2): a.I('v_mov_b32', vC1[e], GC1); a.I('s_mov_b32', sC2[e], GC2)
        sH1o = sSo; sQ = s(4); sSg = (sPar, sM0)
        a.I('s_lshr_b32', sT, sM, 1); a.I('s_mul_i32', sT2, sPar, 7); a.I('s_add_u32', sT2, sT, sT2); a.I('s_lshl_b32', sQ, sT2, 11)
        a.I('s_mul_i32', sT2, sW, 28 * 1024); a.I('s_add_u32', sQ, sQ, sT2)
        a.I('s_lshl_b32', sM0, sT, 2)
        if AT: a.I('s_mov_b32', sM0, 0)
        a.I('s_lshl_b32', sT, sR, 4); a.I('s_lshl_b32', sT2, sPar, 3); a.I('s_add_u32', sT2, sT2, sT)
        a.I('s_lshl_b32', sT2, sT2, 2); a.I('s_add_u32', sT2, sT2, sW); a.I('s_lshl_b32', sT2, sT2, 7); a.I('s_add_u32', sT2, sT2, sM0)
        a.I('s_add_u32', sPar, sT2, CB); a.I('s_xor_b32', sM0, sPar, 8 * 512)
        if AT:
            a.I('s_cmp_lg_u32', sW, 0); a.I('s_cbranch_scc1', L + '_nopoll')
            vpoll_issue(sOwn)
        vpoll_check('a', sOwn, 0xffff)
        if AT: a.label(L + '_nopoll')
        ST(4)
        hslot = {}
        if det == 'g0': ST.map = {5: 9, 6: None, 7: None, 8: None, 9: None, 10: None, 11: None, 12: None}
        SLOT = (0x20000, 0, 0x8000, 0x10000)
        def tokdma(sg, i):
            if i == 0:
                a.I('s_lshl_b32', sX, sTile[sg], 15); a.I('s_lshl_b32', sT, sW, 11); a.I('s_add_u32', sX, sX, sT)
                a.I('s_lshl_b32', sY, sW, 13); a.I('s_add_u32', sY, sY, SLOT[sg])
            a.I('s_add_u32', M0, sY, 1024 * i)
            a.I('s_add_u32', sT, sX, 256 * i)
            hslot[sg] = dma16(a, vUo, c.srdU, sT, LM)
        a.wait(hdma[-1]); a.barrier()
        if det == 'g0': ST(13)
        for i in range(8): tokdma(0, i)
        if det == 'g0': ST.map = None; ST(5); ST.map = {}
        ne = O('w2_early', 4)
        for f in range(32):
            off = (32 * (f % 8) + 4 * (f // 8)) * 256
            for h in range(2): a.I('ds_read_b64_tr_b16', W1[4 * f + 2 * h:4 * f + 2 * h + 2], TA[h], mods='offset:%d' % off)
            if nw2[0] < ne and f >= 32 - 3 * ne and (32 - f) % 3 == 0: w2load()
        while nw2[0] < ne: w2load()
        vL16b = TA[1]; vL16c = TA[0]
        a.wait_lg0()
        if det == 'g0': ST(6); ST.map = {5: 7, 6: None, 7: None, 8: None, 9: None, 10: None, 11: None, 12: None}
        a.I('v_add_u32', vL16b, 65536, vL16); a.I('v_add_u32', vL16c, 0x20000, vL16)
        a.wait(hslot[0]); a.barrier()
        ST(5)
        NB = 8
        def rd(n):
            sg, f = n // 32, n % 32
            dsr(a, RING[4 * (n % NB):4 * (n % NB) + 4], (vL16, vL16b, vL16c)[SLOT[sg] >> 16], SLOT[sg] % 65536 + f * 1024)
        OUT = TMP[16:24]
        lastst = {}
        def signal(sg):
            a.wait(lastst[sg])
            if AT: a.I('buffer_atomic_add', vOne, vSig, srdC, sSg[sg & 1], mods='offen offset:%d sc1' % (4 * sg))
            else: bstore(a, vOne, vSig, srdC, sSg[sg & 1], 32 * sg, SM1)
        def gelu_tile(sg, pk=False):
            acc = ACC[32 * (sg % 2):32 * (sg % 2) + 16]
            def st(u):
                if u == 0:
                    a.I('s_mul_i32', sH1o, sTile[sg], 112 * 1024); a.I('s_add_u32', sH1o, sH1o, sQ)
                lastst[sg] = bstore(a, OUT[4 * u:4 * u + 4], vL16, srdH1, sH1o, 1024 * u, SM1)
            if pk:
                return gelu_pk_ops(a, acc, TMP[0:16], OUT, sC2, vC1) + [lambda: st(0), lambda: st(1)]
            ops = gelu_ops(a, acc, TMP[0:16], OUT, sC2[0], vC1[0])
            half = len(ops) // 2
            return ops[:half] + [lambda: st(0)] + ops[half:] + [lambda: st(1)]
        w2s = O('w2_start', 9); w2e = O('w2_every', 2); sigat = O('sigat', 26 if SM1 else 12)
        fill = []; nread = 0; lim = 0; nl0 = 0
        apf = O('apf', 10); l0f = O('l0f', 17)
        sAo = sX
        def ldfrag(sg, k):
            n = (14 * sg + k) % 28
            if k % 4 == 0: a.I('s_add_u32', sAo, sA[sg % 2], (sg >> 1) * 112 * 1024 + k * 1024)
            bload(a, W1[4 * n:4 * n + 4], vL16, srdH1, sAo, (k % 4) * 1024, LM1)
        for n in range(128):
            sg, f = n // 32, n % 32
            if n == 0: lim = 32
            if f == 32 - NB and sg < 3:
                nx = sg + 1
                if det == 'g1': ST(5 + 2 * nx - 1)
                a.wait(hslot[nx]); a.barrier(); lim = 32 * (nx + 1)
                if det == 'g1': ST(5 + 2 * nx)
            if f == 0 and sg > 0:
                assert not fill
                fill = gelu_tile(sg - 1)
            while nread < min(n + NB - 1, lim):
                rd(nread); nread += 1
            if n % 2 == 0 and n + 1 < lim:
                h = a.pend.get(('v', RING[4 * ((n + 1) % NB)].i))
                if h is not None: a.wait(h)
            d = ACC[32 * (sg % 2):32 * (sg % 2) + 16]
            a.I(MF32, d, W1[4 * f:4 * f + 4], RING[4 * (n % NB):4 * (n % NB) + 4], d if f else BIAS)
            isdma = False
            if sg == 0 and f < 8: tokdma(1, f); isdma = True
            elif sg == 0 and f < 24 and f % 2 == 0: tokdma(2, (f - 8) // 2); isdma = True
            elif sg == 1 and f < 16 and f % 2 == 0: tokdma(3, f // 2); isdma = True
            if n == 96 + apf: vpoll_issue(sCb)
            if n == 96 + l0f:
                if det == 'g1': ST(12)
                vpoll_check('b0', sCb, 0x7f)
                if det == 'g1': ST(13)
            if n > 96 + l0f and nl0 < 14: ldfrag(0, nl0); nl0 += 1
            if nw2[0] < 56 and n >= w2s and (n - w2s) % w2e == 0 and not isdma: w2load()
            if f >= 1:
                for k in range(4):
                    if fill: fill.pop(0)()
            if sg >= 2 and f == sigat: signal(sg - 2)
        while nw2[0] < 56: w2load()
        ST(3 if det == 'g1' else 6)
        if det == 'g1': ST.on = False
        HB = TMP[24:40]; HP = TMP[0:16]
        def mm(sg, nxt=None, extra=()):
            extra = dict(extra)
            for k in range(14):
                n = (14 * sg + k) % 28
                if nxt is not None: ldfrag(nxt, k)
                for cp in range(2):
                    d = ACC2[32 * (sg >> 1) + 16 * cp:32 * (sg >> 1) + 16 * cp + 16]
                    a.I(MF32, d, W2(28 * (sg % 2) + 2 * k + cp), W1[4 * n:4 * n + 4], d if (k or sg % 2) else 0)
                if k in extra: extra[k]()
        assert nl0 == 14 and not fill
        tail = gelu_tile(3, pk=True)
        for k, o in enumerate(tail):
            if k == O('apf1', 40): vpoll_issue(sCb)
            o()
        ST(7)
        vpoll_check('b1', sCb, 0x7f00)
        s2k = O('s2k', 4 if SM1 else 0); s3k = O('s3k', 12 if SM1 else 5)
        mm(0, 1, {s2k: lambda: signal(2), s3k: lambda: signal(3)})
        a.I('s_branch', L + '_g2')
        saved = a.snapshot()
        a.reset_state()
        a.label(L + '_nog1')
        a.restore(snap_br)
        nw2[0] = 0
        if fast and O('wb', 0) & 1:
            a.I('s_cmp_lg_u32', sW, 0); a.I('s_cbranch_scc1', L + '_nowb')
            vpoll_issue(sOwn); vpoll_check('w', sOwn, 0xffff)
            a.I('buffer_wbl2', mods='sc1')
            a.label(L + '_nowb')
            a.wait_vm0()
        lo = O('k3_w2_lo', 1792)
        if lo < 1792:
            n = -(-(1792 - lo) // (16 * 8))
            a.I('v_lshlrev_b32', vSigA, 7, vL)
            a.I('s_and_b32', sT, sR, 1); a.I('s_lshl_b32', sT, sT, 1); a.I('s_and_b32', sT2, sM, 1); a.I('s_add_u32', sT, sT, sT2)
            a.I('s_lshl_b32', sT, sT, 2); a.I('s_add_u32', sT, sT, sW); a.I('s_mul_i32', sT2, sT, n * 8192); a.I('s_add_u32', sT2, sT2, lo * 1024)
            touch(a, srdW2, vSigA, sT2, n, TMP[0:8], sT)
        while nw2[0] < 56: w2load()
        vpoll_issue(sCb); vpoll_check('c0', sCb, 0x7f)
        for k in range(14): ldfrag(0, k)
        vpoll_issue(sCb); vpoll_check('c1', sCb, 0x7f00)
        mm(0, 1)
        a.wait_vm0()
        a.label(L + '_g2')
        a.restore(saved)
        ST(8)
        srdH = c.srdH; srdB2 = srdB; srdO = srdA
        vHo = TA[0]; vOo = TA[1]; vWr = Vp(3); vRd = vUo
        vpoll_issue(sCb)
        srd(a, srdB2, P_B2, 0, 1024); srd(a, srdO, P_OUT, 0, 2048 * 1024)
        a.I('s_lshr_b32', sT, sW, 1); a.I('s_add_u32', sTk, sTk, sT)
        a.I('v_lshrrev_b32', t0, 5, vL); a.I('v_lshlrev_b32', vBo, 4, t0)
        a.I('v_and_b32', t0, 31, vL); a.I('v_lshl_add_u32', vHo, t0, 10, vBo)
        a.I('s_lshl_b32', sHo, sTk, 15); a.I('s_add_u32', sHo, sHo, sCol)
        for jj in range(2):
            bload(a, HP[4 * jj:4 * jj + 4], vHo, srdH, sHo, 32 * jj, LM)
            bload(a, HP[8 + 4 * jj:12 + 4 * jj], vBo, srdB2, sCol, 32 * jj)
        a.I('v_bfe_u32', t0, vL, 4, 1); a.I('v_lshl_add_u32', vOo, t0, 19, vBo)
        a.I('v_and_b32', t0, 15, vL); a.I('v_lshl_add_u32', vOo, t0, 15, vOo)
        a.I('s_and_b32', sOo, sTk, 1); a.I('s_lshl_b32', sOo, sOo, 20); a.I('s_lshr_b32', sT, sTk, 1); a.I('s_lshl_b32', sT, sT, 10)
        a.I('s_add_u32', sOo, sOo, sT); a.I('s_add_u32', sOo, sOo, sCol)
        def area(dst, d):
            a.I('s_and_b32', sT, d, 1); a.I('s_mul_i32', sT, sT, 3 * 4096); a.I('s_lshr_b32', dst, d, 1); a.I('s_lshl_b32', dst, dst, 17); a.I('s_add_u32', dst, dst, sT)
        for x in range(1, 4):
            a.I('s_xor_b32', sT2, sW, x); area(sT2, sT2); a.I('s_add_u32', sT2, sT2, (x - 1) * 4096)
            a.I('v_add_u32', vWr[x - 1], sT2, vL16)
        area(sT2, sW); a.I('v_add_u32', vRd, sT2, vL16)
        vpoll_check('b2', sCb, 0x7f0000)
        mm(1, 2, {O('apf3', 8): lambda: vpoll_issue(sCb)})
        ST(9)
        vpoll_check('b3', sCb, 0x7f000000)
        ST(10)
        hb = []
        for jj in range(2):
            for i in range(4):
                h = HP[4 * jj + i]; b = HP[8 + 4 * jj + i]
                hb.append(lambda h=h, b=b, jj=jj, i=i: (a.I('v_lshlrev_b32', HB[4 * jj + i], 16, h), a.I('v_lshlrev_b32', t0, 16, b), a.I('v_add_f32', HB[4 * jj + i], HB[4 * jj + i], t0),
                          a.I('v_and_b32', HB[8 + 4 * jj + i], 0xffff0000, h), a.I('v_and_b32', t0, 0xffff0000, b), a.I('v_add_f32', HB[8 + 4 * jj + i], HB[8 + 4 * jj + i], t0)))
        mm(2, 3)
        mm(3, None, dict(enumerate(hb)))
        ST(11)
        a.I('s_cmp_ge_u32', sW, 2)
        a.I('s_cbranch_scc1', L + '_epi1')
        saved = a.snapshot()
        for var in range(2):
            if var:
                a.reset_state()
                a.label(L + '_epi1')
                a.restore(saved)
                a.I('s_nop', 11)
            A2 = lambda tk, o, n: ACC2[32 * (tk ^ var) + o:32 * (tk ^ var) + o + n]
            for x in range(1, 4):
                tk = x >> 1; h = x & 1
                for cp in range(2):
                    for q in range(2):
                        dsw(a, vWr[x - 1], A2(tk, 16 * cp + 8 * h + 4 * q, 4), (2 * cp + q) * 1024)
            for cp in range(2):
                for e in range(0, 8, 2): a.I('v_pk_add_f32', A2(0, 16 * cp + e, 2), A2(0, 16 * cp + e, 2), HB[8 * cp + e:8 * cp + e + 2])
            a.wait_lg0()
            a.barrier()
            BUF = W2V
            for x in range(3):
                for k in range(4): dsr(a, BUF[16 * x + 4 * k:16 * x + 4 * k + 4], vRd, x * 4096 + k * 1024)
            for x in range(3):
                for cp in range(2):
                    for e in range(0, 8, 2): a.I('v_pk_add_f32', A2(0, 16 * cp + e, 2), A2(0, 16 * cp + e, 2), BUF[16 * x + 8 * cp + e:16 * x + 8 * cp + e + 2])
            for jj in range(2):
                for i in range(4): cvt(a, HB[4 * jj + i], A2(0, 4 * jj + i, 1), A2(0, 16 + 4 * jj + i, 1))
                bstore(a, HB[4 * jj:4 * jj + 4], vOo, srdO, sOo, 32 * jj, 'sc1' if O('outsc1', 0) else '')
            ST.on = bool(O('stamp', 0))
            if det != 'g1': ST(12)
            ST.flush(sW)
            a.I('s_endpgm')

    if not AT:
        body(L + 'f', True)
        a.label(L + '_fast_end')
        a.reset_state()
        a.restore(snap[0]); Vp.restore(snap[1]); Sg.restore(snap[2]); a.bg = list(snap[3]); hdma[:] = snap[4]
    body(L + 's', False)
    if AT: a.label(L + '_fast_end')
    a.label(L + '_end')
    a.I('s_endpgm')
    return dict(name=L, grid=256, block=256, lds=0x28000, nv=256, na=256, ns=102)
```

```python
import sys, re
from common import *
from k1 import gen_k1
from k2 import gen_k2
from k3f import gen_k3f
from k3g import gen_k3g
from k3h import gen_k3h

def gen_pf(a, L, opt):
    a.reset_state()
    a.I('s_cmp_ge_u32', s(2), 256); a.I('s_cbranch_scc1', L + '_end')
    kernarg(a)
    srd(a, s(28, 4), P_W1, 0, 512 * 3584); srd(a, s(32, 4), P_WS, W2S, W2S_SZ)
    a.I('s_lshr_b32', s(36), s(2), 3); a.I('s_mul_i32', s(36), s(36), 57344)
    a.I('v_lshlrev_b32', v(1), 4, v(0))
    for i in range(14):
        bload(a, v(4 + 8 * i, 4), v(1), s(28, 4), s(36)); bload(a, v(8 + 8 * i, 4), v(1), s(32, 4), s(36))
        a.I('s_add_u32', s(36), s(36), 4096)
    a.wait_vm0()
    a.label(L + '_end'); a.I('s_endpgm')
    return dict(name=L, grid=256, block=256, lds=0)

HEADER = open('cdna_kernels/%s.s.ref' % NAME).read().split('; Override launch')[0]

def build(plan, opt):
    parts = []; launches = []; kds = []
    for label, fn in plan:
        a = Asm()
        info = fn(a, label, opt)
        body = a.finish()
        nv = max(a.maxv + 1, 1); na = a.maxa + 1
        parts.append(khead(label) + body + kd(label, nv, na, 102))
        launches.append('; @launch kernel=%s grid=(%d,1,1) block=(%d,1,1) lds=%d' % (label, info['grid'], info['block'], info['lds']))
        print(label, 'vgpr', nv, 'agpr', na, 'sgpr', a.maxs + 1, 'lines', body.count('\n'), file=sys.stderr)
    return HEADER + '\n'.join(launches) + '\n.amdgcn_target "amdgcn-amd-amdhsa--gfx950"\n' + ''.join(parts)

PLANS = {
    'h3': [('fa_kernel', gen_k1), ('fb_kernel', gen_k2), ('fc_kernel', gen_k3h)],
    'h4': [('fa_kernel', gen_k1), ('fb_kernel', gen_k2), ('pf_kernel', gen_pf), ('fc_kernel', gen_k3h)],
    'g3': [('fa_kernel', gen_k1), ('fb_kernel', gen_k2), ('fc_kernel', gen_k3g)],
    'g4': [('fa_kernel', gen_k1), ('fb_kernel', gen_k2), ('pf_kernel', gen_pf), ('fc_kernel', gen_k3g)],
    'f4': [('fa_kernel', gen_k1), ('fb_kernel', gen_k2), ('pf_kernel', gen_pf), ('fc_kernel', gen_k3f)],
    'f3': [('fa_kernel', gen_k1), ('fb_kernel', gen_k2), ('fc_kernel', gen_k3f)],
}
if __name__ == '__main__':
    plan = sys.argv[1]; out = sys.argv[2]
    opt = dict(kv.split('=') for kv in sys.argv[3:])
    opt.setdefault('clear_cnt', 1)
    opt.setdefault('code_lo', PLANS[plan][1][0]); opt.setdefault('code_hi', PLANS[plan][-1][0] + ('_fast_end' if plan[0] == 'h' else '_end'))
    open(out, 'w').write(build(PLANS[plan], opt))
```

```python
import re, struct

def f2u(x):
    return struct.unpack('<I', struct.pack('<f', x))[0]

def hexf(x):
    return '0x%08x' % f2u(x)

class R:
    __slots__ = ('k', 'i', 'n')
    def __init__(s, k, i, n=1):
        s.k, s.i, s.n = k, i, n
    def __getitem__(s, x):
        if isinstance(x, slice):
            a = x.start or 0
            b = s.n if x.stop is None else x.stop
            assert 0 <= a < b <= s.n, (s, x)
            return R(s.k, s.i + a, b - a)
        assert 0 <= x < s.n, (s, x)
        return R(s.k, s.i + x, 1)
    def __len__(s):
        return s.n
    def __str__(s):
        return '%s%d' % (s.k, s.i) if s.n == 1 else '%s[%d:%d]' % (s.k, s.i, s.i + s.n - 1)
    __repr__ = __str__
    def regs(s):
        return [(s.k, s.i + j) for j in range(s.n)]

def v(i, n=1): return R('v', i, n)
def a(i, n=1): return R('a', i, n)
def s(i, n=1): return R('s', i, n)
VCC = R('s', 106, 2)
EXEC = R('s', 126, 2)
M0 = R('s', 124, 1)

def opstr(o):
    if isinstance(o, R):
        if o.k == 's' and o.i == 106 and o.n == 2: return 'vcc'
        if o.k == 's' and o.i == 106 and o.n == 1: return 'vcc_lo'
        if o.k == 's' and o.i == 107 and o.n == 1: return 'vcc_hi'
        if o.k == 's' and o.i == 126 and o.n == 2: return 'exec'
        if o.k == 's' and o.i == 126 and o.n == 1: return 'exec_lo'
        if o.k == 's' and o.i == 127 and o.n == 1: return 'exec_hi'
        if o.k == 's' and o.i == 124 and o.n == 1: return 'm0'
        return str(o)
    if isinstance(o, Neg): return '-' + opstr(o.r)
    if isinstance(o, Abs): return '|' + opstr(o.r) + '|'
    if isinstance(o, float):
        if o in (0.5, -0.5, 1.0, -1.0, 2.0, -2.0, 4.0, -4.0): return repr(o)
        if o == 0.0: return '0'
        return hexf(o)
    if isinstance(o, int):
        if -16 <= o <= 64: return str(o)
        return '0x%x' % (o & 0xffffffff)
    return str(o)

class Neg:
    def __init__(s, r): s.r = r
class Abs:
    def __init__(s, r): s.r = r

def regs_of(o):
    if isinstance(o, R): return o.regs()
    if isinstance(o, (Neg, Abs)): return regs_of(o.r)
    return []

TRANS = ('v_exp_f32', 'v_log_f32', 'v_rcp_f32', 'v_rsq_f32', 'v_sqrt_f32', 'v_sin_f32', 'v_cos_f32')

class Inst:
    __slots__ = ('op', 'ops', 'mods', 'defs', 'uses', 'kind', 'region', 'text', 'cdefs', 'cuses', 'passes', 'tag', 'wide_store_data', 'abuses', 'done')
    def __init__(s):
        s.defs = []; s.uses = []; s.kind = ''; s.cuses = []; s.abuses = []; s.passes = 0; s.tag = None
        s.wide_store_data = []; s.done = False

class Asm:
    def __init__(self):
        self.ins = []
        self.region = 0
        self._nreg = 0
        self.vmq = []
        self.lgq = []
        self.pend = {}
        self.out = []
        self.maxv = -1; self.maxa = -1; self.maxs = -1
        self.bg = []; self.bg_every = 0; self._bgc = 0; self._inbg = False

    def raw(self, text):
        i = Inst(); i.op = 'raw'; i.text = text; i.kind = 'raw'; i.region = self.region
        self.ins.append(i); return i
    def comment(self, t):
        return self.raw('; ' + t)
    def label(self, name):
        i = Inst(); i.op = 'label'; i.text = name + ':'; i.kind = 'label'; i.region = self.region
        self.ins.append(i); return i
    def begin_cond(self):
        assert self.region == 0
        self._nreg += 1; self.region = self._nreg
    def end_cond(self):
        self.region = 0
    def snapshot(self):
        return (list(self.vmq), list(self.lgq), dict(self.pend))
    def restore(self, snap):
        self.vmq, self.lgq, self.pend = list(snap[0]), list(snap[1]), dict(snap[2])
        for y in self.vmq + self.lgq: y.done = False
    def reset_state(self):
        self.vmq = []; self.lgq = []; self.pend = {}
        i = Inst(); i.op = 'reset'; i.text = ''; i.kind = 'reset'; i.region = 0
        self.ins.append(i)

    def _count_younger(self, q, x):
        idx = q.index(x)
        return sum(1 for y in q[idx + 1:] if y.region in (0, self.region) or y.region == x.region)
    def _emit_wait(self, vm=None, lg=None):
        parts = []
        if vm is not None: parts.append('vmcnt(%d)' % min(vm, 63))
        if lg is not None: parts.append('lgkmcnt(%d)' % min(lg, 15))
        i = Inst(); i.op = 's_waitcnt'; i.text = 's_waitcnt ' + ' '.join(parts); i.kind = 'salu'; i.region = self.region
        self.ins.append(i)
    def _retire(self, q, x):
        idx = q.index(x)
        for y in q[:idx + 1]:
            y.done = True
            for r in y.defs:
                if self.pend.get(r) is y: del self.pend[r]
        del q[:idx + 1]
    def wait(self, *hs):
        vm = lg = None; vx = lx = None; smem_wait = False
        for h in hs:
            if h is None or h.done: continue
            if h in self.vmq:
                n = self._count_younger(self.vmq, h)
                if vx is None or self.vmq.index(h) > self.vmq.index(vx): vx = h
                vm = n if vm is None else min(vm, n)
            elif h in self.lgq:
                if h.kind == 'smem':
                    lg = 0; lx = self.lgq[-1]; smem_wait = True
                elif not smem_wait:
                    idx = self.lgq.index(h)
                    n = sum(1 for y in self.lgq[idx + 1:] if y.kind != 'smem' and (y.region in (0, self.region) or y.region == h.region))
                    if lx is None or idx > self.lgq.index(lx): lx = h
                    lg = n if lg is None else min(lg, n)
        if vm is None and lg is None: return
        if self.region != 0:
            self._emit_wait(vm, lg)
            self._cond_retire(vx, lx)
            return
        self._emit_wait(vm, lg)
        if vx is not None: self._retire(self.vmq, vx)
        if lx is not None:
            if lg == 0: self._retire(self.lgq, self.lgq[-1])
            else:
                idx = self.lgq.index(lx)
                keep = [y for y in self.lgq[:idx + 1] if y.kind == 'smem']
                for y in keep: self.lgq.remove(y)
                self._retire(self.lgq, lx)
                self.lgq[:0] = keep
    def _cond_retire(self, vx, lx):
        for q, x in ((self.vmq, vx), (self.lgq, lx)):
            if x is None: continue
            idx = q.index(x)
            keep = []
            for j, y in enumerate(q):
                if j <= idx and y.region == self.region:
                    y.done = True
                    for r in y.defs:
                        if self.pend.get(r) is y: del self.pend[r]
                else:
                    keep.append(y)
            q[:] = keep
    def wait_vm0(self):
        self._emit_wait(vm=0)
        if self.vmq:
            if self.region == 0: self._retire(self.vmq, self.vmq[-1])
            else: self._cond_retire(self.vmq[-1], None)
    def wait_lg0(self):
        self._emit_wait(lg=0)
        if self.lgq:
            if self.region == 0: self._retire(self.lgq, self.lgq[-1])
            else: self._cond_retire(None, self.lgq[-1])
    def wait_all(self):
        self._emit_wait(vm=0, lg=0)
        for q in (self.vmq, self.lgq):
            if q:
                if self.region == 0: self._retire(q, q[-1])
        if self.region != 0:
            self._cond_retire(self.vmq[-1] if self.vmq else None, self.lgq[-1] if self.lgq else None)
    def barrier(self):
        self.I('s_barrier')

    def I(self, op, *ops, mods='', defs=None, uses=None):
        i = Inst(); i.op = op; i.ops = ops; i.mods = mods; i.region = self.region
        i.text = op + ((' ' + ', '.join(opstr(o) for o in ops)) if ops else '') + ((' ' + mods) if mods else '')
        d, u = self._du(i)
        if defs is not None: d = [r for o in defs for r in regs_of(o)]
        if uses is not None: u = u + [r for o in uses for r in regs_of(o)]
        i.defs, i.uses = d, u
        for k, n in d + u:
            if k == 'v': self.maxv = max(self.maxv, n)
            elif k == 'a': self.maxa = max(self.maxa, n)
            elif k == 's' and n < 102: self.maxs = max(self.maxs, n)
        need = []
        for r in d + u:
            h = self.pend.get(r)
            if h is not None and h not in need: need.append(h)
        if need:
            if i.kind in ('vmem', 'ds') and not any(r in self.pend for r in u):
                need = [h for h in need if h.kind != i.kind]
            if need: self.wait(*need)
        self.ins.append(i)
        if i.kind == 'vmem':
            self.vmq.append(i)
            assert len(self.vmq) <= 63 or True
            for r in d: self.pend[r] = i
        elif i.kind in ('ds', 'smem'):
            self.lgq.append(i)
            for r in d: self.pend[r] = i
        if self.bg and self.bg_every and not self._inbg and i.kind in ('valu', 'trans', 'mfma') and self.region == 0:
            self._bgc += 1
            if self._bgc >= self.bg_every:
                self._bgc = 0; self._inbg = True
                self.bg.pop(0)()
                self._inbg = False
        return i

    def capture(self, fn):
        rec = []
        orig = self.I
        self.I = lambda op, *ops, **kw: rec.append((op, ops, kw))
        try: fn()
        finally: del self.I
        return rec
    def zip_emit(self, mf, va):
        nm, nv = len(mf), len(va); j = 0
        for i, (op, ops, kw) in enumerate(mf):
            self.I(op, *ops, **kw)
            while j < nv and j < (i + 1) * nv // nm:
                o2, p2, k2 = va[j]; self.I(o2, *p2, **k2); j += 1
        while j < nv:
            o2, p2, k2 = va[j]; self.I(o2, *p2, **k2); j += 1
    def emit_all(self, rec):
        for op, ops, kw in rec: self.I(op, *ops, **kw)
    def bg_flush(self):
        self._inbg = True
        while self.bg: self.bg.pop(0)()
        self._inbg = False

    def _du(self, i):
        op, ops = i.op, i.ops
        R_ = lambda *x: [r for o in x for r in regs_of(o)]
        if op.startswith('v_mfma'):
            i.kind = 'mfma'
            i.passes = 8 if '32x32' in op else 4
            i.cuses = R_(ops[3]); i.abuses = R_(ops[1], ops[2])
            return R_(ops[0]), R_(ops[1], ops[2], ops[3])
        if op.startswith('buffer_') or op.startswith('global_'):
            i.kind = 'vmem'
            lds = ' lds' in (' ' + i.mods) or '_lds_' in op
            if op in ('buffer_wbl2', 'buffer_inv'):
                return [], []
            if lds:
                return [], R_(*ops) + [('s', 124)]
            if '_load' in op:
                return R_(ops[0]), R_(*ops[1:])
            if '_store' in op:
                data = ops[0] if op.startswith('buffer_') else ops[1]
                if data.n >= 3: i.wide_store_data = R_(data)
                return [], R_(*ops)
            if '_atomic' in op:
                if 'sc0' in i.mods:
                    if op.startswith('buffer_'): return R_(ops[0]), R_(*ops)
                    return R_(ops[0]), R_(*ops[1:])
                return [], R_(*ops)
            raise ValueError(op)
        if op.startswith('ds_'):
            i.kind = 'ds'
            if op.startswith('ds_read') or op.startswith('ds_bpermute') or op.startswith('ds_swizzle'):
                return R_(ops[0]), R_(*ops[1:])
            return [], R_(*ops)
        if op.startswith('s_load') or op in ('s_memtime', 's_memrealtime'):
            i.kind = 'smem'
            return R_(ops[0]), R_(*ops[1:])
        if op.startswith('s_'):
            i.kind = 'salu'
            if op.startswith('s_cmp') or op.startswith('s_bitcmp'):
                return [], R_(*ops)
            if op in ('s_barrier', 's_endpgm', 's_nop', 's_sleep', 's_setprio', 's_branch') or op.startswith('s_cbranch'):
                return [], []
            if op == 's_and_saveexec_b64':
                return R_(ops[0]) + EXEC.regs(), R_(ops[1]) + EXEC.regs()
            if op.startswith('s_addk') or op.startswith('s_mulk'):
                return R_(ops[0]), R_(ops[0])
            return R_(ops[0]), R_(*ops[1:])
        if op.startswith('v_'):
            i.kind = 'valu'
            if op in TRANS: i.kind = 'trans'
            if 'permlane' in op or op == 'v_swap_b32':
                return R_(ops[0], ops[1]), R_(ops[0], ops[1])
            if op.startswith('v_fmac') or op.startswith('v_dot2c') or op == 'v_writelane_b32':
                return R_(ops[0]), R_(*ops)
            if op.startswith('v_cndmask') and len(ops) == 3:
                return R_(ops[0]), R_(*ops[1:]) + VCC.regs()
            if '_co_' in op:
                return R_(ops[0], ops[1]), R_(*ops[2:])
            return R_(ops[0]), R_(*ops[1:])
        raise ValueError('unknown op ' + op)

    def _need(self, p, c):
        n = 0
        pv = p.kind in ('valu', 'trans')
        cv = c.kind in ('valu', 'trans')
        pd = set(p.defs)
        if pv:
            pvg = set(r for r in pd if r[0] != 's')
            psg = pd - pvg
            if pvg:
                cu = set(c.uses)
                if c.kind == 'mfma' and pvg & cu: n = max(n, 2)
                if cv and pvg & cu:
                    if p.kind == 'trans' and c.kind != 'trans': n = max(n, 1)
                    if p.kind == 'trans' and c.kind == 'trans': n = max(n, 1)
                    if '_dpp' in c.op or 'permlane' in c.op: n = max(n, 2)
                    if 'readlane' in c.op or 'readfirstlane' in c.op: n = max(n, 1)
            if psg:
                cu = set(c.uses)
                if psg & cu:
                    if c.kind == 'vmem': n = max(n, 5)
                    elif cv:
                        n = max(n, 4 if ('readlane' in c.op or 'writelane' in c.op) else 2)
                    elif c.kind == 'mfma': n = max(n, 4)
                    elif c.kind in ('salu', 'smem'): n = max(n, 2)
        if p.kind == 'mfma':
            D = pd
            if c.kind == 'mfma':
                cc = set(c.cuses)
                if D & set(c.abuses): n = max(n, p.passes + 4)
                if D & cc:
                    if cc == D and c.passes == p.passes: pass
                    else: n = max(n, p.passes + 2)
                elif D & set(c.defs):
                    n = max(n, p.passes + 4)
            elif c.kind in ('valu', 'trans', 'vmem', 'ds'):
                if D & (set(c.uses) | set(c.defs)): n = max(n, p.passes + 4)
            if cv and set(p.cuses) & set(c.defs): n = max(n, p.passes - 1)
        if p.wide_store_data:
            if set(p.wide_store_data) & set(c.defs): n = max(n, 2 if cv else 1)
        if p.kind == 'salu' and ('s', 124) in pd and c.kind == 'vmem' and ('s', 124) in c.uses:
            n = max(n, 1)
        if p.kind == 'salu' and (('s', 126) in pd or ('s', 127) in pd) and ('_dpp' in c.op or 'permlane' in c.op):
            n = max(n, 1)
        return n

    def finish(self):
        out = []
        WIN = 14
        for c in self.ins:
            if c.kind == 'reset':
                out.append(c); continue
            if c.kind in ('raw', 'label'):
                out.append(c); continue
            need = 0; dist = 0; j = len(out) - 1; seen = 0
            while j >= 0 and dist < WIN:
                p = out[j]; j -= 1
                if p.kind == 'reset': break
                if p.kind in ('raw', 'label'): continue
                w = self._need(p, c)
                if w > dist: need = max(need, w - dist)
                counts = p.region in (0, c.region)
                if counts:
                    dist += (p.nopn if p.op == 's_nop' and hasattr(p, 'nopn') else 1)
            while need > 0:
                k = min(need, 16)
                nop = NopInst(k); nop.region = c.region
                out.append(nop); need -= k
            out.append(c)
        return '\n'.join(('' if i.kind in ('label', 'reset') else '\t') + i.text for i in out) + '\n'

class NopInst(Inst):
    __slots__ = ('nopn',)
    def __init__(s, k):
        super().__init__()
        s.op = 's_nop'; s.kind = 'salu'; s.nopn = k; s.text = 's_nop %d' % (k - 1)
```

```python
from asmlib import *

NAME = 'sequential_preLN__spectral_gfnet__mixer_channel_mlp__prompt'

ZT = 0x000000; ZT_SZ = 129 * 16384
WT = 0x208000; WT_SZ = 129 * 16384
QT = 0x410000; QT_SZ = 0x200000
HH = 0x610000; HH_SZ = 0x200000
U2 = 0x810000; U2_SZ = 0x200000
W1S = 0xA10000; W1S_SZ = 0x1C0000
W2S = 0xBD0000; W2S_SZ = 0x1C0000
H1 = 0xD90000; H1_SZ = 0x700000
CNT = 0x1490000; CNT_SZ = 0x30000
STAMP = 0x14D0000; STAMP_SZ = 0x100000

P_X, P_WR, P_WI, P_BX, P_W1, P_B1, P_W2, P_B2 = [s(4 + 2 * i, 2) for i in range(8)]
P_OUT, P_DBG, P_WS = s(20, 2), s(22, 2), s(24, 2)

MF16 = 'v_mfma_f32_16x16x32_bf16'
MF32 = 'v_mfma_f32_32x32x16_bf16'

class Alloc:
    def __init__(self, kind, start, end):
        self.k, self.s, self.e = kind, start, end
        self.used = set(); self._p = start
    @property
    def p(self): return self._p
    @p.setter
    def p(self, x):
        self.used = set(r for r in self.used if r < x); self._p = x
        self.used |= set(range(self.s, x))
    def __call__(self, n=1, align=None):
        if align is None: align = 2 if n >= 2 else 1
        i = (self.s + align - 1) // align * align
        while any(r in self.used for r in range(i, i + n)): i += align
        assert i + n <= self.e, 'out of regs %s %d' % (self.k, i + n)
        self.used |= set(range(i, i + n)); self._p = max(self._p, i + n)
        return R(self.k, i, n)
    def snapshot(self): return (set(self.used), self._p)
    def restore(self, sn): self.used, self._p = set(sn[0]), sn[1]
    def free(self, *rs):
        for r in rs:
            for k in range(r.i, r.i + r.n): self.used.discard(k)

def kernarg(a):
    a.I('s_load_dwordx16', s(4, 16), s(0, 2), 0)
    a.I('s_load_dwordx4', s(20, 4), s(0, 2), 64)
    a.I('s_load_dwordx2', s(24, 2), s(0, 2), 80)

def srd(a, d, base, off, size):
    assert d.n == 4 and d.i % 4 == 0
    if off:
        a.I('s_add_u32', d[0], base[0], off)
        a.I('s_addc_u32', d[1], base[1], 0)
    else:
        a.I('s_mov_b32', d[0], base[0])
        a.I('s_mov_b32', d[1], base[1])
    a.I('s_mov_b32', d[2], size)
    a.I('s_mov_b32', d[3], 0x20000)

def round_bf16(a, dst, src):
    a.I('v_cvt_pk_bf16_f32', dst, src, src)
    a.I('v_lshlrev_b32', dst, 16, dst)

def cvt(a, dst, lo, hi):
    a.I('v_cvt_pk_bf16_f32', dst, lo, hi)

def bload(a, dst, voff, srd_, soff=0, off=0, mods=''):
    n = dst.n
    op = {1: 'buffer_load_dword', 2: 'buffer_load_dwordx2', 4: 'buffer_load_dwordx4'}[n]
    assert 0 <= off < 4096
    m = 'offen' + (' offset:%d' % off if off else '') + (' ' + mods if mods else '')
    return a.I(op, dst, voff, srd_, soff, mods=m)

def bstore(a, src, voff, srd_, soff=0, off=0, mods=''):
    n = src.n
    op = {1: 'buffer_store_dword', 2: 'buffer_store_dwordx2', 4: 'buffer_store_dwordx4'}[n]
    assert 0 <= off < 4096
    m = 'offen' + (' offset:%d' % off if off else '') + (' ' + mods if mods else '')
    return a.I(op, src, voff, srd_, soff, mods=m)

def dma16(a, voff, srd_, soff=0, mods=''):
    m = 'offen' + (' ' + mods if mods else '') + ' lds'
    return a.I('buffer_load_dwordx4', voff, srd_, soff, mods=m)

def dsr(a, dst, addr, off=0):
    op = {1: 'ds_read_b32', 2: 'ds_read_b64', 4: 'ds_read_b128'}[dst.n]
    assert 0 <= off < 65536
    return a.I(op, dst, addr, mods=('offset:%d' % off if off else ''))

def dsw(a, addr, src, off=0):
    op = {1: 'ds_write_b32', 2: 'ds_write_b64', 4: 'ds_write_b128'}[src.n]
    assert 0 <= off < 65536
    return a.I(op, addr, src, mods=('offset:%d' % off if off else ''))

def wave_id(a, sdst, tmp):
    a.I('v_lshrrev_b32', tmp, 6, v(0))
    a.I('v_readfirstlane_b32', sdst, tmp)

def angles(a, n, ang, a0, st, C, S):
    for e in range(n):
        if e: a.I('v_add_f32', a0, a0, st)
        if C is not None: a.I('v_cos_f32', C[e], a0)
        if S is not None: a.I('v_sin_f32', S[e], a0)

def stamp(a, idx, srd_st, sbase, tmp_s, tmp_v, enable):
    if not enable: return
    a.I('s_memrealtime', tmp_s)
    a.wait_lg0()
    a.I('v_mov_b32', tmp_v[0], tmp_s[0])
    a.I('v_mov_b32', tmp_v[1], sbase)
    bstore(a, tmp_v[0], tmp_v[1], srd_st, 0, idx * 4)

def kd(name, nv, na, ns):
    acc = max(4, (nv + 3) // 4 * 4)
    tot = acc + na if na else nv
    return '''.section .rodata,"a"
.p2align 6
.amdhsa_kernel %s
  .amdhsa_next_free_vgpr %d
  .amdhsa_next_free_sgpr %d
  .amdhsa_accum_offset %d
  .amdhsa_group_segment_fixed_size 0
  .amdhsa_kernarg_size 88
  .amdhsa_user_sgpr_count 2
  .amdhsa_user_sgpr_kernarg_segment_ptr 1
  .amdhsa_system_sgpr_workgroup_id_x 1
  .amdhsa_float_denorm_mode_32 3
.end_amdhsa_kernel
.text
''' % (name, tot, min(102, ns), acc)

def khead(name):
    return '.text\n.globl %s\n.p2align 8\n.type %s,@function\n%s:\n' % (name, name, name)

def ln_reduce_pairs(a, S, Q, t):
    a.I('v_permlane32_swap_b32', S, Q)
    a.I('v_add_f32', S, S, Q)
    a.I('v_add_f32_dpp', S, S, S, mods='quad_perm:[1,0,3,2] row_mask:0xf bank_mask:0xf')
    a.I('v_add_f32_dpp', S, S, S, mods='row_ror:4 row_mask:0xf bank_mask:0xf')
    a.I('v_add_f32_dpp', S, S, S, mods='row_ror:8 row_mask:0xf bank_mask:0xf')
    a.I('v_mov_b32', t, S)
    a.I('v_permlane16_swap_b32', S, t)
    a.I('v_add_f32', S, S, t)
    a.I('v_mov_b32', Q, S)
    a.I('v_permlane32_swap_b32', S, Q)

class Stamps:
    def __init__(self, a, kidx, opt, vreg=255):
        self.a, self.k, self.on = a, kidx, bool(int(opt.get('stamp', 0)))
        self.v = v(vreg); self.map = None; self.op = 's_memtime' if int(opt.get('cyc', 0)) else 's_memrealtime'
    def __call__(self, idx):
        if not self.on: return
        if self.map is not None and idx in self.map:
            idx = self.map[idx]
            if idx is None: return
        assert idx < 15
        a = self.a
        a.I(self.op, s(98, 2)); a.wait_lg0()
        if idx == 0: a.I('v_mov_b32', self.v, -1)
        a.I('v_writelane_b32', self.v, s(98), idx)
    def flush(self, sW, nslots=None):
        if not self.on: return
        a = self.a
        a.wait_all()
        self.map = None
        self(14)
        q = s(92, 4)
        a.I('s_load_dwordx2', s(96, 2), s(0, 2), 80); a.wait_lg0()
        srd(a, q, s(96, 2), STAMP, STAMP_SZ)
        a.I('s_lshl_b32', s(96), s(2), 3); a.I('s_add_u32', s(96), s(96), sW); a.I('s_lshl_b32', s(96), s(96), 6)
        a.I('s_add_u32', s(96), s(96), self.k * 256 * 8 * 64)
        a.I('s_mov_b64', EXEC, 0xffff)
        a.I('v_and_b32', v(1), 15, v(0)); a.I('v_lshlrev_b32', v(1), 2, v(1))
        bstore(a, self.v, v(1), q, s(96), 0)

def w2_swizzle_issue(a, V, Sg, sTau, vL, sT):
    h = type('H', (), {})()
    srdS = Sg(4, 4); h.srdD = Sg(4, 4); sA = Sg(); sB = Sg(); sC = Sg(); so = Sg(8)
    vS = V(); h.vD = V(); h.IN = V(8); h.O = V(8); h.sTau = sTau; h.sD = sA; h.sel = so[0:2]
    a.I('v_lshrrev_b32', vS, 5, vL); a.I('v_and_b32', h.vD, 31, vL); a.I('v_lshlrev_b32', h.vD, 2, h.vD)
    a.I('v_lshl_add_u32', vS, vS, 12, h.vD); a.I('v_lshlrev_b32', h.vD, 4, vL)
    srd(a, srdS, P_W2, 0, 1792 * 1024); srd(a, h.srdD, P_WS, W2S, W2S_SZ)
    a.I('s_mul_i32', sC, sTau, 9363); a.I('s_lshr_b32', sC, sC, 20)
    a.I('s_mul_i32', sT, sC, 112); a.I('s_sub_u32', sA, sTau, sT)
    a.I('s_lshl_b32', sC, sC, 7)
    a.I('s_mul_i32', sB, sA, 4682); a.I('s_lshr_b32', sB, sB, 16)
    a.I('s_mul_i32', sT, sB, 14); a.I('s_sub_u32', sA, sA, sT)
    a.I('s_lshr_b32', sT, sB, 1); a.I('s_lshl_b32', sT, sT, 5)
    a.I('s_and_b32', sB, sB, 1); a.I('s_lshl_b32', sB, sB, 7); a.I('s_add_u32', sB, sB, sT)
    a.I('s_lshr_b32', sT, sA, 1); a.I('s_lshl_b32', sT, sT, 8); a.I('s_add_u32', sB, sB, sT)
    a.I('s_and_b32', sT, sA, 1); a.I('s_lshl_b32', sT, sT, 4); a.I('s_add_u32', sB, sB, sT)
    a.I('s_lshl_b32', sB, sB, 10); a.I('s_add_u32', sB, sB, sC)
    for e in range(8):
        a.I('s_add_u32', so[e], sB, (8 * (e // 4) + (e % 4)) * 1024)
        bload(a, h.IN[e], vS, srdS, so[e])
    return h

def w2_swizzle_finish(a, h, mods=''):
    a.I('s_lshl_b32', h.sD, h.sTau, 11)
    a.I('s_mov_b32', h.sel[0], 0x05040100); a.I('s_mov_b32', h.sel[1], 0x07060302)
    for p in range(4):
        a.I('v_perm_b32', h.O[p], h.IN[2 * p + 1], h.IN[2 * p], h.sel[0])
        a.I('v_perm_b32', h.O[4 + p], h.IN[2 * p + 1], h.IN[2 * p], h.sel[1])
    bstore(a, h.O[0:4], h.vD, h.srdD, h.sD, 0, mods); bstore(a, h.O[4:8], h.vD, h.srdD, h.sD, 1024, mods)

def touch(a, srd_, vP, sBase, n, PF, sT):
    for e in range(n):
        if e: a.I('s_add_u32', sT, sBase, 8192 * e)
        bload(a, PF[e % len(PF)], vP, srd_, sT if e else sBase)
```

```python
from common import *

LDS_K1 = 8 * 2064

def gen_k1(a, L, opt):
    name = L
    V = Alloc('v', 1, 255); Sg = Alloc('s', 26, 92)
    ST = Stamps(a, 0, opt)
    a.reset_state()
    ST(0)
    a.I('s_cmp_ge_u32', s(2), 256)
    a.I('s_cbranch_scc1', L + '_end')
    kernarg(a)
    sW = Sg(); sXcd = Sg(); sIdx = Sg(); sT = Sg(); sT2 = Sg()
    vL = V(); vN = V(); vG = V(); t0 = V(); t1 = V()
    wave_id(a, sW, t0)
    a.I('v_and_b32', vL, 63, v(0))
    a.I('s_and_b32', sXcd, s(2), 7)
    a.I('s_lshr_b32', sIdx, s(2), 3)
    a.I('s_cmp_ge_u32', sIdx, 16)
    a.I('s_cbranch_scc1', L + '_helper')
    mark_v, mark_s = V.p, Sg.p
    srdX = Sg(4, 4); srdZ = Sg(4, 4)
    sU = Sg(); sRow = Sg()
    a.I('s_lshl_b32', sU, sXcd, 4); a.I('s_add_u32', sU, sU, sIdx)
    a.I('s_and_b32', sT, sU, 3); a.I('s_lshl_b32', sT, sT, 4)
    a.I('s_lshl_b32', sT2, sW, 1); a.I('s_add_u32', sT, sT, sT2); a.I('s_lshl_b32', sT, sT, 5)
    a.I('s_lshr_b32', sT2, sU, 2); a.I('s_add_u32', sT, sT, sT2); a.I('s_lshl_b32', sRow, sT, 10)
    vOff = V()
    a.I('v_and_b32', vN, 15, vL); a.I('v_lshrrev_b32', vG, 4, vL)
    a.I('v_bfe_u32', t0, vL, 1, 1); a.I('v_lshlrev_b32', vOff, 15, t0)
    a.I('v_lshl_add_u32', vOff, vG, 5, vOff)
    a.I('v_bfe_u32', t0, vL, 2, 2); a.I('v_lshl_add_u32', vOff, t0, 3, vOff)
    a.I('v_and_b32', t0, 1, vL); a.I('v_lshl_add_u32', vOff, t0, 2, vOff)
    srd(a, srdX, P_X, 0, 2048 * 1024)
    X = V(8)
    for j in range(8): hx = bload(a, X[j], vOff, srdX, sRow, 128 * j)
    srd(a, srdZ, P_WS, ZT, ZT_SZ)
    fN = V(); fG = V(); a0 = V(); st = V(); C = V(8); S_ = V(8)
    a.I('v_cvt_f32_u32', fN, vN); a.I('v_cvt_f32_u32', fG, vG)
    sM0 = Sg(2); sLo = Sg(2); sQ0 = Sg(2)
    a.I('v_cmp_eq_u32', sM0, 0, vN)
    a.I('v_cmp_gt_u32', sLo, 8, vN)
    a.I('s_mov_b64', sQ0, 0xffff)
    fNG = V()
    a.I('v_mul_f32', fNG, fN, fG)
    B1r = V(4); B1i = V(4)
    a.I('v_mul_f32', a0, 1.0 / 32, fNG); a.I('v_mul_f32', st, 0.125, fN)
    angles(a, 8, None, a0, st, C, S_)
    a.I('v_and_b32', t0, 1, vG); a.I('v_mul_u32_u24', t0, 0x8000, t0); a.I('v_lshl_or_b32', t0, t0, 16, t0)
    a.I('v_or_b32', t0, 0x3f803f80, t0)
    for jj in range(4):
        cvt(a, B1r[jj], C[2 * jj], C[2 * jj + 1])
        cvt(a, B1i[jj], Neg(S_[2 * jj]), Neg(S_[2 * jj + 1]))
        a.I('v_cndmask_b32', B1i[jj], B1i[jj], t0, sM0)
    TC = V(4); TS = V(4)
    a.I('v_mul_f32', a0, 1.0 / 128, fNG); a.I('v_mul_f32', st, 1.0 / 512, fN)
    angles(a, 4, None, a0, st, TC, TS)
    B2r = V(4); B2i = V(4); B2sr = V(4); B2si = V(4)
    a.I('v_mul_f32', a0, 0.25, fNG); a.I('v_mul_f32', st, 1.0 / 16, fN)
    angles(a, 4, None, a0, st, C, S_)
    a.I('v_mov_b32', t1, 0x80008000)
    a.I('v_cndmask_b32', t0, t1, 0, sLo)
    a.I('v_xor_b32', t1, t1, t0)
    for h in range(2):
        cvt(a, B2r[h], C[2 * h], C[2 * h + 1]); cvt(a, B2r[2 + h], S_[2 * h], S_[2 * h + 1])
        a.I('v_xor_b32', B2i[h], B2r[2 + h], t1)
        a.I('v_xor_b32', B2i[2 + h], B2r[h], t0)
    a.I('v_add_f32', t0, fN, fN); a.I('v_add_f32', t1, -15.0, t0); a.I('v_cndmask_b32', t0, t1, t0, sLo)
    a.I('v_mul_f32', st, 1.0 / 32, t0); a.I('v_mul_f32', a0, fG, st); a.I('v_mul_f32', a0, 4.0, a0)
    angles(a, 4, None, a0, st, C, S_)
    a.I('v_mov_b32', t1, 0xbf803f80)
    for h in range(2):
        cvt(a, t0, C[2 * h], C[2 * h + 1])
        a.I('v_cndmask_b32', B2sr[h], 0, t0, sLo); a.I('v_cndmask_b32', B2sr[2 + h], t0, 0, sLo)
        cvt(a, t0, Neg(S_[2 * h]), Neg(S_[2 * h + 1]))
        a.I('v_cndmask_b32', t0, t0, t1, sM0)
        a.I('v_cndmask_b32', B2si[h], 0, t0, sLo); a.I('v_cndmask_b32', B2si[2 + h], t0, 0, sLo)
    WA = V(4)
    a.I('s_mul_i32', sT, sW, 2064)
    a.I('v_lshl_add_u32', t1, vG, 7, sT)
    for i in range(4):
        a.I('v_add_u32', t0, i, vN); a.I('v_and_b32', t0, 15, t0)
        a.I('v_lshl_add_u32', WA[i], t0, 3, t1)
        if i: a.I('v_add_u32', WA[i], 512 * i, WA[i])
    RA = V(2); vZ = V(); vK1 = V(); vNn = V()
    a.I('v_lshrrev_b32', vZ, 2, vL)
    def sigma_addr(dst, k1, nn):
        a.I('v_and_b32', t0, 3, k1)
        a.I('v_add_u32', t1, nn, t0); a.I('v_and_b32', t1, 15, t1)
        a.I('v_lshl_add_u32', t1, t0, 6, t1)
        a.I('v_lshrrev_b32', t0, 2, k1); a.I('v_lshl_add_u32', t1, t0, 4, t1)
        a.I('v_and_b32', t0, 3, vL); a.I('v_mul_u32_u24', t0, 4128, t0)
        a.I('v_lshl_add_u32', dst, t1, 3, t0)
    a.I('v_mov_b32', vNn, sW)
    sigma_addr(RA[0], vZ, vNn)
    a.I('v_cmp_eq_u32', VCC, 0, vZ)
    a.I('v_sub_u32', vK1, 16, vZ); a.I('v_and_b32', vK1, 15, vK1)
    a.I('s_sub_u32', sT, 15, sW); a.I('s_add_u32', sT2, sW, 8)
    a.I('v_mov_b32', vNn, sT); a.I('v_mov_b32', t0, sT2)
    a.I('v_cndmask_b32', vNn, vNn, t0, VCC)
    sigma_addr(RA[1], vK1, vNn)
    vZo = V(); sZo = Sg(); sZo1 = Sg()
    a.I('v_lshrrev_b32', t0, 3, vL); a.I('v_and_b32', t1, 7, vL)
    a.I('v_lshlrev_b32', t1, 4, t1); a.I('v_lshl_add_u32', vZo, t0, 14, t1)
    a.I('s_lshl_b32', sZo, sW, 18); a.I('s_lshl_b32', sT, sU, 7); a.I('s_add_u32', sZo, sZo, sT)
    a.I('s_add_u32', sZo1, sZo, 8 * 16384)
    ST(1)
    a.wait(hx)
    ST(2)
    Ssum = V(); Q = V(); ones = V()
    a.I('v_mov_b32', ones, 0x3f803f80)
    a.I('v_dot2_f32_bf16', Ssum, X[0], ones, 0); a.I('v_dot2_f32_bf16', Q, X[0], X[0], 0)
    for j in range(1, 8):
        a.I('v_dot2_f32_bf16', Ssum, X[j], ones, Ssum); a.I('v_dot2_f32_bf16', Q, X[j], X[j], Q)
    a.I('s_nop', 2)
    xf = V(16)
    ln_reduce_pairs(a, Ssum, Q, t0)
    for j in range(8):
        a.I('v_lshlrev_b32', xf[2 * j], 16, X[j]); a.I('v_and_b32', xf[2 * j + 1], 0xffff0000, X[j])
    a.I('v_mul_f32', Ssum, 1.0 / 512, Ssum); a.I('v_mul_f32', Q, 1.0 / 512, Q)
    a.I('v_fma_f32', Q, Neg(Ssum), Ssum, Q); a.I('v_max_f32', Q, 0, Q)
    round_bf16(a, Ssum, Ssum); round_bf16(a, Q, Q)
    a.I('v_add_f32', Q, 1e-5, Q); round_bf16(a, Q, Q)
    a.I('v_sqrt_f32', Q, Q); round_bf16(a, Q, Q)
    a.I('v_rcp_f32', Q, Q)
    a.I('v_mul_f32', Ssum, Ssum, Q)
    for e in range(16): a.I('v_fma_f32', xf[e], xf[e], Q, Neg(Ssum))
    P = V(8)
    for b in range(2):
        for jj in range(4): cvt(a, P[4 * b + jj], xf[4 * jj + b], xf[4 * jj + 2 + b])
    D = V(16)
    for b in range(2):
        a.I(MF16, D[8 * b:8 * b + 4], P[4 * b:4 * b + 4], B1r, 0)
        a.I(MF16, D[8 * b + 4:8 * b + 8], P[4 * b:4 * b + 4], B1i, 0)
    A2 = V(8); tr = xf[0:4]; ti = xf[4:8]
    D2 = V(32)
    for r in range(2):
        for db in range(2):
            for b in range(2):
                e = 2 * db + b; Tr = D[8 * b + 2 * r + db]; Ti = D[8 * b + 4 + 2 * r + db]
                a.I('v_mul_f32', tr[e], Tr, TC[e]); a.I('v_mul_f32', ti[e], Ti, TC[e])
                a.I('v_fmac_f32', tr[e], Ti, TS[e]); a.I('v_fma_f32', ti[e], Neg(Tr), TS[e], ti[e])
        A = A2[4 * r:4 * r + 4]
        cvt(a, A[0], tr[0], tr[1]); cvt(a, A[1], tr[2], tr[3]); cvt(a, A[2], ti[0], ti[1]); cvt(a, A[3], ti[2], ti[3])
        o = 16 * r
        a.I(MF16, D2[o:o + 4], A, B2r, 0); a.I(MF16, D2[o + 4:o + 8], A, B2i, 0)
        a.I(MF16, D2[o + 8:o + 12], A, B2sr, 0); a.I(MF16, D2[o + 12:o + 16], A, B2si, 0)
    O = xf[8:16]
    for i in (1, 2, 3, 0):
        if i == 0:
            for r in range(2):
                for c in range(2):
                    a.I('v_cndmask_b32', D2[16 * r + 4 * c], D2[16 * r + 4 * c], D2[16 * r + 8 + 4 * c], sQ0)
        cvt(a, O[2 * i], D2[i], D2[16 + i]); cvt(a, O[2 * i + 1], D2[4 + i], D2[20 + i])
        dsw(a, WA[i], O[2 * i:2 * i + 2])
    ST(3)
    a.wait_lg0()
    a.barrier()
    ST(4)
    for it in range(2):
        dsr(a, P[4 * it:4 * it + 2], RA[it], 0); dsr(a, P[4 * it + 2:4 * it + 4], RA[it], 2064)
    zm = 'sc1' if int(opt.get('k1sc1', 0)) else ''
    bstore(a, P[0:4], vZo, srdZ, sZo, 0, zm); bstore(a, P[4:8], vZo, srdZ, sZo1, 0, zm)
    a.I('s_cmp_lg_u32', sW, 0)
    a.I('s_cbranch_scc1', L + '_nosp')
    a.begin_cond()
    a.I('s_mov_b64', EXEC, 15)
    X8 = xf[0:8]
    for h in range(2):
        a.I('v_mov_b32', X8[4 * h], P[h]); a.I('v_mov_b32', X8[4 * h + 1], 0); a.I('v_mov_b32', X8[4 * h + 2], P[2 + h]); a.I('v_mov_b32', X8[4 * h + 3], 0)
    a.I('s_add_u32', sT, sZo, 128 * 16384)
    bstore(a, X8[0:4], vZo, srdZ, sT, 0, zm); bstore(a, X8[4:8], vZo, srdZ, sT, 64, zm)
    a.I('s_mov_b64', EXEC, -1)
    a.end_cond()
    a.label(L + '_nosp')
    ST(5)
    ST.flush(sW, 6)
    a.I('s_endpgm')
    maxv = V.p
    a.reset_state()
    a.label(L + '_helper')
    V.p, Sg.p = mark_v, mark_s
    sHb = Sg(); srdC = Sg(4, 4)
    a.I('s_sub_u32', sHb, sIdx, 16); a.I('s_lshl_b32', sHb, sHb, 3); a.I('s_add_u32', sHb, sHb, sXcd)
    a.I('s_cmp_lg_u32', sW, 0)
    a.I('s_cbranch_scc1', L + '_hw2')
    m2v, m2s = V.p, Sg.p
    srdR = Sg(4, 4); srdI = Sg(4, 4); srdW = Sg(4, 4)
    sJp = Sg(); sQ = Sg(); sBase = Sg(); sDst = Sg(); so = Sg(8)
    a.I('s_lshr_b32', sJp, sHb, 2); a.I('s_and_b32', sQ, sHb, 3)
    a.I('s_lshl_b32', sT, sJp, 1); a.I('s_lshl_b32', sT2, sQ, 8); a.I('s_add_u32', sT, sT, sT2); a.I('s_mul_i32', sBase, sT, 514)
    for tj in range(2):
        for rho in range(4):
            a.I('s_add_u32', so[4 * tj + rho], sBase, (1024 * tj + 64 * rho) * 514)
    vK = V(); vH = V(); vS = V(); vD = V(); vD0 = V(); vS2 = V(); vD2 = V()
    a.I('v_and_b32', vK, 31, vL); a.I('v_lshrrev_b32', vH, 5, vL)
    a.I('v_mul_u32_u24', vS, 514, vH); a.I('v_lshl_add_u32', vS, vK, 4, vS)
    a.I('v_mul_u32_u24', vS2, 514, vL); a.I('v_add_u32', vS2, 512, vS2)
    a.wait_lg0()
    srd(a, srdR, P_WR, 0, 2048 * 514); srd(a, srdI, P_WI, 0, 2048 * 514)
    WRr = V(32, 4); WIr = V(32, 4); WR2 = V(8); WI2 = V(8); OB = V(16, 4)
    for e in range(8):
        bload(a, WRr[4 * e:4 * e + 4], vS, srdR, so[e]); bload(a, WIr[4 * e:4 * e + 4], vS, srdI, so[e])
    a.I('s_mov_b64', EXEC, 3)
    for e in range(8):
        a.I('buffer_load_ushort', WR2[e], vS2, srdR, so[e], mods='offen')
        a.I('buffer_load_ushort', WI2[e], vS2, srdI, so[e], mods='offen')
    a.I('s_mov_b64', EXEC, -1)
    srd(a, srdW, P_WS, WT, WT_SZ)
    a.I('v_lshlrev_b32', vD, 16, vK); a.I('v_lshl_add_u32', vD, vH, 5, vD)
    a.I('v_cmp_eq_u32', VCC, 0, vK); a.I('v_add_u32', t0, 128 * 16384, vD); a.I('v_cndmask_b32', vD0, vD, t0, VCC)
    a.I('v_lshlrev_b32', vD2, 5, vL); a.I('v_add_u32', vD2, 128 * 16384 + 64, vD2)
    a.I('s_lshr_b32', sT, sJp, 3); a.I('s_lshl_b32', sDst, sT, 12)
    a.I('s_and_b32', sT, sJp, 7); a.I('s_lshl_b32', sT2, sQ, 3); a.I('s_add_u32', sT, sT, sT2); a.I('s_lshl_b32', sT, sT, 7)
    a.I('s_add_u32', sDst, sDst, sT)
    sel = Sg(2); sD = Sg(4)
    a.I('s_mov_b32', sel[0], 0x05040100); a.I('s_mov_b32', sel[1], 0x07060302)
    for p in range(4): a.I('s_add_u32', sD[p], sDst, 16384 * p)
    ST(1)
    SM = 'sc1' if int(opt.get('k1sc1', 0)) else ''
    for cidx in range(8):
        O = OB[8 * (cidx % 2):8 * (cidx % 2) + 8]
        for e in range(8): a.I('v_perm_b32', O[e], WIr[4 * e + cidx // 2], WRr[4 * e + cidx // 2], sel[cidx % 2])
        if cidx == 0: ST(2)
        for h in range(2): bstore(a, O[4 * h:4 * h + 4], vD0 if cidx == 0 else vD, srdW, sD[cidx // 2], (cidx % 2) * 64 + 16 * h, SM)
    a.I('s_mov_b64', EXEC, 3)
    for e in range(8): a.I('v_lshl_or_b32', WR2[e], WI2[e], 16, WR2[e])
    bstore(a, WR2[0:4], vD2, srdW, sDst, 0, SM); bstore(a, WR2[4:8], vD2, srdW, sDst, 16, SM)
    a.I('s_mov_b64', EXEC, -1)
    ST.flush(sW)
    a.I('s_endpgm')
    maxv = max(maxv, V.p)
    a.reset_state()
    a.label(L + '_hw2')
    V.p, Sg.p = m2v, m2s
    a.wait_lg0()
    sTau = Sg()
    a.I('s_mul_i32', sTau, sHb, 7); a.I('s_add_u32', sTau, sTau, sW); a.I('s_sub_u32', sTau, sTau, 1)
    sw = int(opt.get('sw_in', 1)) == 1
    if sw: H = w2_swizzle_issue(a, V, Sg, sTau, vL, sT)
    PF = V(4); vP = V(); sB = Sg()
    if opt.get('clear_cnt'):
        srd(a, srdC, P_WS, CNT, CNT_SZ)
        Z4 = V(4); vZ = V()
        for e in range(4): a.I('v_mov_b32', Z4[e], 0)
        a.I('v_subrev_u32', t0, 64, v(0)); a.I('v_lshlrev_b32', vZ, 4, t0); a.I('v_mov_b32', t1, 0x10000000)
        a.I('v_cmp_gt_u32', VCC, 96, t0); a.I('v_cndmask_b32', vZ, t1, vZ, VCC)
        a.I('s_mul_i32', sT, sHb, 1536)
        bstore(a, Z4, vZ, srdC, sT)
    if int(opt.get('pf_code', 0)):
        pc = Sg(2)
        a.I('s_getpc_b64', pc)
        a.label(L + '_pc')
        a.raw('s_add_u32 s%d, s%d, %s-%s' % (pc.i, pc.i, opt['code_lo'], L + '_pc'))
        a.raw('s_addc_u32 s%d, s%d, 0' % (pc.i + 1, pc.i + 1))
        srd(a, srdC, pc, 0, 0)
        a.raw('s_mov_b32 s%d, %s-%s' % (srdC.i + 2, opt['code_hi'], opt['code_lo']))
        a.I('v_subrev_u32', t0, 192, v(0)); a.I('v_lshlrev_b32', vP, 7, t0); a.I('v_mov_b32', t1, 0x10000000)
        a.I('v_cmp_gt_u32', VCC, 16, t0); a.I('v_cndmask_b32', vP, t1, vP, VCC)
        a.I('s_sub_u32', sB, sIdx, 16); a.I('s_lshl_b32', sB, sB, 11)
        bload(a, PF[0], vP, srdC, sB)
    ST(1)
    hi1 = int(opt.get('k1_w1_hi', 0))
    if hi1:
        n = -(-hi1 // (112 * 8))
        if sw: a.wait(a.pend[('v', H.IN[7].i)])
        srd(a, srdC, P_W1, 0, hi1 * 1024)
        a.I('v_lshlrev_b32', vP, 7, vL)
        a.I('s_sub_u32', sB, sIdx, 16); a.I('s_mul_i32', sB, sB, 7); a.I('s_add_u32', sB, sB, sW); a.I('s_sub_u32', sB, sB, 1); a.I('s_mul_i32', sB, sB, n * 8192)
        touch(a, srdC, vP, sB, n, PF[1:4], sT)
    if sw: w2_swizzle_finish(a, H, 'sc1' if int(opt.get('k1sc1', 0)) else '')
    ST(2)
    ST.flush(sW)
    a.label(L + '_end')
    a.I('s_endpgm')
    maxv = max(maxv, V.p)
    return dict(name=name, grid=256, block=512, lds=LDS_K1, nv=maxv, na=0, ns=102)
```

```python
from common import *
from k2 import cmul, pack_tuples

LDS_K2 = 32768

def fb_consts(a, c, V):
    vN, vG, sV, sT, t0 = c.vN, c.vG, c.sV, c.sT, c.t0
    fN = V(); fG4 = V(); fJ = V(); a0 = V(); st = V(); C = V(4); S_ = V(4); sg = V(); fV = V()
    a.I('v_cvt_f32_u32', fN, vN); a.I('v_cvt_f32_u32', fG4, vG); a.I('v_mul_f32', fG4, 4.0, fG4)
    a.I('s_lshl_b32', sT, sV, 4); a.I('v_add_u32', t0, sT, vN); a.I('v_cvt_f32_u32', fJ, t0)
    a.I('v_cvt_f32_u32', fV, sT); a.I('v_add_f32', fV, fV, fG4)
    a.I('v_and_b32', sg, 1, vN); a.I('v_mul_u32_u24', sg, 0x8000, sg); a.I('v_lshl_or_b32', sg, sg, 16, sg)
    c.B1 = B1 = V(32); c.A2 = A2 = V(32); c.T1c = V(8); c.T1s = V(8); c.T2c = V(8); c.T2s = V(8)
    def p1():
        a.I('v_mul_f32', st, 1.0 / 64, fJ)
        for aa in range(2):
            a.I('v_add_f32', a0, float(16 * aa), fG4); a.I('v_mul_f32', a0, a0, st)
            angles(a, 4, None, a0, st, C, S_)
            pack_tuples(a, B1[8 * aa:8 * aa + 4], B1[8 * aa + 4:8 * aa + 8], C, S_)
        for e in range(16): a.I('v_xor_b32', B1[16 + e], B1[e], sg)
    def p2():
        a.I('v_mul_f32', st, 1.0 / 2048, fJ)
        for t in range(2):
            a.I('v_add_f32', a0, float(16 * t), fG4); a.I('v_mul_f32', a0, a0, st)
            angles(a, 4, None, a0, st, c.T1c[4 * t:4 * t + 4], c.T1s[4 * t:4 * t + 4])
    def p3():
        a.I('v_mul_f32', st, 1.0 / 32, fN); a.I('v_mul_f32', a0, fG4, st)
        angles(a, 4, None, a0, st, C, S_)
        pack_tuples(a, A2[0:4], A2[4:8], C, S_)
        for e in range(8):
            a.I('v_xor_b32', A2[8 + e], A2[e], sg)
            a.I('v_xor_b32', A2[16 + e], 0x80000000, A2[e])
            a.I('v_xor_b32', A2[24 + e], A2[16 + e], sg)
    def p4():
        for t in range(2):
            a.I('v_add_f32', st, float(16 * t), fN); a.I('v_mul_f32', st, 1.0 / 2048, st); a.I('v_mul_f32', a0, fV, st)
            angles(a, 4, None, a0, st, c.T2c[4 * t:4 * t + 4], c.T2s[4 * t:4 * t + 4])
    c.tmp = (C, S_, a0, st, fN, fG4, fJ, sg, fV)
    return p1, p2, p3, p4

def fb_main(a, c, V, AA, ST, lds0=0, stm='', ldm=''):
    B1, A2 = c.B1, c.A2
    ZF = AA(64); D = V(32); D2 = V(32); TB = V(16); tr = c.tmp[0]; ti = c.tmp[1]; wr = V(4); wi = V(4)
    ST(1)
    a.wait(*c.hz)
    ST(2)
    a.barrier()
    ST(3)
    zf = lambda p, t, aa: ZF[32 * p + 16 * t + 4 * aa:32 * p + 16 * t + 4 * aa + 4]
    d_ = lambda X, p, t, cc: X[16 * p + 8 * t + 4 * cc:16 * p + 8 * t + 4 * cc + 4]
    for p in range(2):
        for t in range(2):
            for aa in range(4): dsr(a, zf(p, t, aa), c.vRd[p], lds0 + aa * 4096 + t * 2048)
    def M1(p):
        for t in range(2):
            for aa in range(4):
                for cc in range(2):
                    d = d_(D, p, t, cc)
                    a.I(MF16, d, zf(p, t, aa), B1[8 * aa + 4 * cc:8 * aa + 4 * cc + 4], d if aa else 0)
    def V1(p):
        for t in range(2):
            X = D[16 * p + 8 * t:16 * p + 8 * t + 8]
            for e in range(4): cmul(a, tr[e], ti[e], X[e], X[4 + e], c.T1c[4 * t + e], c.T1s[4 * t + e], False)
            B = TB[8 * p + 4 * t:8 * p + 4 * t + 4]
            cvt(a, B[0], tr[0], tr[1]); cvt(a, B[1], ti[0], ti[1]); cvt(a, B[2], tr[2], tr[3]); cvt(a, B[3], ti[2], ti[3])
    def M2(p):
        for t in range(2):
            B = TB[8 * p + 4 * t:8 * p + 4 * t + 4]
            for tj in range(2):
                for cc in range(2):
                    d = d_(D2, p, tj, cc); o = 16 * tj + 8 * t + 4 * cc
                    a.I(MF16, d, A2[o:o + 4], B, d if t else 0)
    def V2(p):
        for tj in range(2):
            X = D2[16 * p + 8 * tj:16 * p + 8 * tj + 8]
            for e in range(4):
                w = c.Wp[8 * p + 4 * tj + e]
                a.I('v_lshlrev_b32', wr[e], 16, w); a.I('v_and_b32', wi[e], 0xffff0000, w)
            for e in range(4):
                xr = X[e]; xi = X[4 + e]
                a.I('v_mul_f32', tr[e], xr, wr[e]); a.I('v_mul_f32', ti[e], xr, wi[e])
                a.I('v_fma_f32', tr[e], Neg(xi), wi[e], tr[e]); a.I('v_fmac_f32', ti[e], xi, wr[e])
            B = TB[8 * p + 4 * tj:8 * p + 4 * tj + 4]
            cvt(a, B[0], ti[0], ti[1]); cvt(a, B[1], tr[0], tr[1]); cvt(a, B[2], ti[2], ti[3]); cvt(a, B[3], tr[2], tr[3])
    def M3(p):
        for tj in range(2):
            B = TB[8 * p + 4 * tj:8 * p + 4 * tj + 4]
            for ts in range(2):
                for cc in range(2):
                    d = d_(D, p, ts, cc); o = 16 * ts + 8 * tj + 4 * (1 - cc)
                    a.I(MF16, d, B, A2[o:o + 4], d if tj else 0)
    def V3(p):
        for ts in range(2):
            X = D[16 * p + 8 * ts:16 * p + 8 * ts + 8]
            for e in range(4): cmul(a, tr[e], ti[e], X[e], X[4 + e], c.T2c[4 * ts + e], c.T2s[4 * ts + e], True)
            B = TB[8 * p + 4 * ts:8 * p + 4 * ts + 4]
            cvt(a, B[0], ti[0], ti[1]); cvt(a, B[1], tr[0], tr[1]); cvt(a, B[2], ti[2], ti[3]); cvt(a, B[3], tr[2], tr[3])
            dsw(a, c.vWr, B, lds0 + 16384 + (2 * p + ts) * 4096)
    C_ = a.capture
    M1(0)
    a.zip_emit(C_(lambda: M1(1)), C_(lambda: V1(0)))
    a.zip_emit(C_(lambda: M2(0)), C_(lambda: V1(1)))
    a.zip_emit(C_(lambda: M2(1)), C_(lambda: V2(0)))
    a.zip_emit(C_(lambda: M3(0)), C_(lambda: V2(1)))
    a.zip_emit(C_(lambda: M3(1)), C_(lambda: V3(0)))
    V3(1)
    ST(4)
    a.wait_lg0()
    a.barrier()
    ST(5)
    for p in range(2):
        for ts in range(2):
            for aa in range(4): dsr(a, zf(p, ts, aa), c.vL16, lds0 + 16384 + ((2 * p + ts) * 4 + aa) * 1024)
    def M4(p, ts):
        for aa in range(4):
            for cc in range(2):
                d = d_(D2, p, ts, cc); o = 8 * aa + 4 * (1 - cc)
                a.I(MF16, d, B1[o:o + 4], zf(p, ts, aa), d if aa else 0)
    c.M4 = M4
    c.D2 = D2; c.TB = TB

def fb_store(a, c, L, stm=''):
    D2, TB, M4 = c.D2, c.TB, c.M4
    C_ = a.capture
    a.I('s_cmp_eq_u32', c.sP, 128)
    a.I('s_cbranch_scc1', L + '_spst')
    snap = a.snapshot()
    def out(p, ts):
        B = TB[8 * p + 4 * ts:8 * p + 4 * ts + 4]; d = D2[16 * p + 8 * ts:16 * p + 8 * ts + 8]
        cvt(a, B[0], d[0], d[1]); cvt(a, B[1], d[4], d[5]); cvt(a, B[2], d[2], d[3]); cvt(a, B[3], d[6], d[7])
        bstore(a, B, c.vQo if p else c.vQo0, c.srdQ, c.sQo[ts], 64 * p, stm)
    M4(0, 0); M4(0, 1); out(0, 0); M4(1, 0); out(0, 1); M4(1, 1); out(1, 0); out(1, 1)
    c.hq = a.vmq[-1]
    after = a.snapshot()
    a.I('s_branch', L + '_stend')
    a.reset_state()
    a.label(L + '_spst')
    a.restore(snap)
    for ts in range(2):
        M4(0, ts); M4(1, ts)
    for ts in range(2):
        B = TB[4 * ts:4 * ts + 4]; d0 = D2[8 * ts:8 * ts + 4]; d1 = D2[16 + 8 * ts:16 + 8 * ts + 4]
        cvt(a, B[0], d0[0], d0[1]); cvt(a, B[1], d1[0], d1[1]); cvt(a, B[2], d0[2], d0[3]); cvt(a, B[3], d1[2], d1[3])
        bstore(a, B, c.vQo, c.srdQ, c.sQo[ts], 0, stm)
    a.label(L + '_stend')
    a.restore(after)

def fb_issue(a, c, V, Sg, lds0=0, ldm=''):
    sT, t0, t1, vL, vN, vG, sV, sP = c.sT, c.t0, c.t1, c.vL, c.vN, c.vG, c.sV, c.sP
    srdZ = Sg(4, 4); srdW = Sg(4, 4); c.srdQ = Sg(4, 4); sSrc = Sg(); sWo = Sg(); sT2 = c.sT2
    vO = V(2); vWo = V(); c.Wp = V(16)
    a.I('v_lshrrev_b32', t0, 3, vL); a.I('v_lshlrev_b32', vO[0], 9, t0)
    a.I('v_and_b32', t0, 7, vL); a.I('v_xor_b32', t0, t0, vG); a.I('v_lshl_add_u32', vO[0], t0, 4, vO[0]); a.I('v_xor_b32', vO[1], 64, vO[0])
    a.I('s_lshl_b32', sSrc, sP, 14); a.I('s_lshl_b32', sT, sV, 7); a.I('s_add_u32', sSrc, sSrc, sT)
    a.I('v_lshrrev_b32', t0, 1, vL); a.I('v_and_b32', t1, 1, vL); a.I('v_lshlrev_b32', t1, 5, t1); a.I('v_lshl_add_u32', vWo, t0, 7, t1)
    a.I('s_lshl_b32', sWo, sP, 14); a.I('s_lshl_b32', sT, sV, 12); a.I('s_add_u32', sWo, sWo, sT)
    if hasattr(c, 'pre_issue'): c.pre_issue()
    srd(a, srdZ, P_WS, ZT, ZT_SZ)
    a.I('s_lshl_b32', sT2, sV, 12)
    c.hz = []
    for ii in range(4):
        a.I('s_add_u32', M0, sT2, lds0 + 1024 * ii); a.I('s_add_u32', sT, sSrc, 4096 * ii)
        c.hz.append(dma16(a, vO[ii & 1], srdZ, sT, ldm))
    srd(a, srdW, P_WS, WT, WT_SZ)
    for p in range(2):
        for h in range(2): bload(a, c.Wp[8 * p + 4 * h:8 * p + 4 * h + 4], vWo, srdW, sWo, 64 * p + 16 * h, ldm)
    srd(a, c.srdQ, P_WS, QT, QT_SZ)

def fb_addrs(a, c, V, Sg):
    sT, t0, t1, vL, vN, vG, sV, sP = c.sT, c.t0, c.t1, c.vL, c.vN, c.vG, c.sV, c.sP
    c.vRd = V(2); c.vWr = V(); c.vL16 = V(); c.vQo = V(); c.vQo0 = V(); c.sQo = Sg(2)
    a.I('v_lshrrev_b32', t0, 1, vN); a.I('v_xor_b32', t0, t0, vG); a.I('v_lshlrev_b32', t0, 4, t0)
    a.I('v_lshl_add_u32', c.vRd[0], vN, 7, t0); a.I('v_xor_b32', c.vRd[1], 64, c.vRd[0])
    a.I('v_lshlrev_b32', c.vL16, 4, vL); a.I('s_lshl_b32', sT, sV, 10); a.I('v_add_u32', c.vWr, sT, c.vL16)
    a.I('v_lshlrev_b32', c.vQo, 16, vN); a.I('v_lshl_add_u32', c.vQo, vG, 4, c.vQo)
    a.I('s_and_b32', sT, sP, 127); a.I('s_lshl_b32', sT, sT, 7); a.I('s_lshl_b32', c.sQo[0], sV, 14); a.I('s_add_u32', c.sQo[0], c.sQo[0], sT)
    a.I('s_add_u32', c.sQo[1], c.sQo[0], 64 * 16384)
    a.I('s_cmp_eq_u32', sP, 0); a.I('s_cselect_b32', sT, 0x10000000, 0); a.I('v_or_b32', c.vQo0, sT, c.vQo)

def gen_k2b(a, L, opt):
    V = Alloc('v', 1, 255); Sg = Alloc('s', 26, 92); AA = Alloc('a', 0, 256)
    ST = Stamps(a, 1, opt)
    O = lambda k, d: int(opt.get(k, d))
    a.reset_state()
    ST(0)
    a.I('s_cmp_ge_u32', s(2), 256)
    a.I('s_cbranch_scc1', L + '_end')
    kernarg(a)
    c = type('C', (), {})()
    c.sV = sW = Sg(); c.sT = sT = Sg(); c.sT2 = sT2 = Sg(); c.sP = s(2)
    c.vL = vL = V(); c.vN = V(); c.vG = V(); c.t0 = t0 = V(); c.t1 = t1 = V()
    wave_id(a, sW, t0)
    a.I('v_and_b32', vL, 63, v(0))
    a.I('s_cmp_ge_u32', s(2), 129)
    a.I('s_cbranch_scc1', L + '_helper')
    mark_v, mark_s = V.p, Sg.p
    a.I('v_and_b32', c.vN, 15, vL); a.I('v_lshrrev_b32', c.vG, 4, vL)
    p1, p2, p3, p4 = fb_consts(a, c, V)
    c.pre_issue = p1
    fb_issue(a, c, V, Sg)
    fb_addrs(a, c, V, Sg)
    p2(); p3(); p4()
    fb_main(a, c, V, AA, ST)
    fb_store(a, c, L, 'sc1' if O('k2sc1', 0) else '')
    ST(6)
    ST.flush(sW)
    a.I('s_endpgm')
    maxv = V.p
    a.reset_state()
    a.label(L + '_helper')
    V.p, Sg.p = mark_v, mark_s
    a.wait_lg0()
    sTau = Sg(); srdP = Sg(4, 4); vP = V(); PF = V(4); sB = Sg()
    a.I('v_lshlrev_b32', vP, 7, vL)
    sw = O('sw_in', 2) == 2
    Hs = []
    if sw:
        m = Sg.p
        for r in range(2):
            sTa = Sg()
            a.I('s_sub_u32', sTa, s(2), 129); a.I('s_lshl_b32', sTa, sTa, 2); a.I('s_add_u32', sTa, sTa, sW)
            a.I('s_min_u32', sTa, sTa, 447); a.I('s_lshl_b32', sTa, sTa, 1)
            if r: a.I('s_add_u32', sTa, sTa, 1)
            Hs.append(w2_swizzle_issue(a, V, Sg, sTa, vL, sT))
    a.I('s_lshr_b32', sB, s(2), 3); a.I('s_cmp_lt_u32', sB, 17)
    a.I('s_cbranch_scc1', L + '_nopf')
    a.begin_cond()
    a.I('s_sub_u32', sB, sB, 17); a.I('s_lshl_b32', sB, sB, 2); a.I('s_add_u32', sB, sB, sW)
    lo1 = O('k2_w1_lo', 0); hi1 = O('k2_w1_hi', 1792); hi2 = O('k2_w2_hi', 0)
    for (P, off, lo, hi) in ((P_W1, 0, lo1, hi1), (P_WS, W2S, 0, hi2)):
        if hi <= lo: continue
        n = -(-(hi - lo) // (60 * 8))
        srd(a, srdP, P, off, hi * 1024)
        a.I('s_mul_i32', sT2, sB, n * 8192); a.I('s_add_u32', sT2, sT2, lo * 1024)
        touch(a, srdP, vP, sT2, n, PF, sT)
    a.end_cond()
    a.label(L + '_nopf')
    ST(1)
    for H in Hs: w2_swizzle_finish(a, H, 'sc1' if O('k2sc1', 0) else '')
    ST(2)
    ST.flush(sW)
    a.label(L + '_end')
    a.I('s_endpgm')
    return dict(name=L, grid=256, block=256, lds=LDS_K2)
```

```python
from common import *
from k3 import ids, c1_issue, c1_consts_a, c1_consts_b, c1_main, c1_stores, gelu_ops, GC1, GC2, Ctx
from k3g import gelu_pk_ops, apoll_issue, apoll_check

CA = 0
CB = 256 * 128
CX = CB + 1024 * 128
SPIN = 1 << 16

def gen_k3h(a, L, opt):
    ST = Stamps(a, 2, opt, vreg=23)
    det = opt.get('det', '')
    O = lambda k, d: int(opt.get(k, d))
    Vp = Alloc('v', 1, 23); Sg = Alloc('s', 26, 92)
    a.reset_state()
    c = ids(a, L, Sg, Vp, ST)
    ST.map = {1: None, 2: 1, 3: None, 4: None, 5: 2}
    sW, sR, sM, sT, sT2, vL, t0, t1 = c.sW, c.sR, c.sM, c.sT, c.sT2, c.vL, c.t0, c.t1
    ACC = v(24, 64); BIAS = v(240, 16); BR = v(24, 8); ACC2 = v(24, 64)
    W2V = v(88, 96); RING = v(184, 32); TMP = v(216, 40)
    W1 = R('a', 0, 128); W2A = R('a', 128, 128)
    W2 = lambda n: W2A[4 * n:4 * n + 4] if n < 32 else W2V[4 * (n - 32):4 * (n - 32) + 4]
    V = Alloc('v', 88, 240)
    vL16 = Vp(); vSig = Vp(); vSigA = Vp(); vOne = Vp(); vBo = Vp(); vPa = Vp(); vPoll = Vp()
    AT = O('atomic', 1)
    sXc = Sg()
    if not AT: a.I('s_getreg_b32', sXc, 'hwreg(HW_REG_XCC_ID, 0, 4)')
    c1_consts_a(a, c, V, Sg)
    a.I('v_mov_b32', t0, 0x10000000)
    a.I('v_cmp_gt_u32', VCC, 16, vL); a.I('v_lshlrev_b32', t1, 7, vL); a.I('v_cndmask_b32', vSigA, t0, t1, VCC)
    a.I('v_cmp_gt_u32', VCC, 8, vL); a.I('v_lshlrev_b32', t1, 9, vL); a.I('v_cndmask_b32', vSig, t0, t1, VCC)
    a.I('v_cmp_gt_u32', VCC, 32, vL); a.I('v_lshlrev_b32', t1, 2, vL); a.I('v_cndmask_b32', vPa, t0, t1, VCC)
    if not AT:
        a.I('s_mul_i32', sT, sXc, sXc); a.I('s_lshl_b32', sT, sT, 8); a.I('s_add_u32', sT, sT, sXc); a.I('s_lshl_b32', sT, sT, 8)
        a.I('s_add_u32', sXc, sT, 1)
        a.I('v_mov_b32', vOne, sXc)
    c1_issue(a, c, V, Sg, qs=0x20000)
    srdC = Sg(4, 4); sCnt = s(6, 2); sPc = s(23); sAg = s(22)
    srd(a, srdC, P_WS, CNT, CNT_SZ)
    if not AT:
        a.I('s_cmp_lg_u32', sW, 0)
        a.I('s_cbranch_scc1', L + '_noxc')
        a.begin_cond()
        a.I('s_lshl_b32', sT, sR, 11); a.I('s_add_u32', sT, sT, CX)
        a.I('buffer_atomic_add', vOne, vSigA, srdC, sT, mods='offen sc1')
        a.end_cond()
        a.label(L + '_noxc')
    srdA = Sg(4, 4); srdB = Sg(4, 4)
    a.I('v_lshlrev_b32', vL16, 4, vL)
    a.I('v_lshrrev_b32', t0, 5, vL); a.I('v_lshlrev_b32', vBo, 3, t0)
    srd(a, srdB, P_B1, 0, 3584)
    a.I('s_lshl_b32', sT, sM, 8); a.I('s_lshl_b32', sT2, sW, 6); a.I('s_add_u32', sT, sT, sT2)
    for j in range(4): bload(a, BR[2 * j:2 * j + 2], vBo, srdB, sT, 16 * j)
    vW1 = Vp(); sSo = Sg(); sM0 = Sg(); hdma = []
    a.I('v_lshrrev_b32', t0, 4, vL); a.I('v_mul_u32_u24', vW1, 3584, t0)
    a.I('v_lshlrev_b32', t0, 2, t0); a.I('v_and_b32', t1, 15, vL); a.I('v_xor_b32', t0, t0, t1); a.I('v_lshl_add_u32', vW1, t0, 4, vW1)
    srd(a, srdA, P_W1, 0, 512 * 3584)
    a.I('s_cmp_ge_u32', sM, 14)
    a.I('s_cselect_b32', srdA[2], 0, 512 * 3584)
    a.I('s_mul_i32', sSo, sW, 14336); a.I('s_lshl_b32', sT, sM, 8); a.I('s_add_u32', sSo, sSo, sT)
    a.I('s_lshl_b32', sM0, sW, 10)
    def w1dma(i):
        a.I('s_add_u32', M0, sM0, 4096 * i)
        hdma.append(dma16(a, vW1, srdA, sSo))
        if i < 31: a.I('s_add_u32', sSo, sSo, 4 * 14336)
    srdW2 = c.srdX; srdH1 = c.srdQ; vWo = Vp(); sWo = Sg(); sTh = Sg(); sWg = [s(8), s(9)]; sOwn = Sg()
    a.I('s_mov_b32', sCnt[0], srdC[0]); a.I('s_mov_b32', sCnt[1], srdC[1])
    srd(a, srdW2, P_WS, W2S, W2S_SZ); srd(a, srdH1, P_WS, H1, H1_SZ)
    a.I('s_and_b32', sT, sW, 1); a.I('s_lshl_b32', sT, sT, 8); a.I('v_xor_b32', vWo, sT, vL16)
    a.I('s_lshr_b32', sTh, sM, 3)
    a.I('s_and_b32', sT, sM, 7); a.I('s_lshl_b32', sT, sT, 2); a.I('s_add_u32', sT, sT, sW); a.I('s_mul_i32', sWo, sT, 56 * 1024)
    a.I('s_mul_i32', sT, sTh, 28 * 1024); a.I('s_add_u32', sWg[0], sWo, sT)
    a.I('s_xor_b32', sT, sTh, 1); a.I('s_mul_i32', sT, sT, 28 * 1024); a.I('s_add_u32', sWg[1], sWo, sT)
    nw2 = [0]
    def w2load():
        n = nw2[0]; nw2[0] += 1; k = n % 28
        if k % 4 == 0: a.I('s_add_u32', sWo, sWg[n // 28], k * 1024)
        return bload(a, W2(n), vWo, srdW2, sWo, (k % 4) * 1024)
    for _ in range(O('w2_pre', 0)): w2load()
    n0 = O('dma0', 4)
    for i in range(n0): w1dma(i)
    c1_consts_b(a, c, V, Sg, 0x20000, 0x22000)
    for e in range(8):
        a.I('v_lshlrev_b32', BIAS[2 * e], 16, BR[e]); a.I('v_and_b32', BIAS[2 * e + 1], 0xffff0000, BR[e])
    a.I('s_lshl_b32', sOwn, sR, 4); a.I('s_add_u32', sOwn, sOwn, sM); a.I('s_lshl_b32', sOwn, sOwn, 7)
    if O('force_slow', 0): a.I('s_mov_b32', sXc, 0)
    if not AT: a.I('s_lshl_b32', sXc, sXc, 4)
    sTk = Sg(); sA = Sg(2); sCb = Sg(); sCol = Sg(); sHo = Sg(); sOo = Sg()
    a.I('s_lshl_b32', sTk, sR, 2); a.I('s_lshl_b32', sT, sTh, 1); a.I('s_add_u32', sTk, sTk, sT)
    for g in range(2):
        if g: a.I('s_xor_b32', sT2, sTh, 1)
        p = sT2 if g else sTh
        a.I('s_lshl_b32', sT, sTk, 2); a.I('s_add_u32', sT, sT, sW); a.I('s_lshl_b32', sT, sT, 1); a.I('s_add_u32', sT, sT, p)
        a.I('s_mul_i32', sA[g], sT, 14 * 1024)
    a.I('s_lshl_b32', sCb, sOwn, 2); a.I('s_lshl_b32', sT, sW, 7); a.I('s_add_u32', sCb, sCb, sT); a.I('s_add_u32', sCb, sCb, CB)
    a.I('s_and_b32', sCol, sM, 7); a.I('s_lshl_b32', sCol, sCol, 7); a.I('s_and_b32', sT, sW, 1); a.I('s_lshl_b32', sT, sT, 6); a.I('s_add_u32', sCol, sCol, sT)
    sCx = None if AT else Sg()
    if not AT: a.I('s_add_u32', sCx, sOwn, CX)
    a.bg = [lambda i=i: w1dma(i) for i in range(n0, 32)]
    c.hook_after_q = lambda: setattr(a, 'bg_every', O('dma_every', 12))
    if not AT: c.hook_mid = lambda: a.I('s_load_dword', sAg, sCnt, sCx, mods='glc')
    c.hook_before_st = lambda: setattr(a, 'bg_every', 0)
    c1_main(a, c, V, Sg, defer=True)
    ST.map = None
    a.I('v_mov_b32', vOne, 1)
    if not AT:
        a.wait_lg0()
        a.I('s_cmp_eq_u32', sAg, sXc)
        a.I('s_cbranch_scc1', L + 'f_go')
        a.I('s_mov_b32', sPc, SPIN)
        a.label(L + '_pollx')
        a.I('s_and_b32', sT, sAg, 255); a.I('s_cmp_ge_u32', sT, 16)
        a.I('s_cbranch_scc1', L + '_donex')
        a.I('s_load_dword', sAg, sCnt, sCx, mods='glc'); a.wait_lg0()
        a.I('s_sub_u32', sPc, sPc, 1); a.I('s_cmp_lg_u32', sPc, 0)
        a.I('s_cbranch_scc1', L + '_pollx')
        a.label(L + '_donex')
        a.I('s_cmp_eq_u32', sAg, sXc)
        a.I('s_cbranch_scc0', L + 's_go')
    snap = (a.snapshot(), Vp.snapshot(), Sg.snapshot(), list(a.bg), list(hdma))

    def body(L, fast):
        SM = '' if (fast and not O('usc1', 0)) else 'sc1'
        SM1 = 'sc1' if (not fast or O('h1sc1', 0)) else ''
        LM = '' if (fast and O('ldplain', 0) and not O('usc1', 0)) else 'sc1'
        LM1 = '' if (fast and O('ldplain', 0) and not O('h1sc1', 0)) else 'sc1'
        a.label(L + '_go')
        nw2[0] = O('w2_pre', 0)
        sPv = Sg(4, 4) if AT else None
        def vpoll_issue(soff):
            if AT: return apoll_issue(a, sCnt, soff, sPv)
            return bload(a, vPoll, vPa, srdC, soff, 0, 'sc1')
        def vpoll_check(tag, soff, mask, h=None):
            if AT:
                word, target = {0xffff: (0, 16), 0x7f: (0, 7), 0x7f00: (1, 7), 0x7f0000: (2, 7), 0x7f000000: (3, 7)}[mask]
                return apoll_check(a, L, tag, sCnt, soff, sPv, word, target, sPc)
            def test():
                a.I('v_cmp_ne_u32', VCC, 0, vPoll)
                a.I('s_and_b32', sT, VCC[0], mask); a.I('s_cmp_eq_u32', sT, mask)
                a.I('s_cbranch_scc1', L + '_done' + tag)
            test()
            a.I('s_mov_b32', sPc, SPIN)
            a.label(L + '_poll' + tag)
            a.raw('buffer_load_dword %s, %s, %s, %s offen sc1' % (vPoll, vPa, srdC, soff))
            a.raw('s_waitcnt vmcnt(0)')
            test()
            a.I('s_sub_u32', sPc, sPc, 1); a.I('s_cmp_lg_u32', sPc, 0)
            a.I('s_cbranch_scc1', L + '_poll' + tag)
            a.label(L + '_done' + tag)
        c1_stores(a, c, SM)
        for _ in range(O('dma_post', 6)):
            if a.bg: a.bg.pop(0)()
        for _ in range(O('w2_post', 0)): w2load()
        nw2_br = nw2[0]
        a.wait(c.ust)
        a.barrier()
        a.I('s_cmp_lg_u32', sW, 0)
        a.I('s_cbranch_scc1', L + '_nosig')
        a.begin_cond()
        a.I('s_lshl_b32', sT, sR, 11)
        if AT: a.I('buffer_atomic_add', vOne, vSigA, srdC, sT, mods='offen sc1')
        else:
            a.I('s_lshl_b32', sT2, sM, 2); a.I('s_add_u32', sT, sT, sT2)
            bstore(a, vOne, vSigA, srdC, sT, 0, SM)
        a.end_cond()
        a.label(L + '_nosig')
        ST(3)
        a.I('s_cmp_ge_u32', sM, 14)
        a.I('s_cbranch_scc1', L + '_nog1')
        snap_br = a.snapshot()
        a.bg_flush()
        if not AT: vpoll_issue(sOwn)
        vUo = Vp(); vC1 = Vp(2); TA = Vp(2); sC2 = s(10, 2); sPar = s(5); sTile = s(12, 4); sX = s(16); sY = s(17)
        a.I('v_bfe_u32', t0, vL, 2, 2)
        a.I('v_lshrrev_b32', t1, 5, vL); a.I('v_lshl_add_u32', t1, t1, 4, t0); a.I('v_lshlrev_b32', TA[0], 8, t1)
        a.I('v_and_b32', t1, 3, vL); a.I('v_lshl_add_u32', TA[0], t1, 3, TA[0])
        a.I('v_bfe_u32', t1, vL, 4, 1); a.I('v_lshl_add_u32', TA[0], t1, 5, TA[0])
        a.I('v_xor_b32', t0, sW, t0); a.I('v_lshl_add_u32', TA[0], t0, 6, TA[0]); a.I('v_add_u32', TA[1], 65536, TA[0])
        a.I('v_bfe_u32', t0, vL, 3, 2); a.I('v_lshlrev_b32', vUo, 13, t0)
        a.I('v_lshrrev_b32', t0, 5, vL); a.I('v_lshl_add_u32', vUo, t0, 7, vUo)
        a.I('v_and_b32', t0, 7, vL); a.I('v_lshl_add_u32', vUo, t0, 4, vUo)
        a.I('s_and_b32', sPar, sM, 1)
        for sg in range(4):
            a.I('s_lshl_b32', sT, sPar, 1); a.I('s_xor_b32', sT, sT, 2 * (sg & 1) + (sg >> 1)); a.I('s_lshl_b32', sT2, sR, 2); a.I('s_add_u32', sTile[sg], sT, sT2)
        for e in range(2): a.I('v_mov_b32', vC1[e], GC1); a.I('s_mov_b32', sC2[e], GC2)
        sH1o = sSo; sQ = s(4); sSg = (sPar, sM0)
        a.I('s_lshr_b32', sT, sM, 1); a.I('s_mul_i32', sT2, sPar, 7); a.I('s_add_u32', sT2, sT, sT2); a.I('s_lshl_b32', sQ, sT2, 11)
        a.I('s_mul_i32', sT2, sW, 28 * 1024); a.I('s_add_u32', sQ, sQ, sT2)
        a.I('s_lshl_b32', sM0, sT, 2)
        if AT: a.I('s_mov_b32', sM0, 0)
        a.I('s_lshl_b32', sT, sR, 4); a.I('s_lshl_b32', sT2, sPar, 3); a.I('s_add_u32', sT2, sT2, sT)
        a.I('s_lshl_b32', sT2, sT2, 2); a.I('s_add_u32', sT2, sT2, sW); a.I('s_lshl_b32', sT2, sT2, 7); a.I('s_add_u32', sT2, sT2, sM0)
        a.I('s_add_u32', sPar, sT2, CB); a.I('s_xor_b32', sM0, sPar, 8 * 512)
        allp = O('allpoll', 1)
        if AT:
            if not allp: a.I('s_cmp_lg_u32', sW, 0); a.I('s_cbranch_scc1', L + '_nopoll')
            vpoll_issue(sOwn)
        vpoll_check('a', sOwn, 0xffff)
        if AT and not allp: a.label(L + '_nopoll')
        ST(4)
        hslot = {}
        if det == 'g0': ST.map = {5: 9, 6: None, 7: None, 8: None, 9: None, 10: None, 11: None, 12: None}
        SLOT = (0x20000, 0, 0x8000, 0x10000)
        def tokdma(sg, i):
            if i == 0:
                a.I('s_lshl_b32', sX, sTile[sg], 15); a.I('s_lshl_b32', sT, sW, 11); a.I('s_add_u32', sX, sX, sT)
                a.I('s_lshl_b32', sY, sW, 13); a.I('s_add_u32', sY, sY, SLOT[sg])
            a.I('s_add_u32', M0, sY, 1024 * i)
            a.I('s_add_u32', sT, sX, 256 * i)
            hslot[sg] = dma16(a, vUo, c.srdU, sT, LM)
        if not (AT and allp): a.wait(hdma[-1]); a.barrier()
        if det == 'g0': ST(13)
        for i in range(8): tokdma(0, i)
        if AT and allp: a.wait(hdma[-1]); a.barrier()
        if det == 'g0': ST.map = None; ST(5); ST.map = {}
        ne = O('w2_early', 4) + nw2[0]
        for f in range(32):
            off = (32 * (f % 8) + 4 * (f // 8)) * 256
            for h in range(2): a.I('ds_read_b64_tr_b16', W1[4 * f + 2 * h:4 * f + 2 * h + 2], TA[h], mods='offset:%d' % off)
            if nw2[0] < ne and f >= 32 - 3 * (ne - nw2_br) and (32 - f) % 3 == 0: w2load()
        while nw2[0] < ne: w2load()
        vL16b = TA[1]; vL16c = TA[0]
        a.wait_lg0()
        if det == 'g0': ST(6); ST.map = {5: 7, 6: None, 7: None, 8: None, 9: None, 10: None, 11: None, 12: None}
        a.I('v_add_u32', vL16b, 65536, vL16); a.I('v_add_u32', vL16c, 0x20000, vL16)
        a.wait(hslot[0]); a.barrier()
        ST(5)
        NB = 8
        def rd(n):
            sg, f = n // 32, n % 32
            dsr(a, RING[4 * (n % NB):4 * (n % NB) + 4], (vL16, vL16b, vL16c)[SLOT[sg] >> 16], SLOT[sg] % 65536 + f * 1024)
        OUT = TMP[16:24]
        lastst = {}
        def signal(sg):
            a.wait(lastst[sg])
            if AT: a.I('buffer_atomic_add', vOne, vSig, srdC, sSg[sg & 1], mods='offen offset:%d sc1' % (4 * sg))
            else: bstore(a, vOne, vSig, srdC, sSg[sg & 1], 32 * sg, SM1)
        def gelu_tile(sg, pk=False):
            acc = ACC[32 * (sg % 2):32 * (sg % 2) + 16]
            def st(u):
                if u == 0:
                    a.I('s_mul_i32', sH1o, sTile[sg], 112 * 1024); a.I('s_add_u32', sH1o, sH1o, sQ)
                lastst[sg] = bstore(a, OUT[4 * u:4 * u + 4], vL16, srdH1, sH1o, 1024 * u, SM1)
            if pk:
                return gelu_pk_ops(a, acc, TMP[0:16], OUT, sC2, vC1) + [lambda: st(0), lambda: st(1)]
            ops = gelu_ops(a, acc, TMP[0:16], OUT, sC2[0], vC1[0])
            half = len(ops) // 2
            return ops[:half] + [lambda: st(0)] + ops[half:] + [lambda: st(1)]
        w2s = O('w2_start', 9); w2e = O('w2_every', 2); sigat = O('sigat', 26 if SM1 else 12)
        fill = []; nread = 0; lim = 0; nl0 = 0
        apf = O('apf', 10); l0f = O('l0f', 17)
        sAo = sX
        def ldfrag(sg, k):
            n = (14 * sg + k) % 28
            if k % 4 == 0: a.I('s_add_u32', sAo, sA[sg % 2], (sg >> 1) * 112 * 1024 + k * 1024)
            bload(a, W1[4 * n:4 * n + 4], vL16, srdH1, sAo, (k % 4) * 1024, LM1)
        for n in range(128):
            sg, f = n // 32, n % 32
            if n == 0: lim = 32
            if f == 32 - NB and sg < 3:
                nx = sg + 1
                if det == 'g1': ST(5 + 2 * nx - 1)
                a.wait(hslot[nx]); a.barrier(); lim = 32 * (nx + 1)
                if det == 'g1': ST(5 + 2 * nx)
            if f == 0 and sg > 0:
                assert not fill
                fill = gelu_tile(sg - 1)
            while nread < min(n + NB - 1, lim):
                rd(nread); nread += 1
            if n % 2 == 0 and n + 1 < lim:
                h = a.pend.get(('v', RING[4 * ((n + 1) % NB)].i))
                if h is not None: a.wait(h)
            d = ACC[32 * (sg % 2):32 * (sg % 2) + 16]
            a.I(MF32, d, W1[4 * f:4 * f + 4], RING[4 * (n % NB):4 * (n % NB) + 4], d if f else BIAS)
            isdma = False
            if sg == 0 and f < 8: tokdma(1, f); isdma = True
            elif sg == 0 and f < 24 and f % 2 == 0: tokdma(2, (f - 8) // 2); isdma = True
            elif sg == 1 and f < 16 and f % 2 == 0: tokdma(3, f // 2); isdma = True
            if n == 96 + apf: vpoll_issue(sCb)
            if n == 96 + l0f:
                if det == 'g1': ST(12)
                vpoll_check('b0', sCb, 0x7f)
                if det == 'g1': ST(13)
            if n > 96 + l0f and nl0 < 14: ldfrag(0, nl0); nl0 += 1
            if nw2[0] < 56 and n >= w2s and (n - w2s) % w2e == 0 and not isdma: w2load()
            if f >= 1:
                for k in range(4):
                    if fill: fill.pop(0)()
            if sg >= 2 and f == sigat: signal(sg - 2)
        while nw2[0] < 56: w2load()
        ST(3 if det == 'g1' else 6)
        if det == 'g1': ST.on = False
        HB = TMP[24:40]; HP = TMP[0:16]
        def mm(sg, nxt=None, extra=()):
            extra = dict(extra)
            for k in range(14):
                n = (14 * sg + k) % 28
                if nxt is not None: ldfrag(nxt, k)
                for cp in range(2):
                    d = ACC2[32 * (sg >> 1) + 16 * cp:32 * (sg >> 1) + 16 * cp + 16]
                    a.I(MF32, d, W2(28 * (sg % 2) + 2 * k + cp), W1[4 * n:4 * n + 4], d if (k or sg % 2) else 0)
                if k in extra: extra[k]()
        assert nl0 == 14 and not fill
        tail = gelu_tile(3, pk=True)
        for k, o in enumerate(tail):
            if k == O('apf1', 40): vpoll_issue(sCb)
            o()
        ST(7)
        vpoll_check('b1', sCb, 0x7f00)
        s2k = O('s2k', 4 if SM1 else 0); s3k = O('s3k', 12 if SM1 else 5)
        mm(0, 1, {s2k: lambda: signal(2), s3k: lambda: signal(3)})
        a.I('s_branch', L + '_g2')
        saved = a.snapshot()
        a.reset_state()
        a.label(L + '_nog1')
        a.restore(snap_br)
        nw2[0] = nw2_br
        if fast and O('wb', 0) & 1:
            a.I('s_cmp_lg_u32', sW, 0); a.I('s_cbranch_scc1', L + '_nowb')
            vpoll_issue(sOwn); vpoll_check('w', sOwn, 0xffff)
            a.I('buffer_wbl2', mods='sc1')
            a.label(L + '_nowb')
            a.wait_vm0()
        lo = O('k3_w2_lo', 1792)
        if lo < 1792:
            n = -(-(1792 - lo) // (16 * 8))
            a.I('v_lshlrev_b32', vSigA, 7, vL)
            a.I('s_and_b32', sT, sR, 1); a.I('s_lshl_b32', sT, sT, 1); a.I('s_and_b32', sT2, sM, 1); a.I('s_add_u32', sT, sT, sT2)
            a.I('s_lshl_b32', sT, sT, 2); a.I('s_add_u32', sT, sT, sW); a.I('s_mul_i32', sT2, sT, n * 8192); a.I('s_add_u32', sT2, sT2, lo * 1024)
            touch(a, srdW2, vSigA, sT2, n, TMP[0:8], sT)
        while nw2[0] < 56: w2load()
        vpoll_issue(sCb); vpoll_check('c0', sCb, 0x7f)
        for k in range(14): ldfrag(0, k)
        vpoll_issue(sCb); vpoll_check('c1', sCb, 0x7f00)
        mm(0, 1)
        a.wait_vm0()
        a.label(L + '_g2')
        a.restore(saved)
        ST(8)
        srdH = c.srdH; srdB2 = srdB; srdO = srdA
        vHo = TA[0]; vOo = TA[1]; vWr = Vp(3); vRd = vUo
        vpoll_issue(sCb)
        srd(a, srdB2, P_B2, 0, 1024); srd(a, srdO, P_OUT, 0, 2048 * 1024)
        a.I('s_lshr_b32', sT, sW, 1); a.I('s_add_u32', sTk, sTk, sT)
        a.I('v_lshrrev_b32', t0, 5, vL); a.I('v_lshlrev_b32', vBo, 4, t0)
        a.I('v_and_b32', t0, 31, vL); a.I('v_lshl_add_u32', vHo, t0, 10, vBo)
        a.I('s_lshl_b32', sHo, sTk, 15); a.I('s_add_u32', sHo, sHo, sCol)
        for jj in range(2):
            bload(a, HP[4 * jj:4 * jj + 4], vHo, srdH, sHo, 32 * jj, LM)
            bload(a, HP[8 + 4 * jj:12 + 4 * jj], vBo, srdB2, sCol, 32 * jj)
        a.I('v_bfe_u32', t0, vL, 4, 1); a.I('v_lshl_add_u32', vOo, t0, 19, vBo)
        a.I('v_and_b32', t0, 15, vL); a.I('v_lshl_add_u32', vOo, t0, 15, vOo)
        a.I('s_and_b32', sOo, sTk, 1); a.I('s_lshl_b32', sOo, sOo, 20); a.I('s_lshr_b32', sT, sTk, 1); a.I('s_lshl_b32', sT, sT, 10)
        a.I('s_add_u32', sOo, sOo, sT); a.I('s_add_u32', sOo, sOo, sCol)
        def area(dst, d):
            a.I('s_and_b32', sT, d, 1); a.I('s_mul_i32', sT, sT, 3 * 4096); a.I('s_lshr_b32', dst, d, 1); a.I('s_lshl_b32', dst, dst, 17); a.I('s_add_u32', dst, dst, sT)
        for x in range(1, 4):
            a.I('s_xor_b32', sT2, sW, x); area(sT2, sT2); a.I('s_add_u32', sT2, sT2, (x - 1) * 4096)
            a.I('v_add_u32', vWr[x - 1], sT2, vL16)
        area(sT2, sW); a.I('v_add_u32', vRd, sT2, vL16)
        vpoll_check('b2', sCb, 0x7f0000)
        mm(1, 2, {O('apf3', 8): lambda: vpoll_issue(sCb)})
        ST(9)
        vpoll_check('b3', sCb, 0x7f000000)
        ST(10)
        hb = []
        for jj in range(2):
            for i in range(4):
                h = HP[4 * jj + i]; b = HP[8 + 4 * jj + i]
                hb.append(lambda h=h, b=b, jj=jj, i=i: (a.I('v_lshlrev_b32', HB[4 * jj + i], 16, h), a.I('v_lshlrev_b32', t0, 16, b), a.I('v_add_f32', HB[4 * jj + i], HB[4 * jj + i], t0),
                          a.I('v_and_b32', HB[8 + 4 * jj + i], 0xffff0000, h), a.I('v_and_b32', t0, 0xffff0000, b), a.I('v_add_f32', HB[8 + 4 * jj + i], HB[8 + 4 * jj + i], t0)))
        mm(2, 3)
        mm(3, None, dict(enumerate(hb)))
        ST(11)
        a.I('s_cmp_ge_u32', sW, 2)
        a.I('s_cbranch_scc1', L + '_epi1')
        saved = a.snapshot()
        for var in range(2):
            if var:
                a.reset_state()
                a.label(L + '_epi1')
                a.restore(saved)
                a.I('s_nop', 11)
            A2 = lambda tk, o, n: ACC2[32 * (tk ^ var) + o:32 * (tk ^ var) + o + n]
            for x in range(1, 4):
                tk = x >> 1; h = x & 1
                for cp in range(2):
                    for q in range(2):
                        dsw(a, vWr[x - 1], A2(tk, 16 * cp + 8 * h + 4 * q, 4), (2 * cp + q) * 1024)
            for cp in range(2):
                for e in range(0, 8, 2): a.I('v_pk_add_f32', A2(0, 16 * cp + e, 2), A2(0, 16 * cp + e, 2), HB[8 * cp + e:8 * cp + e + 2])
            a.wait_lg0()
            a.barrier()
            BUF = W2V
            for x in range(3):
                for k in range(4): dsr(a, BUF[16 * x + 4 * k:16 * x + 4 * k + 4], vRd, x * 4096 + k * 1024)
            for x in range(3):
                for cp in range(2):
                    for e in range(0, 8, 2): a.I('v_pk_add_f32', A2(0, 16 * cp + e, 2), A2(0, 16 * cp + e, 2), BUF[16 * x + 8 * cp + e:16 * x + 8 * cp + e + 2])
            for jj in range(2):
                for i in range(4): cvt(a, HB[4 * jj + i], A2(0, 4 * jj + i, 1), A2(0, 16 + 4 * jj + i, 1))
                bstore(a, HB[4 * jj:4 * jj + 4], vOo, srdO, sOo, 32 * jj, 'sc1' if O('outsc1', 0) else '')
            ST.on = bool(O('stamp', 0))
            if det != 'g1': ST(12)
            ST.flush(sW)
            a.I('s_endpgm')

    if not AT:
        body(L + 'f', True)
        a.label(L + '_fast_end')
        a.reset_state()
        a.restore(snap[0]); Vp.restore(snap[1]); Sg.restore(snap[2]); a.bg = list(snap[3]); hdma[:] = snap[4]
    body(L + 's', False)
    if AT: a.label(L + '_fast_end')
    a.label(L + '_end')
    a.I('s_endpgm')
    return dict(name=L, grid=256, block=256, lds=0x28000, nv=256, na=256, ns=102)
```

```python
import sys, re
from common import *
from k1 import gen_k1
from k2 import gen_k2
from k3f import gen_k3f
from k3g import gen_k3g
from k3h import gen_k3h
from k2b import gen_k2b
from k23 import gen_k23

def gen_pf(a, L, opt):
    a.reset_state()
    a.I('s_cmp_ge_u32', s(2), 256); a.I('s_cbranch_scc1', L + '_end')
    kernarg(a)
    srd(a, s(28, 4), P_W1, 0, 512 * 3584); srd(a, s(32, 4), P_WS, W2S, W2S_SZ)
    a.I('s_lshr_b32', s(36), s(2), 3); a.I('s_mul_i32', s(36), s(36), 57344)
    a.I('v_lshlrev_b32', v(1), 4, v(0))
    for i in range(14):
        bload(a, v(4 + 8 * i, 4), v(1), s(28, 4), s(36)); bload(a, v(8 + 8 * i, 4), v(1), s(32, 4), s(36))
        a.I('s_add_u32', s(36), s(36), 4096)
    a.wait_vm0()
    a.label(L + '_end'); a.I('s_endpgm')
    return dict(name=L, grid=256, block=256, lds=0)

def gen_probe(a, L, opt):
    a.reset_state()
    a.I('s_cmp_ge_u32', s(2), 256); a.I('s_cbranch_scc1', L + '_end')
    kernarg(a)
    which = opt.get('probe', 'w1')
    P, sz = {'w1': (P_W1, 512 * 3584), 'x': (P_X, 2048 * 1024), 'ws': (P_WS, 2 << 20), 'wr': (P_WR, 2048 * 514)}[which]
    srd(a, s(28, 4), P, 0, sz)
    a.I('s_mul_i32', s(36), s(2), 4096)
    a.I('v_mov_b32', v(1), 0); a.I('s_mov_b64', EXEC, 1)
    for i in range(24):
        bload(a, v(2), v(1), s(28, 4), s(36), 128 * i)
        a.I('v_and_b32', v(1), 0, v(2))
    a.label(L + '_end'); a.I('s_endpgm')
    return dict(name=L, grid=256, block=64, lds=0)

HEADER = open('cdna_kernels/%s.s.ref' % NAME).read().split('; Override launch')[0]

def build(plan, opt):
    parts = []; launches = []; kds = []
    for label, fn in plan:
        a = Asm()
        info = fn(a, label, opt)
        body = a.finish()
        nv = max(a.maxv + 1, 1); na = a.maxa + 1
        parts.append(khead(label) + body + kd(label, nv, na, 102))
        launches.append('; @launch kernel=%s grid=(%d,1,1) block=(%d,1,1) lds=%d' % (label, info['grid'], info['block'], info['lds']))
        print(label, 'vgpr', nv, 'agpr', na, 'sgpr', a.maxs + 1, 'lines', body.count('\n'), file=sys.stderr)
    return HEADER + '\n'.join(launches) + '\n.amdgcn_target "amdgcn-amd-amdhsa--gfx950"\n' + ''.join(parts)

PLANS = {
    'h2': [('fa_kernel', gen_k1), ('fb_kernel', gen_k23)],
    'hbp': [('pr_kernel', gen_probe), ('fa_kernel', gen_k1), ('fb_kernel', gen_k2b), ('fc_kernel', gen_k3h)],
    'hb3': [('fa_kernel', gen_k1), ('fb_kernel', gen_k2b), ('fc_kernel', gen_k3h)],
    'h3': [('fa_kernel', gen_k1), ('fb_kernel', gen_k2), ('fc_kernel', gen_k3h)],
    'h4': [('fa_kernel', gen_k1), ('fb_kernel', gen_k2), ('pf_kernel', gen_pf), ('fc_kernel', gen_k3h)],
    'g3': [('fa_kernel', gen_k1), ('fb_kernel', gen_k2), ('fc_kernel', gen_k3g)],
    'g4': [('fa_kernel', gen_k1), ('fb_kernel', gen_k2), ('pf_kernel', gen_pf), ('fc_kernel', gen_k3g)],
    'f4': [('fa_kernel', gen_k1), ('fb_kernel', gen_k2), ('pf_kernel', gen_pf), ('fc_kernel', gen_k3f)],
    'f3': [('fa_kernel', gen_k1), ('fb_kernel', gen_k2), ('fc_kernel', gen_k3f)],
}
if __name__ == '__main__':
    plan = sys.argv[1]; out = sys.argv[2]
    opt = dict(kv.split('=') for kv in sys.argv[3:])
    opt.setdefault('clear_cnt', 1)
    opt.setdefault('code_lo', 'fb_kernel'); opt.setdefault('code_hi', PLANS[plan][-1][0] + ('_fast_end' if plan[0] == 'h' else '_end'))
    open(out, 'w').write(build(PLANS[plan], opt))
```

```python
from asmlib import *

NAME = 'sequential_preLN__spectral_gfnet__mixer_channel_mlp__prompt'

ZT = 0x000000; ZT_SZ = 129 * 16384
WT = 0x208000; WT_SZ = 129 * 16384
QT = 0x410000; QT_SZ = 0x200000
HH = 0x610000; HH_SZ = 0x200000
U2 = 0x810000; U2_SZ = 0x200000
W1S = 0xA10000; W1S_SZ = 0x1C0000
W2S = 0xBD0000; W2S_SZ = 0x1C0000
H1 = 0xD90000; H1_SZ = 0x700000
CNT = 0x1490000; CNT_SZ = 0x30000
STAMP = 0x14D0000; STAMP_SZ = 0x100000

P_X, P_WR, P_WI, P_BX, P_W1, P_B1, P_W2, P_B2 = [s(4 + 2 * i, 2) for i in range(8)]
P_OUT, P_DBG, P_WS = s(20, 2), s(22, 2), s(24, 2)

MF16 = 'v_mfma_f32_16x16x32_bf16'
MF32 = 'v_mfma_f32_32x32x16_bf16'

class Alloc:
    def __init__(self, kind, start, end):
        self.k, self.s, self.e = kind, start, end
        self.used = set(); self._p = start
    @property
    def p(self): return self._p
    @p.setter
    def p(self, x):
        self.used = set(r for r in self.used if r < x); self._p = x
        self.used |= set(range(self.s, x))
    def __call__(self, n=1, align=None):
        if align is None: align = 2 if n >= 2 else 1
        i = (self.s + align - 1) // align * align
        while any(r in self.used for r in range(i, i + n)): i += align
        assert i + n <= self.e, 'out of regs %s %d' % (self.k, i + n)
        self.used |= set(range(i, i + n)); self._p = max(self._p, i + n)
        return R(self.k, i, n)
    @classmethod
    def ranges(cls, kind, *rs):
        o = cls(kind, min(a for a, b in rs), max(b for a, b in rs))
        ok = set(i for a, b in rs for i in range(a, b))
        o.used = set(range(o.s, o.e)) - ok
        return o
    def snapshot(self): return (set(self.used), self._p)
    def restore(self, sn): self.used, self._p = set(sn[0]), sn[1]
    def free(self, *rs):
        for r in rs:
            for k in range(r.i, r.i + r.n): self.used.discard(k)

def kernarg(a):
    a.I('s_load_dwordx16', s(4, 16), s(0, 2), 0)
    a.I('s_load_dwordx4', s(20, 4), s(0, 2), 64)
    a.I('s_load_dwordx2', s(24, 2), s(0, 2), 80)

def srd(a, d, base, off, size):
    assert d.n == 4 and d.i % 4 == 0
    if off:
        a.I('s_add_u32', d[0], base[0], off)
        a.I('s_addc_u32', d[1], base[1], 0)
    else:
        a.I('s_mov_b32', d[0], base[0])
        a.I('s_mov_b32', d[1], base[1])
    a.I('s_mov_b32', d[2], size)
    a.I('s_mov_b32', d[3], 0x20000)

def round_bf16(a, dst, src):
    a.I('v_cvt_pk_bf16_f32', dst, src, src)
    a.I('v_lshlrev_b32', dst, 16, dst)

def cvt(a, dst, lo, hi):
    a.I('v_cvt_pk_bf16_f32', dst, lo, hi)

def bload(a, dst, voff, srd_, soff=0, off=0, mods=''):
    n = dst.n
    op = {1: 'buffer_load_dword', 2: 'buffer_load_dwordx2', 4: 'buffer_load_dwordx4'}[n]
    assert 0 <= off < 4096
    m = 'offen' + (' offset:%d' % off if off else '') + (' ' + mods if mods else '')
    return a.I(op, dst, voff, srd_, soff, mods=m)

def bstore(a, src, voff, srd_, soff=0, off=0, mods=''):
    n = src.n
    op = {1: 'buffer_store_dword', 2: 'buffer_store_dwordx2', 4: 'buffer_store_dwordx4'}[n]
    assert 0 <= off < 4096
    m = 'offen' + (' offset:%d' % off if off else '') + (' ' + mods if mods else '')
    return a.I(op, src, voff, srd_, soff, mods=m)

def dma16(a, voff, srd_, soff=0, mods=''):
    m = 'offen' + (' ' + mods if mods else '') + ' lds'
    return a.I('buffer_load_dwordx4', voff, srd_, soff, mods=m)

def dsr(a, dst, addr, off=0):
    op = {1: 'ds_read_b32', 2: 'ds_read_b64', 4: 'ds_read_b128'}[dst.n]
    assert 0 <= off < 65536
    return a.I(op, dst, addr, mods=('offset:%d' % off if off else ''))

def dsw(a, addr, src, off=0):
    op = {1: 'ds_write_b32', 2: 'ds_write_b64', 4: 'ds_write_b128'}[src.n]
    assert 0 <= off < 65536
    return a.I(op, addr, src, mods=('offset:%d' % off if off else ''))

def wave_id(a, sdst, tmp):
    a.I('v_lshrrev_b32', tmp, 6, v(0))
    a.I('v_readfirstlane_b32', sdst, tmp)

def angles(a, n, ang, a0, st, C, S):
    for e in range(n):
        if e: a.I('v_add_f32', a0, a0, st)
        if C is not None: a.I('v_cos_f32', C[e], a0)
        if S is not None: a.I('v_sin_f32', S[e], a0)

def stamp(a, idx, srd_st, sbase, tmp_s, tmp_v, enable):
    if not enable: return
    a.I('s_memrealtime', tmp_s)
    a.wait_lg0()
    a.I('v_mov_b32', tmp_v[0], tmp_s[0])
    a.I('v_mov_b32', tmp_v[1], sbase)
    bstore(a, tmp_v[0], tmp_v[1], srd_st, 0, idx * 4)

def kd(name, nv, na, ns):
    acc = max(4, (nv + 3) // 4 * 4)
    tot = acc + na if na else nv
    return '''.section .rodata,"a"
.p2align 6
.amdhsa_kernel %s
  .amdhsa_next_free_vgpr %d
  .amdhsa_next_free_sgpr %d
  .amdhsa_accum_offset %d
  .amdhsa_group_segment_fixed_size 0
  .amdhsa_kernarg_size 88
  .amdhsa_user_sgpr_count 2
  .amdhsa_user_sgpr_kernarg_segment_ptr 1
  .amdhsa_system_sgpr_workgroup_id_x 1
  .amdhsa_float_denorm_mode_32 3
.end_amdhsa_kernel
.text
''' % (name, tot, min(102, ns), acc)

def khead(name):
    return '.text\n.globl %s\n.p2align 8\n.type %s,@function\n%s:\n' % (name, name, name)

def ln_reduce_pairs(a, S, Q, t):
    a.I('v_permlane32_swap_b32', S, Q)
    a.I('v_add_f32', S, S, Q)
    a.I('v_add_f32_dpp', S, S, S, mods='quad_perm:[1,0,3,2] row_mask:0xf bank_mask:0xf')
    a.I('v_add_f32_dpp', S, S, S, mods='row_ror:4 row_mask:0xf bank_mask:0xf')
    a.I('v_add_f32_dpp', S, S, S, mods='row_ror:8 row_mask:0xf bank_mask:0xf')
    a.I('v_mov_b32', t, S)
    a.I('v_permlane16_swap_b32', S, t)
    a.I('v_add_f32', S, S, t)
    a.I('v_mov_b32', Q, S)
    a.I('v_permlane32_swap_b32', S, Q)

class Stamps:
    def __init__(self, a, kidx, opt, vreg=255):
        self.a, self.k, self.on = a, kidx, bool(int(opt.get('stamp', 0)))
        self.v = v(vreg); self.map = None; self.op = 's_memtime' if int(opt.get('cyc', 0)) else 's_memrealtime'
    def __call__(self, idx):
        if not self.on: return
        if self.map is not None and idx in self.map:
            idx = self.map[idx]
            if idx is None: return
        assert idx < 15
        a = self.a
        a.I(self.op, s(98, 2)); a.wait_lg0()
        if idx == 0: a.I('v_mov_b32', self.v, -1)
        a.I('v_writelane_b32', self.v, s(98), idx)
    def both(self, idx):
        on, mp, op = self.on, self.map, self.op
        self.on, self.map = True, None
        self.op = 's_memrealtime'; self(idx); self.op = 's_memtime'; self(idx + 1)
        self.on, self.map, self.op = on, mp, op
    def flush(self, sW, nslots=None):
        if not self.on: return
        a = self.a
        a.wait_all()
        self.map = None
        self(14)
        q = s(92, 4)
        a.I('s_load_dwordx2', s(96, 2), s(0, 2), 80); a.wait_lg0()
        srd(a, q, s(96, 2), STAMP, STAMP_SZ)
        a.I('s_lshl_b32', s(96), s(2), 3); a.I('s_add_u32', s(96), s(96), sW); a.I('s_lshl_b32', s(96), s(96), 6)
        a.I('s_add_u32', s(96), s(96), self.k * 256 * 8 * 64)
        a.I('s_mov_b64', EXEC, 0xffff)
        a.I('v_and_b32', v(1), 15, v(0)); a.I('v_lshlrev_b32', v(1), 2, v(1))
        bstore(a, self.v, v(1), q, s(96), 0)

def w2_swizzle_issue(a, V, Sg, sTau, vL, sT, ldm=''):
    h = type('H', (), {})()
    srdS = Sg(4, 4); h.srdD = Sg(4, 4); sA = Sg(); sB = Sg(); sC = Sg(); so = Sg(8)
    vS = V(); h.vD = V(); h.IN = V(8); h.O = V(8); h.sTau = sTau; h.sD = sA; h.sel = so[0:2]
    a.I('v_lshrrev_b32', vS, 5, vL); a.I('v_and_b32', h.vD, 31, vL); a.I('v_lshlrev_b32', h.vD, 2, h.vD)
    a.I('v_lshl_add_u32', vS, vS, 12, h.vD); a.I('v_lshlrev_b32', h.vD, 4, vL)
    srd(a, srdS, P_W2, 0, 1792 * 1024); srd(a, h.srdD, P_WS, W2S, W2S_SZ)
    a.I('s_mul_i32', sC, sTau, 9363); a.I('s_lshr_b32', sC, sC, 20)
    a.I('s_mul_i32', sT, sC, 112); a.I('s_sub_u32', sA, sTau, sT)
    a.I('s_lshl_b32', sC, sC, 7)
    a.I('s_mul_i32', sB, sA, 4682); a.I('s_lshr_b32', sB, sB, 16)
    a.I('s_mul_i32', sT, sB, 14); a.I('s_sub_u32', sA, sA, sT)
    a.I('s_lshr_b32', sT, sB, 1); a.I('s_lshl_b32', sT, sT, 5)
    a.I('s_and_b32', sB, sB, 1); a.I('s_lshl_b32', sB, sB, 7); a.I('s_add_u32', sB, sB, sT)
    a.I('s_lshr_b32', sT, sA, 1); a.I('s_lshl_b32', sT, sT, 8); a.I('s_add_u32', sB, sB, sT)
    a.I('s_and_b32', sT, sA, 1); a.I('s_lshl_b32', sT, sT, 4); a.I('s_add_u32', sB, sB, sT)
    a.I('s_lshl_b32', sB, sB, 10); a.I('s_add_u32', sB, sB, sC)
    for e in range(8):
        a.I('s_add_u32', so[e], sB, (8 * (e // 4) + (e % 4)) * 1024)
        bload(a, h.IN[e], vS, srdS, so[e], 0, ldm)
    return h

def w2_swizzle_finish(a, h, mods=''):
    a.I('s_lshl_b32', h.sD, h.sTau, 11)
    a.I('s_mov_b32', h.sel[0], 0x05040100); a.I('s_mov_b32', h.sel[1], 0x07060302)
    for p in range(4):
        a.I('v_perm_b32', h.O[p], h.IN[2 * p + 1], h.IN[2 * p], h.sel[0])
        a.I('v_perm_b32', h.O[4 + p], h.IN[2 * p + 1], h.IN[2 * p], h.sel[1])
    bstore(a, h.O[0:4], h.vD, h.srdD, h.sD, 0, mods); bstore(a, h.O[4:8], h.vD, h.srdD, h.sD, 1024, mods)

def touch(a, srd_, vP, sBase, n, PF, sT):
    for e in range(n):
        if e: a.I('s_add_u32', sT, sBase, 8192 * e)
        bload(a, PF[e % len(PF)], vP, srd_, sT if e else sBase)
```

```python
from common import *
from k3 import ids, c1_lanes, c1_addr_q, c1_load_q, c1_issue_x, c1_consts_a, c1_consts_b, c1_yinit, c1_main, c1_stores, gelu_ops, GC1, GC2, Ctx
from k3g import gelu_pk_ops, apoll_issue, apoll_check
from k2b import fb_consts, fb_issue, fb_addrs, fb_main, fb_store

CA = 0
CB = 256 * 128
CX = CB + 1024 * 128
SPIN = 1 << 16
SPECIAL = 120

def gen_k23(a, L, opt):
    ST = Stamps(a, 1, opt, vreg=23)
    det = opt.get('det', '')
    O = lambda k, d: int(opt.get(k, d))
    AT = 1; fast = False; SM = SM1 = LM = LM1 = 'sc1'; allp = 1
    Vp = Alloc('v', 1, 23)
    Sg = Alloc.ranges('s', (3, 4), (26, 28), (60, 92))
    srdC, srdW2, srdH, srdU, srdA, srdB, srdG, srdX = [s(28 + 4 * k, 4) for k in range(8)]
    a.reset_state()
    c = ids(a, L, Sg, Vp, ST)
    if det in ('g1', 'g2', 'clk'): ST.on = False
    if det == 'clk': ST.both(1)
    sW, sR, sM, sT, sT2, vL, t0, t1 = c.sW, c.sR, c.sM, c.sT, c.sT2, c.vL, c.t0, c.t1
    c1_lanes(a, c, Vp)
    c.srdH, c.srdU, c.srdQ, c.srdX = srdH, srdU, srdG, srdX
    ACC = v(24, 64); BIAS = v(240, 16); ACC2 = v(24, 64)
    W2V = v(88, 96); RING = v(184, 32); TMP = v(216, 40)
    W1 = R('a', 0, 128); W2A = R('a', 128, 128)
    W2 = lambda n: W2A[4 * n:4 * n + 4] if n < 32 else W2V[4 * (n - 32):4 * (n - 32) + 4]
    vL16 = Vp(); vSig = Vp(); vSigA = Vp(); vOne = Vp(); vBo = Vp(); vW1 = Vp(); vWo = Vp()
    sCnt = s(6, 2); sPc = Sg(); sWg = [s(8), s(9)]; sPv = Sg(4, 4)
    sSo = Sg(); sM0 = Sg(); sWo = Sg(); sTh = Sg(); sOwn = Sg(); sTk = Sg(); sA = Sg(2); sCb = Sg(); sCol = Sg()
    srdH1 = srdG
    sR1 = Sg(); sM1 = Sg(); sOwn1 = Sg()
    if O('g1_2d', 1):
        a.I('s_lshr_b32', sT, s(2), 7); a.I('s_mul_i32', sT, sT, 14); a.I('s_add_u32', sT, sT, sM)
        a.I('s_mul_i32', sR1, sT, 37); a.I('s_lshr_b32', sR1, sR1, 8)
        a.I('s_mul_i32', sT2, sR1, 7); a.I('s_sub_u32', sM1, sT, sT2)
        a.I('s_and_b32', sT, s(2), 1); a.I('s_mul_i32', sT, sT, 7); a.I('s_add_u32', sM1, sM1, sT)
        a.I('s_bfe_u32', sT, s(2), 0x20001); a.I('s_lshl_b32', sT, sT, 2); a.I('s_add_u32', sR1, sR1, sT)
    else:
        a.I('s_mov_b32', sR1, sR); a.I('s_mov_b32', sM1, sM)
    a.I('s_lshl_b32', sOwn1, sR1, 4); a.I('s_add_u32', sOwn1, sOwn1, sM1); a.I('s_lshl_b32', sOwn1, sOwn1, 7)
    a.I('v_mov_b32', t0, 0x10000000)
    a.I('v_cmp_gt_u32', VCC, 16, vL); a.I('v_lshlrev_b32', t1, 7, vL); a.I('v_cndmask_b32', vSigA, t0, t1, VCC)
    a.I('v_cmp_gt_u32', VCC, 8, vL); a.I('v_lshlrev_b32', t1, 9, vL); a.I('v_cndmask_b32', vSig, t0, t1, VCC)
    a.I('v_mov_b32', vOne, 1)
    a.I('v_lshlrev_b32', vL16, 4, vL)
    a.I('v_lshrrev_b32', t0, 5, vL); a.I('v_lshlrev_b32', vBo, 3, t0)
    a.I('v_lshrrev_b32', t0, 4, vL); a.I('v_mul_u32_u24', vW1, 3584, t0)
    a.I('v_lshlrev_b32', t0, 2, t0); a.I('v_and_b32', t1, 15, vL); a.I('v_xor_b32', t0, t0, t1); a.I('v_lshl_add_u32', vW1, t0, 4, vW1)
    a.I('s_lshl_b32', sT, sW, 7); a.I('v_xor_b32', vWo, sT, vL16)
    a.I('s_lshr_b32', sTh, sM, 3)
    a.I('s_lshl_b32', sOwn, sR, 4); a.I('s_add_u32', sOwn, sOwn, sM); a.I('s_lshl_b32', sOwn, sOwn, 7)
    a.I('s_lshl_b32', sTk, sR, 2); a.I('s_lshl_b32', sT, sTh, 1); a.I('s_add_u32', sTk, sTk, sT)
    for g in range(2):
        if g: a.I('s_xor_b32', sT2, sTh, 1)
        p = sT2 if g else sTh
        a.I('s_lshl_b32', sT, sTk, 2); a.I('s_add_u32', sT, sT, sW); a.I('s_lshl_b32', sT, sT, 1); a.I('s_add_u32', sT, sT, p)
        a.I('s_mul_i32', sA[g], sT, 14 * 1024)
    a.I('s_lshl_b32', sCb, sOwn, 2); a.I('s_lshl_b32', sT, sW, 7); a.I('s_add_u32', sCb, sCb, sT); a.I('s_add_u32', sCb, sCb, CB)
    Sg.free(sOwn)
    a.I('s_mul_i32', sSo, sW, 14336); a.I('s_lshl_b32', sT, sM1, 8); a.I('s_add_u32', sSo, sSo, sT)
    a.I('s_lshl_b32', sM0, sW, 10)
    sRot = s(23)
    def rot_setup():
        if not ROT: return
        a.I('s_and_b32', sT, sR1, 1); a.I('s_mul_i32', sT2, sT, 256 * 3584); a.I('s_add_u32', sSo, sSo, sT2)
        a.I('s_lshl_b32', sT2, sT, 16); a.I('s_add_u32', sM0, sM0, sT2)
        a.I('s_mul_i32', sRot, sT, 512 * 3584)
    a.I('s_and_b32', sT, sM, 7); a.I('s_lshl_b32', sT, sT, 2); a.I('s_add_u32', sT, sT, sW); a.I('s_mul_i32', sWo, sT, 56 * 1024)
    hdma = []; nw2 = [0]
    ROT = O('rot', 1)
    def w1dma(i):
        if i == 16 and ROT:
            a.I('s_xor_b32', sM0, sM0, 65536); a.I('s_sub_u32', sSo, sSo, sRot)
        a.I('s_add_u32', M0, sM0, 4096 * (i % 16 if ROT else i))
        hdma.append(dma16(a, vW1, srdA, sSo))
        if i < 31: a.I('s_add_u32', sSo, sSo, 4 * 14336)
    KS = O('w2_split', 28)
    ORDER = list(range(KS)) + list(range(28, 28 + KS)) + list(range(KS, 28)) + list(range(28 + KS, 56))
    def w2load():
        n = ORDER[nw2[0]]; nw2[0] += 1; k = n % 28
        if k % 4 == 0: a.I('s_add_u32', sWo, sWg[n // 28], k * 1024)
        return bload(a, W2(n), vWo, srdW2, sWo, (k % 4) * 1024)
    def late_setup():
        srd(a, srdC, P_WS, CNT, CNT_SZ); srd(a, srdW2, P_WS, W2S, W2S_SZ); srd(a, srdA, P_W1, 0, 512 * 3584)
        a.I('s_cmp_ge_u32', sM, 14)
        a.I('s_cselect_b32', srdA[2], 0, 512 * 3584)
        rot_setup()
        a.I('s_mov_b32', sCnt[0], srdC[0]); a.I('s_mov_b32', sCnt[1], srdC[1])
        a.I('s_mul_i32', sT, sTh, 28 * 1024); a.I('s_add_u32', sWg[0], sWo, sT)
        a.I('s_xor_b32', sT, sTh, 1); a.I('s_mul_i32', sT, sT, 28 * 1024); a.I('s_add_u32', sWg[1], sWo, sT)
    def bias_load():
        srd(a, srdB, P_B1, 0, 3584)
        a.I('s_lshl_b32', sT, sM1, 8); a.I('s_lshl_b32', sT2, sW, 6); a.I('s_add_u32', sT, sT, sT2)
        for j in range(4): bload(a, BIAS[8 + 2 * j:10 + 2 * j], vBo, srdB, sT, 16 * j)
    def bias_unpack():
        for e in range(8):
            a.I('v_lshlrev_b32', BIAS[2 * e], 16, BIAS[8 + e]); a.I('v_and_b32', BIAS[2 * e + 1], 0xffff0000, BIAS[8 + e])
    TA = Vp(2)
    def tr_addr():
        a.I('v_bfe_u32', t0, vL, 2, 2)
        a.I('v_lshrrev_b32', t1, 5, vL); a.I('v_lshl_add_u32', t1, t1, 4, t0); a.I('v_lshlrev_b32', TA[0], 8, t1)
        a.I('v_and_b32', t1, 3, vL); a.I('v_lshl_add_u32', TA[0], t1, 3, TA[0])
        a.I('v_bfe_u32', t1, vL, 4, 1); a.I('v_lshl_add_u32', TA[0], t1, 5, TA[0])
        a.I('v_xor_b32', t0, sW, t0); a.I('v_lshl_add_u32', TA[0], t0, 6, TA[0]); a.I('v_add_u32', TA[1], 65536, TA[0])
    def tr_reads():
        for f in range(32):
            off = (32 * (f % 8) + 4 * (f // 8)) * 256
            for h in range(2): a.I('ds_read_b64_tr_b16', W1[4 * f + 2 * h:4 * f + 2 * h + 2], TA[h], mods='offset:%d' % off)
    def wait_all2all(tag):
        a.I('s_cmp_lg_u32', sW, 0); a.I('s_cbranch_scc1', L + '_np' + tag)
        a.I('s_and_b32', sT2, s(2), 63); a.I('s_lshl_b32', sT2, sT2, 7); a.I('s_add_u32', sT2, sT2, CX + 1024)
        apoll_issue(a, sCnt, sT2, sPv); apoll_check(a, L, 'y' + tag, sCnt, sT2, sPv, 0, 8, sPc)
        a.label(L + '_np' + tag)
        a.barrier()
    def c1_signal(tag):
        a.wait(c.ust)
        a.barrier()
        a.I('s_cmp_lg_u32', sW, 0)
        a.I('s_cbranch_scc1', L + '_nosig' + tag)
        a.begin_cond()
        a.I('s_lshl_b32', sT, sR, 11)
        a.I('buffer_atomic_add', vOne, vSigA, srdC, sT, mods='offen sc1')
        a.end_cond()
        a.label(L + '_nosig' + tag)
    NJ = O('w2_join', 28)
    c1pool = lambda: Alloc.ranges('v', (24, 88), (184, 240))
    a.I('s_and_b32', sT, sR, 1); a.I('s_cmp_eq_u32', s(2), SPECIAL); a.I('s_cselect_b32', sT, 1, sT); a.I('s_cmp_lg_u32', sT, 0)
    a.I('s_cbranch_scc1', L + '_fft')
    snap0 = (a.snapshot(), Sg.snapshot(), Vp.snapshot())
    V = c1pool()
    depth = O('hdepth', 8); early = O('hearly', 0)
    c1_consts_a(a, c, V, Sg)
    late_setup(); bias_load(); tr_addr()
    c.no_y = True
    c1_issue_x(a, c, V, Sg)
    c1_addr_q(a, c, V, Sg)
    for i in range(early): w1dma(i)
    c1_consts_b(a, c, V, Sg, 0x20000, 0x22000)
    ST(1)
    for i in range(early, 32):
        if i >= depth: a.wait(hdma[i - depth])
        w1dma(i)
    hw = []
    n1 = min(NJ, O('hw2', 12)); trd = False
    for n in range(n1):
        allh = hdma + hw
        if len(allh) >= depth: a.wait(allh[len(allh) - depth])
        hw.append(w2load())
        if n == min(n1 - 1, O('htr', 8)): a.wait(hdma[-1]); a.barrier(); tr_reads(); trd = True
    if not trd: a.wait(hdma[-1]); a.barrier(); tr_reads()
    c1_yinit(a, c, V); bias_unpack()
    ST(2)
    wait_all2all('h')
    c1_load_q(a, c, 0x20000, 'sc1')
    ST.map = {1: None, 2: 3, 3: None, 4: None, 5: 4}
    c1_main(a, c, V, Sg, defer=True)
    ST.map = None
    c1_stores(a, c, SM)
    for _ in range(O('hw2post', 8)):
        if nw2[0] < NJ: w2load()
    c1_signal('h')
    ST(10)
    while nw2[0] < NJ: w2load()
    if O('hwait', 1): a.wait_all()
    else: a.wait_lg0()
    a.I('s_branch', L + '_join_h')
    a.reset_state()
    a.label(L + '_fft')
    a.restore(snap0[0]); Sg.restore(snap0[1]); Vp.restore(snap0[2]); hdma[:] = []; nw2[0] = 0
    V = Alloc('v', 24, 256); AA = Alloc('a', 0, 128)
    b = Ctx(); b.sV = sW; b.sT = sT; b.sT2 = sT2; b.vL = vL; b.vN = c.vN; b.vG = c.vG; b.t0 = t0; b.t1 = t1
    b.sP = Sg(); b.srds = (srdG, srdX, srdB)
    a.I('s_and_b32', sT, s(2), 7); a.I('s_lshl_b32', sT, sT, 4); a.I('s_add_u32', sT, sT, sM)
    a.I('s_cmp_eq_u32', s(2), SPECIAL); a.I('s_cselect_b32', b.sP, 128, sT)
    p1, p2, p3, p4 = fb_consts(a, b, V)
    b.pre_issue = p1
    fb_issue(a, b, V, Sg, lds0=0x20000)
    fb_addrs(a, b, V, Sg, 0x20000)
    late_setup()
    p2(); p3(); p4()
    STb = lambda k: ST({1: 1, 2: 5, 3: 6, 4: 7, 5: 8}.get(k)) if (det == 'b' or k == 1) else None
    nt = O('ftouch', 0)
    if nt:
        vP = V(); PF = V(2); sB = Sg()
        a.I('v_lshlrev_b32', vP, 7, vL)
        a.I('s_lshl_b32', sB, sM, 2); a.I('s_add_u32', sB, sB, sW)
        a.I('s_mul_i32', sB, sB, 28 * 1024)
        def ftouch():
            for e in range(nt):
                a.I('s_add_u32', sT, sB, (28 - 8 * nt + 8 * e) * 1024)
                bload(a, PF[e % 2], vP, srdW2, sT)
        b.after_z = ftouch
    fb_main(a, b, V, AA, STb, lds0=0x20000)
    fb_store(a, b, L, 'sc1')
    Sg.free(b.sP, b.sQo)
    V = c1pool()
    c1_consts_a(a, c, V, Sg)
    a.wait_vm0()
    a.barrier()
    a.I('s_cmp_lg_u32', sW, 0); a.I('s_cbranch_scc1', L + '_nsy')
    a.I('s_and_b32', sT, s(2), 7); a.I('s_lshl_b32', sT, sT, 7); a.I('s_add_u32', sT, sT, CX)
    a.I('s_mov_b64', EXEC, 1); a.I('v_mov_b32', t0, 1); a.I('v_mov_b32', t1, 0)
    a.I('buffer_atomic_add', t0, t1, srdC, sT, mods='offen sc0 sc1'); a.wait_vm0()
    a.I('s_mov_b64', EXEC, -1); a.I('v_readfirstlane_b32', sT, t0)
    a.I('s_and_b32', sT2, s(2), 7); a.I('s_cmp_eq_u32', sT2, SPECIAL & 7); a.I('s_cselect_b32', sT2, 16, 15)
    a.I('s_cmp_lg_u32', sT, sT2); a.I('s_cbranch_scc1', L + '_nsy')
    a.I('v_lshlrev_b32', t0, 7, vL); a.I('s_mov_b32', sT, CX + 1024)
    a.I('buffer_atomic_add', vOne, t0, srdC, sT, mods='offen sc1')
    a.label(L + '_nsy')
    a.vmq = []
    ST(2)
    bias_load(); tr_addr()
    c.no_y = True
    c1_issue_x(a, c, V, Sg)
    c1_addr_q(a, c, V, Sg)
    nb = O('dma_wait', 20)
    a.bg = [lambda i=i: w1dma(i) for i in range(nb)]; a.bg_every = O('dma_wait_every', 8)
    c1_consts_b(a, c, V, Sg, 0x20000, 0x22000)
    a.bg_every = 0; a.bg_flush()
    c1_yinit(a, c, V); bias_unpack()
    wait_all2all('f')
    c1_load_q(a, c, 0x20000, 'sc1')
    for i in range(nb, min(32, nb + O('dma_q', 4))): w1dma(i)
    a.bg = [lambda i=i: w1dma(i) for i in range(len(hdma), 32)] + [w2load for _ in range(NJ)]
    c.hook_after_q = lambda: setattr(a, 'bg_every', O('dma_every', 12))
    c.hook_before_st = lambda: setattr(a, 'bg_every', 0)
    ST.map = {1: None, 2: 3, 3: None, 4: None, 5: 4}
    c1_main(a, c, V, Sg, defer=True)
    ST.map = None
    c1_stores(a, c, SM)
    for _ in range(O('dma_post', 8)):
        if a.bg: a.bg.pop(0)()
    c1_signal('f')
    ST(9 if det == 'b' else 10)
    a.bg_flush()
    assert len(hdma) == 32 and nw2[0] == NJ
    a.wait(hdma[-1]); a.barrier(); tr_reads(); a.wait_lg0()
    a.label(L + '_join_h')
    if det == 'clk': ST.both(3)
    def vpoll_issue(soff): return apoll_issue(a, sCnt, soff, sPv)
    def vpoll_check(tag, soff, mask, h=None):
        word, target = {0xffff: (0, 16), 0x7f: (0, 7), 0x7f00: (1, 7), 0x7f0000: (2, 7), 0x7f000000: (3, 7)}[mask]
        return apoll_check(a, L, tag, sCnt, soff, sPv, word, target, sPc)
    nw2_br = nw2[0]
    srd(a, srdH1, P_WS, H1, H1_SZ)
    srdB2 = srdB; srdO = srdA
    vHo = c.vN; vOo = c.vG; vB2 = vBo; vRd = vW1; vWr = Vp(3)
    sHo = Sg(2); sOo = Sg(2)
    vTch = Vp(); vDum = vSigA
    a.I('s_and_b32', sT, sM, 7); a.I('s_lshl_b32', sT, sT, 7); a.I('v_lshl_add_u32', t0, vL, 10, sT)
    a.I('v_mov_b32', t1, 0x10000000); a.I('v_cmp_gt_u32', VCC, 14, vL); a.I('v_cndmask_b32', vTch, t1, t0, VCC)
    srd(a, srdB2, P_B2, 0, 1024); srd(a, srdO, P_OUT, 0, 2048 * 1024)
    a.I('s_and_b32', sCol, sM, 7); a.I('s_lshl_b32', sCol, sCol, 7); a.I('s_lshl_b32', sT, sW, 5); a.I('s_add_u32', sCol, sCol, sT)
    a.I('v_lshrrev_b32', t0, 5, vL); a.I('v_lshlrev_b32', vB2, 4, t0)
    a.I('v_and_b32', t0, 31, vL); a.I('v_lshl_add_u32', vHo, t0, 10, vB2)
    a.I('s_lshl_b32', sHo[0], sTk, 15); a.I('s_add_u32', sHo[0], sHo[0], sCol); a.I('s_add_u32', sHo[1], sHo[0], 32768)
    a.I('v_bfe_u32', t0, vL, 4, 1); a.I('v_lshl_add_u32', vOo, t0, 19, vB2)
    a.I('v_and_b32', t0, 15, vL); a.I('v_lshl_add_u32', vOo, t0, 15, vOo)
    a.I('s_lshr_b32', sT, sTk, 1); a.I('s_lshl_b32', sT, sT, 10); a.I('s_add_u32', sOo[0], sT, sCol); a.I('s_add_u32', sOo[1], sOo[0], 1 << 20)
    for x in range(1, 4):
        a.I('s_xor_b32', sT, sW, x); a.I('s_mul_i32', sT, sT, 6144); a.I('s_add_u32', sT, sT, (x - 1) * 2048)
        a.I('v_add_u32', vWr[x - 1], sT, vL16)
    a.I('s_mul_i32', sT, sW, 6144); a.I('v_add_u32', vRd, sT, vL16)
    a.I('s_cmp_ge_u32', sM, 14)
    a.I('s_cbranch_scc1', L + '_nog1')
    snap_br = a.snapshot()
    vUo = Vp(); vC1 = Vp(2); sC2 = s(10, 2); sPar = s(5); sTile = s(12, 4); sX = s(16); sY = s(17)
    a.I('v_bfe_u32', t0, vL, 3, 2); a.I('v_lshlrev_b32', vUo, 13, t0)
    a.I('v_lshrrev_b32', t0, 5, vL); a.I('v_lshl_add_u32', vUo, t0, 7, vUo)
    a.I('v_and_b32', t0, 7, vL); a.I('v_lshl_add_u32', vUo, t0, 4, vUo)
    a.I('s_and_b32', sPar, sM1, 1)
    for sg in range(4):
        a.I('s_lshl_b32', sT, sPar, 1); a.I('s_xor_b32', sT, sT, 2 * (sg & 1) + (sg >> 1)); a.I('s_lshl_b32', sT2, sR1, 2); a.I('s_add_u32', sTile[sg], sT, sT2)
    for e in range(2): a.I('v_mov_b32', vC1[e], GC1); a.I('s_mov_b32', sC2[e], GC2)
    sH1o = sSo; sQ = s(4); sSg = (sPar, sM0)
    a.I('s_lshr_b32', sT, sM1, 1); a.I('s_mul_i32', sT2, sPar, 7); a.I('s_add_u32', sT2, sT, sT2); a.I('s_lshl_b32', sQ, sT2, 11)
    a.I('s_mul_i32', sT2, sW, 28 * 1024); a.I('s_add_u32', sQ, sQ, sT2)
    a.I('s_lshl_b32', sM0, sT, 2)
    if AT: a.I('s_mov_b32', sM0, 0)
    a.I('s_lshl_b32', sT, sR1, 4); a.I('s_lshl_b32', sT2, sPar, 3); a.I('s_add_u32', sT2, sT2, sT)
    a.I('s_lshl_b32', sT2, sT2, 2); a.I('s_add_u32', sT2, sT2, sW); a.I('s_lshl_b32', sT2, sT2, 7); a.I('s_add_u32', sT2, sT2, sM0)
    a.I('s_add_u32', sPar, sT2, CB); a.I('s_xor_b32', sM0, sPar, 8 * 512)
    vpoll_issue(sOwn1)
    vpoll_check('a', sOwn1, 0xffff)
    ST(5 if det != 'b' else 10)
    hslot = {}
    if det == 'g0': ST.map = {5: 9, 6: None, 7: None, 8: None, 9: None, 10: None, 11: None, 12: None}
    SLOT = (0x20000, 0, 0x8000, 0x10000)
    def tokdma(sg, i):
        if i == 0:
            a.I('s_lshl_b32', sX, sTile[sg], 15); a.I('s_lshl_b32', sT, sW, 11); a.I('s_add_u32', sX, sX, sT)
            a.I('s_lshl_b32', sY, sW, 13); a.I('s_add_u32', sY, sY, SLOT[sg])
        a.I('s_add_u32', M0, sY, 1024 * i)
        a.I('s_add_u32', sT, sX, 256 * i)
        hslot[sg] = dma16(a, vUo, srdU, sT, LM)
    tt = O('ttouch', 0)
    if tt:
        vT2 = TA[0]
        a.I('s_lshr_b32', sT, sM1, 1); a.I('v_mul_u32_u24', t0, 7, vL); a.I('v_add_u32', t0, sT, t0)
        a.I('v_lshlrev_b32', t1, 7, t0); a.I('v_mov_b32', vT2, 0x10000000); a.I('v_cmp_gt_u32', VCC, 256, t0); a.I('v_cndmask_b32', vT2, vT2, t1, VCC)
        a.I('s_cmp_eq_u32', sW, 0); a.I('s_cselect_b32', sT, sTile[0], sTile[1]); a.I('s_cmp_eq_u32', sW, 2); a.I('s_cselect_b32', sT, sTile[2], sT)
        a.I('s_cmp_eq_u32', sW, 3); a.I('s_cselect_b32', sT, sTile[3], sT); a.I('s_lshl_b32', sT, sT, 15)
        bload(a, vDum, vT2, srdU, sT, 0, LM); a.pend.pop(('v', vDum.i), None)
    a.barrier()
    for i in range(8): tokdma(0, i)
    for i in range(8): tokdma(1, i)
    ne = O('w2_early', 0) + nw2[0]
    while nw2[0] < ne: w2load()
    vL16b = TA[1]; vL16c = TA[0]
    a.I('v_add_u32', vL16b, 65536, vL16); a.I('v_add_u32', vL16c, 0x20000, vL16)
    a.wait(hslot[0]); a.barrier()
    ST(6 if det != 'b' else 11)
    if det == 'b': ST.on = False
    ST.map = {6: 7, 7: 8, 8: 9, 9: 11, 10: None, 11: 12, 12: 13}
    if det == 'g1': ST.on = True; ST.map = None; ST(5)
    if det == 'clk': ST.both(5)
    NB = 8
    def rd(n):
        sg, f = n // 32, n % 32
        dsr(a, RING[4 * (n % NB):4 * (n % NB) + 4], (vL16, vL16b, vL16c)[SLOT[sg] >> 16], SLOT[sg] % 65536 + f * 1024)
    OUT = TMP[16:24]
    lastst = {}
    def signal(sg):
        a.wait(lastst[sg])
        if AT: a.I('buffer_atomic_add', vOne, vSig, srdC, sSg[sg & 1], mods='offen offset:%d sc1' % (4 * sg))
        else: bstore(a, vOne, vSig, srdC, sSg[sg & 1], 32 * sg, SM1)
    def gelu_tile(sg, pk=False):
        acc = ACC[32 * (sg % 2):32 * (sg % 2) + 16]
        def st(u):
            if u == 0:
                a.I('s_mul_i32', sH1o, sTile[sg], 112 * 1024); a.I('s_add_u32', sH1o, sH1o, sQ)
            lastst[sg] = bstore(a, OUT[4 * u:4 * u + 4], vL16, srdH1, sH1o, 1024 * u, SM1)
        if pk:
            return gelu_pk_ops(a, acc, TMP[0:16], OUT, sC2, vC1) + [lambda: st(0), lambda: st(1)]
        ops = gelu_ops(a, acc, TMP[0:16], OUT, sC2[0], vC1[0])
        half = len(ops) // 2
        return ops[:half] + [lambda: st(0)] + ops[half:] + [lambda: st(1)]
    w2s = O('w2_start', 9); w2e = O('w2_every', 2); sigat = O('sigat', 26 if SM1 else 12)
    fill = []; nread = 0; lim = 0; nl0 = 0
    apf = O('apf', 10); l0f = O('l0f', 17)
    sAo = sX
    L3X = 1
    def hbuf(sg, k):
        if sg == 3 and L3X:
            if k < 4: return W1[112 + 4 * k:116 + 4 * k]
            if k < 12: return RING[4 * (k - 4):4 * (k - 4) + 4]
            return TMP[16 + 4 * (k - 12):20 + 4 * (k - 12)]
        n = (14 * sg + k) % 28
        return W1[4 * n:4 * n + 4]
    cur = [None]
    def ldfrag(sg, k):
        assert k % 4 == 0 or cur[0] == sg, 'load streams interleaved'
        cur[0] = sg
        if k == 0 and O('htouch', 0):
            a.I('s_add_u32', sAo, sA[sg % 2], (sg >> 1) * 112 * 1024)
            h = bload(a, vDum, vTch, srdH1, sAo, 0, LM1); a.pend.pop(('v', vDum.i), None)
        if k % 4 == 0: a.I('s_add_u32', sAo, sA[sg % 2], (sg >> 1) * 112 * 1024 + k * 1024)
        bload(a, hbuf(sg, k), vL16, srdH1, sAo, (k % 4) * 1024, LM1)
    for n in range(128):
        sg, f = n // 32, n % 32
        if n == 0: lim = 32
        if f == 32 - NB and sg < 3:
            nx = sg + 1
            if det == 'g1': ST(5 + 2 * nx - 1)
            a.wait(hslot[nx]); a.barrier(); lim = 32 * (nx + 1)
            if det == 'g1': ST(5 + 2 * nx)
        if f == 0 and sg > 0:
            assert not fill
            fill = gelu_tile(sg - 1)
        while nread < min(n + NB - 1, lim):
            rd(nread); nread += 1
        if n % 2 == 0 and n + 1 < lim:
            h = a.pend.get(('v', RING[4 * ((n + 1) % NB)].i))
            if h is not None: a.wait(h)
        d = ACC[32 * (sg % 2):32 * (sg % 2) + 16]
        a.I(MF32, d, W1[4 * f:4 * f + 4], RING[4 * (n % NB):4 * (n % NB) + 4], d if f else BIAS)
        isdma = False
        if sg == 0 and f < 16 and f % 2 == 0: tokdma(2, f // 2); isdma = True
        elif sg == 1 and f < 16 and f % 2 == 0: tokdma(3, f // 2); isdma = True
        if n == 96 + apf: vpoll_issue(sCb)
        if n == 96 + l0f:
            if det == 'g1': ST(12)
            vpoll_check('b0', sCb, 0x7f)
            if det == 'g1': ST(13)
        if n > 96 + l0f and nl0 < 14: ldfrag(0, nl0); nl0 += 1
        if nw2[0] < 56 and n >= w2s and (n - w2s) % w2e == 0 and not isdma: w2load()
        if f >= 1:
            for k in range(4):
                if fill: fill.pop(0)()
        if sg >= 2 and f == sigat:
            if det == 'g1' and sg == 2: ST(1)
            signal(sg - 2)
            if det == 'g1' and sg == 2: ST(2)
    while nw2[0] < 56: w2load()
    if det == 'clk': ST.both(7)
    if det == 'g2': ST.on = True; ST.map = None; ST(1)
    else: ST(3 if det == 'g1' else 6)
    if det == 'g1': ST.on = False
    HB = TMP[24:40]; HP = TMP[0:12]
    def mm(sg, extra=None):
        extra = extra or {}
        for k in range(14):
            for cp in range(2):
                d = ACC2[32 * (sg >> 1) + 16 * cp:32 * (sg >> 1) + 16 * cp + 16]
                a.I(MF32, d, W2(28 * (sg % 2) + 2 * k + cp), hbuf(sg, k), d if (k or sg % 2) else 0)
                ex = extra.get(k, [])
                for o in (ex[:(len(ex) + 1) // 2] if cp == 0 else ex[(len(ex) + 1) // 2:]): o()
    def sched(*items):
        ex = {}
        for k0, per, ops in items:
            for n, o in enumerate(ops): ex.setdefault(min(13, k0 + n // per), []).append(o)
        return ex
    def hp_loads():
        return [lambda tk=tk: bload(a, HP[4 * tk:4 * tk + 4], vHo, srdH, sHo[tk], 0, LM) for tk in range(2)] + [lambda: bload(a, HP[8:12], vB2, srdB2, sCol)]
    while nl0 < 14: ldfrag(0, nl0); nl0 += 1
    assert not fill
    tail = gelu_tile(3, pk=True)
    for k, o in enumerate(tail):
        if k == O('apf1', 30): vpoll_issue(sCb)
        o()
    ST(2 if det == 'g2' else 7)
    S_ = (lambda i: ST(i)) if det == 'g2' else (lambda i: None)
    ld = lambda sg: [lambda k=k: ldfrag(sg, k) for k in range(14)]
    b1k = O('b1k', 0)
    mm(0, sched((O('s2k', 2), 3, [lambda: S_(4), lambda: signal(2), lambda: S_(5)]), (b1k, 2, [lambda: vpoll_check('b1', sCb, 0x7f00), lambda: S_(3)]),
                (b1k + 1, O('l1r', 2), ld(1)), (O('s3k', 10), 3, [lambda: S_(6), lambda: signal(3), lambda: S_(7)]),
                (O('hpk', 11), 1, hp_loads()), (O('apf2', 12), 1, [lambda: vpoll_issue(sCb)])))
    a.I('s_branch', L + '_g2')
    saved = a.snapshot()
    a.reset_state()
    a.label(L + '_nog1')
    if det == 'g2': ST.on = False
    a.restore(snap_br)
    nw2[0] = nw2_br
    if KS < 28 and O('ntouch', 1):
        a.I('v_lshlrev_b32', vSigA, 7, vL)
        a.I('s_and_b32', sT, sR, 1); a.I('s_lshl_b32', sT, sT, 1); a.I('s_and_b32', sT2, sM, 1); a.I('s_add_u32', sT, sT, sT2)
        a.I('s_lshl_b32', sT, sT, 2); a.I('s_add_u32', sT, sT, sW); a.I('s_mul_i32', sT2, sT, 4 * 28 * 1024)
        k = 0
        for blk in range(4):
            for lo in range(KS, 28, 8):
                lo = min(lo, 20)
                a.I('s_add_u32', sT, sT2, (blk * 28 + lo) * 1024)
                bload(a, TMP[16 + k % 8], vSigA, srdW2, sT); k += 1
    while nw2[0] < 56: w2load()
    vpoll_issue(sCb); vpoll_check('c0', sCb, 0x7f)
    for k in range(14): ldfrag(0, k)
    vpoll_issue(sCb); vpoll_check('c1', sCb, 0x7f00)
    for k in range(14): ldfrag(1, k)
    mm(0, sched((O('hpk', 11), 1, hp_loads()), (O('apf2', 12), 1, [lambda: vpoll_issue(sCb)])))
    a.wait_vm0()
    a.label(L + '_g2')
    a.restore(saved)
    if det == 'g2': ST.on = True
    ST(8)
    vpoll_check('b2', sCb, 0x7f0000)
    if det == 'g2': ST(12)
    b3k = O('b3k', 14)
    l3 = [(O('apf3', 10), 1, [lambda: vpoll_issue(sCb)]), (b3k % 14, 1, [lambda: vpoll_check('b3', sCb, 0x7f000000)]), (b3k % 14 + (1 if b3k % 14 < 13 else 0), O('l3r', 3), ld(3))]
    mm(1, sched((0, O('l2r', 2), ld(2)), *(l3 if b3k < 14 else l3[:1])))
    ST(9)
    hb = []
    for tk in range(2):
        for i in range(4):
            h = HP[4 * tk + i]; b_ = HP[8 + i]
            hb.append(lambda h=h, b_=b_, tk=tk, i=i: (a.I('v_lshlrev_b32', HB[8 * tk + i], 16, h), a.I('v_lshlrev_b32', t0, 16, b_), a.I('v_add_f32', HB[8 * tk + i], HB[8 * tk + i], t0)))
            hb.append(lambda h=h, b_=b_, tk=tk, i=i: (a.I('v_and_b32', HB[8 * tk + 4 + i], 0xffff0000, h), a.I('v_and_b32', t0, 0xffff0000, b_), a.I('v_add_f32', HB[8 * tk + 4 + i], HB[8 * tk + 4 + i], t0)))
    A2 = lambda tk, cp, jq: ACC2[32 * tk + 16 * cp + 4 * jq:32 * tk + 16 * cp + 4 * jq + 4]
    wr = lambda tk: [lambda x=x, cp=cp: dsw(a, vWr[x - 1], A2(tk, cp, x), tk * 24576 + cp * 1024) for x in range(1, 4) for cp in range(2)]
    def fin(tk, pk):
        ops = [lambda x=x, cp=cp: dsr(a, A2(tk, cp, x + 1), vRd, tk * 24576 + x * 2048 + cp * 1024) for x in range(3) for cp in range(2)]
        for cp in range(2):
            own = A2(tk, cp, 0)
            srcs = [HB[8 * tk + 4 * cp:8 * tk + 4 * cp + 4]] + [A2(tk, cp, x + 1) for x in range(3)]
            for sr in srcs:
                if pk: ops += [lambda own=own, sr=sr, e=e: a.I('v_pk_add_f32', own[e:e + 2], own[e:e + 2], sr[e:e + 2]) for e in (0, 2)]
                else: ops += [lambda own=own, sr=sr, e=e: a.I('v_add_f32', own[e], own[e], sr[e]) for e in range(4)]
        o4 = HB[8 * tk:8 * tk + 4]
        ops += [lambda i=i: cvt(a, o4[i], A2(tk, 0, 0)[i], A2(tk, 1, 0)[i]) for i in range(4)]
        ops.append(lambda: bstore(a, o4, vOo, srdO, sOo[tk], 0, 'sc1' if O('outsc1', 0) else ''))
        return ops
    mm(2, sched(*([] if b3k < 14 else l3[1:]), (O('wr0k', 6), 1, wr(0)), (0, 2, hb)))
    ST(10)
    a.wait_lg0()
    a.barrier()
    f0 = fin(0, False)
    mm(3, sched((0, 2, f0[:6]), (3, 4, f0[6:])))
    if det == 'clk': ST.both(9)
    ST(11)
    for o in wr(1): o()
    a.wait_lg0()
    a.barrier()
    for o in fin(1, True): o()
    ST.on = bool(O('stamp', 0))
    if det == 'clk': ST.both(11)
    elif det not in ('g1', 'g2'): ST(12)
    ST.flush(sW)
    a.label(L + '_fast_end')
    a.label(L + '_end')
    a.I('s_endpgm')
    return dict(name=L, grid=256, block=256, lds=0x28000, nv=256, na=256, ns=102)
```

```python
from common import *
from k2 import cmul, pack_tuples

LDS_K2 = 32768

def fb_consts(a, c, V):
    vN, vG, sV, sT, t0 = c.vN, c.vG, c.sV, c.sT, c.t0
    fN = V(); fG4 = V(); fJ = V(); a0 = V(); st = V(); C = V(4); S_ = V(4); sg = V(); fV = V()
    a.I('v_cvt_f32_u32', fN, vN); a.I('v_cvt_f32_u32', fG4, vG); a.I('v_mul_f32', fG4, 4.0, fG4)
    a.I('s_lshl_b32', sT, sV, 4); a.I('v_add_u32', t0, sT, vN); a.I('v_cvt_f32_u32', fJ, t0)
    a.I('v_cvt_f32_u32', fV, sT); a.I('v_add_f32', fV, fV, fG4)
    a.I('v_and_b32', sg, 1, vN); a.I('v_mul_u32_u24', sg, 0x8000, sg); a.I('v_lshl_or_b32', sg, sg, 16, sg)
    c.B1 = B1 = V(32); c.A2 = A2 = V(32); c.T1c = V(8); c.T1s = V(8); c.T2c = V(8); c.T2s = V(8)
    def p1():
        a.I('v_mul_f32', st, 1.0 / 64, fJ)
        for aa in range(2):
            a.I('v_add_f32', a0, float(16 * aa), fG4); a.I('v_mul_f32', a0, a0, st)
            angles(a, 4, None, a0, st, C, S_)
            pack_tuples(a, B1[8 * aa:8 * aa + 4], B1[8 * aa + 4:8 * aa + 8], C, S_)
        for e in range(16): a.I('v_xor_b32', B1[16 + e], B1[e], sg)
    def p2():
        a.I('v_mul_f32', st, 1.0 / 2048, fJ)
        for t in range(2):
            a.I('v_add_f32', a0, float(16 * t), fG4); a.I('v_mul_f32', a0, a0, st)
            angles(a, 4, None, a0, st, c.T1c[4 * t:4 * t + 4], c.T1s[4 * t:4 * t + 4])
    def p3():
        a.I('v_mul_f32', st, 1.0 / 32, fN); a.I('v_mul_f32', a0, fG4, st)
        angles(a, 4, None, a0, st, C, S_)
        pack_tuples(a, A2[0:4], A2[4:8], C, S_)
        for e in range(8):
            a.I('v_xor_b32', A2[8 + e], A2[e], sg)
            a.I('v_xor_b32', A2[16 + e], 0x80000000, A2[e])
            a.I('v_xor_b32', A2[24 + e], A2[16 + e], sg)
    def p4():
        for t in range(2):
            a.I('v_add_f32', st, float(16 * t), fN); a.I('v_mul_f32', st, 1.0 / 2048, st); a.I('v_mul_f32', a0, fV, st)
            angles(a, 4, None, a0, st, c.T2c[4 * t:4 * t + 4], c.T2s[4 * t:4 * t + 4])
    c.tmp = (C, S_, a0, st, fN, fG4, fJ, sg, fV)
    return p1, p2, p3, p4

def fb_main(a, c, V, AA, ST, lds0=0, stm='', ldm=''):
    B1, A2 = c.B1, c.A2
    V.free(*c.tmp[2:])
    ZF = AA(64); D = V(32); D2 = V(32); TB = V(16); tr = c.tmp[0]; ti = c.tmp[1]; wr = V(4); wi = V(4)
    ST(1)
    a.wait(*c.hz)
    ST(2)
    a.barrier()
    ST(3)
    if hasattr(c, 'after_z'): c.after_z()
    zf = lambda p, t, aa: ZF[32 * p + 16 * t + 4 * aa:32 * p + 16 * t + 4 * aa + 4]
    d_ = lambda X, p, t, cc: X[16 * p + 8 * t + 4 * cc:16 * p + 8 * t + 4 * cc + 4]
    for p in range(2):
        for t in range(2):
            for aa in range(4): dsr(a, zf(p, t, aa), c.vRd[p], aa * 4096 + t * 2048)
    def M1(p):
        for t in range(2):
            for aa in range(4):
                for cc in range(2):
                    d = d_(D, p, t, cc)
                    a.I(MF16, d, zf(p, t, aa), B1[8 * aa + 4 * cc:8 * aa + 4 * cc + 4], d if aa else 0)
    def V1(p):
        for t in range(2):
            X = D[16 * p + 8 * t:16 * p + 8 * t + 8]
            for e in range(4): cmul(a, tr[e], ti[e], X[e], X[4 + e], c.T1c[4 * t + e], c.T1s[4 * t + e], False)
            B = TB[8 * p + 4 * t:8 * p + 4 * t + 4]
            cvt(a, B[0], tr[0], tr[1]); cvt(a, B[1], ti[0], ti[1]); cvt(a, B[2], tr[2], tr[3]); cvt(a, B[3], ti[2], ti[3])
    def M2(p):
        for t in range(2):
            B = TB[8 * p + 4 * t:8 * p + 4 * t + 4]
            for tj in range(2):
                for cc in range(2):
                    d = d_(D2, p, tj, cc); o = 16 * tj + 8 * t + 4 * cc
                    a.I(MF16, d, A2[o:o + 4], B, d if t else 0)
    def V2(p):
        for tj in range(2):
            X = D2[16 * p + 8 * tj:16 * p + 8 * tj + 8]
            for e in range(4):
                w = c.Wp[8 * p + 4 * tj + e]
                a.I('v_lshlrev_b32', wr[e], 16, w); a.I('v_and_b32', wi[e], 0xffff0000, w)
            for e in range(4):
                xr = X[e]; xi = X[4 + e]
                a.I('v_mul_f32', tr[e], xr, wr[e]); a.I('v_mul_f32', ti[e], xr, wi[e])
                a.I('v_fma_f32', tr[e], Neg(xi), wi[e], tr[e]); a.I('v_fmac_f32', ti[e], xi, wr[e])
            B = TB[8 * p + 4 * tj:8 * p + 4 * tj + 4]
            cvt(a, B[0], ti[0], ti[1]); cvt(a, B[1], tr[0], tr[1]); cvt(a, B[2], ti[2], ti[3]); cvt(a, B[3], tr[2], tr[3])
    def M3(p):
        for tj in range(2):
            B = TB[8 * p + 4 * tj:8 * p + 4 * tj + 4]
            for ts in range(2):
                for cc in range(2):
                    d = d_(D, p, ts, cc); o = 16 * ts + 8 * tj + 4 * (1 - cc)
                    a.I(MF16, d, B, A2[o:o + 4], d if tj else 0)
    def V3(p):
        for ts in range(2):
            X = D[16 * p + 8 * ts:16 * p + 8 * ts + 8]
            for e in range(4): cmul(a, tr[e], ti[e], X[e], X[4 + e], c.T2c[4 * ts + e], c.T2s[4 * ts + e], True)
            B = TB[8 * p + 4 * ts:8 * p + 4 * ts + 4]
            cvt(a, B[0], ti[0], ti[1]); cvt(a, B[1], tr[0], tr[1]); cvt(a, B[2], ti[2], ti[3]); cvt(a, B[3], tr[2], tr[3])
            dsw(a, c.vWr, B, 16384 + (2 * p + ts) * 4096)
    C_ = a.capture
    M1(0)
    a.zip_emit(C_(lambda: M1(1)), C_(lambda: V1(0)))
    a.zip_emit(C_(lambda: M2(0)), C_(lambda: V1(1)))
    a.zip_emit(C_(lambda: M2(1)), C_(lambda: V2(0)))
    a.zip_emit(C_(lambda: M3(0)), C_(lambda: V2(1)))
    a.zip_emit(C_(lambda: M3(1)), C_(lambda: V3(0)))
    V3(1)
    if hasattr(c, 'before_x'): c.before_x()
    ST(4)
    a.wait_lg0()
    a.barrier()
    ST(5)
    for p in range(2):
        for ts in range(2):
            for aa in range(4): dsr(a, zf(p, ts, aa), c.vL16, 16384 + ((2 * p + ts) * 4 + aa) * 1024)
    def M4(p, ts):
        for aa in range(4):
            for cc in range(2):
                d = d_(D2, p, ts, cc); o = 8 * aa + 4 * (1 - cc)
                a.I(MF16, d, B1[o:o + 4], zf(p, ts, aa), d if aa else 0)
    c.M4 = M4
    c.D2 = D2; c.TB = TB

def fb_store(a, c, L, stm=''):
    D2, TB, M4 = c.D2, c.TB, c.M4
    C_ = a.capture
    a.I('s_cmp_eq_u32', c.sP, 128)
    a.I('s_cbranch_scc1', L + '_spst')
    snap = a.snapshot()
    def out(p, ts):
        B = TB[8 * p + 4 * ts:8 * p + 4 * ts + 4]; d = D2[16 * p + 8 * ts:16 * p + 8 * ts + 8]
        cvt(a, B[0], d[0], d[1]); cvt(a, B[1], d[4], d[5]); cvt(a, B[2], d[2], d[3]); cvt(a, B[3], d[6], d[7])
        bstore(a, B, c.vQo if p else c.vQo0, c.srdQ, c.sQo[ts], 64 * p, stm)
    M4(0, 0); M4(0, 1); out(0, 0); M4(1, 0); out(0, 1); M4(1, 1); out(1, 0); out(1, 1)
    c.hq = a.vmq[-1]
    after = a.snapshot()
    a.I('s_branch', L + '_stend')
    a.reset_state()
    a.label(L + '_spst')
    a.restore(snap)
    for ts in range(2):
        M4(0, ts); M4(1, ts)
    for ts in range(2):
        B = TB[4 * ts:4 * ts + 4]; d0 = D2[8 * ts:8 * ts + 4]; d1 = D2[16 + 8 * ts:16 + 8 * ts + 4]
        cvt(a, B[0], d0[0], d0[1]); cvt(a, B[1], d1[0], d1[1]); cvt(a, B[2], d0[2], d0[3]); cvt(a, B[3], d1[2], d1[3])
        bstore(a, B, c.vQo, c.srdQ, c.sQo[ts], 0, stm)
    a.label(L + '_stend')
    a.I('s_nop', 1)
    a.restore(after)

def fb_issue(a, c, V, Sg, lds0=0, ldm=''):
    sT, t0, t1, vL, vN, vG, sV, sP = c.sT, c.t0, c.t1, c.vL, c.vN, c.vG, c.sV, c.sP
    srdZ, srdW, c.srdQ = c.srds if hasattr(c, 'srds') else (Sg(4, 4), Sg(4, 4), Sg(4, 4))
    sSrc = Sg(); sWo = Sg(); sT2 = c.sT2
    vO = V(2); vWo = V(); c.Wp = V(16)
    a.I('v_lshrrev_b32', t0, 3, vL); a.I('v_lshlrev_b32', vO[0], 9, t0)
    a.I('v_and_b32', t0, 7, vL); a.I('v_xor_b32', t0, t0, vG); a.I('v_lshl_add_u32', vO[0], t0, 4, vO[0]); a.I('v_xor_b32', vO[1], 64, vO[0])
    a.I('s_lshl_b32', sSrc, sP, 14); a.I('s_lshl_b32', sT, sV, 7); a.I('s_add_u32', sSrc, sSrc, sT)
    a.I('v_lshrrev_b32', t0, 1, vL); a.I('v_and_b32', t1, 1, vL); a.I('v_lshlrev_b32', t1, 5, t1); a.I('v_lshl_add_u32', vWo, t0, 7, t1)
    a.I('s_lshl_b32', sWo, sP, 14); a.I('s_lshl_b32', sT, sV, 12); a.I('s_add_u32', sWo, sWo, sT)
    if hasattr(c, 'pre_issue'): c.pre_issue()
    srd(a, srdZ, P_WS, ZT, ZT_SZ)
    a.I('s_lshl_b32', sT2, sV, 12)
    c.hz = []
    for ii in range(4):
        a.I('s_add_u32', M0, sT2, lds0 + 1024 * ii); a.I('s_add_u32', sT, sSrc, 4096 * ii)
        c.hz.append(dma16(a, vO[ii & 1], srdZ, sT, ldm))
    srd(a, srdW, P_WS, WT, WT_SZ)
    for p in range(2):
        for h in range(2): bload(a, c.Wp[8 * p + 4 * h:8 * p + 4 * h + 4], vWo, srdW, sWo, 64 * p + 16 * h, ldm)
    srd(a, c.srdQ, P_WS, QT, QT_SZ)
    V.free(vO, vWo); Sg.free(sSrc, sWo)

def fb_addrs(a, c, V, Sg, lds0=0):
    sT, t0, t1, vL, vN, vG, sV, sP = c.sT, c.t0, c.t1, c.vL, c.vN, c.vG, c.sV, c.sP
    c.vRd = V(2); c.vWr = V(); c.vL16 = V(); c.vQo = V(); c.vQo0 = V(); c.sQo = Sg(2)
    a.I('v_lshrrev_b32', t0, 1, vN); a.I('v_xor_b32', t0, t0, vG); a.I('v_lshlrev_b32', t0, 4, t0)
    a.I('v_lshl_add_u32', c.vRd[0], vN, 7, t0); a.I('v_xor_b32', c.vRd[1], 64, c.vRd[0])
    a.I('v_lshlrev_b32', c.vL16, 4, vL); a.I('s_lshl_b32', sT, sV, 10); a.I('v_add_u32', c.vWr, sT, c.vL16)
    if lds0:
        for r in (c.vRd[0], c.vRd[1], c.vL16, c.vWr): a.I('v_add_u32', r, lds0, r)
    a.I('v_lshlrev_b32', c.vQo, 16, vN); a.I('v_lshl_add_u32', c.vQo, vG, 4, c.vQo)
    a.I('s_and_b32', sT, sP, 127); a.I('s_lshl_b32', sT, sT, 7); a.I('s_lshl_b32', c.sQo[0], sV, 14); a.I('s_add_u32', c.sQo[0], c.sQo[0], sT)
    a.I('s_add_u32', c.sQo[1], c.sQo[0], 64 * 16384)
    a.I('s_cmp_eq_u32', sP, 0); a.I('s_cselect_b32', sT, 0x10000000, 0); a.I('v_or_b32', c.vQo0, sT, c.vQo)

def gen_k2b(a, L, opt):
    V = Alloc('v', 1, 255); Sg = Alloc('s', 26, 92); AA = Alloc('a', 0, 256)
    ST = Stamps(a, 1, opt)
    O = lambda k, d: int(opt.get(k, d))
    a.reset_state()
    ST(0)
    a.I('s_cmp_ge_u32', s(2), 256)
    a.I('s_cbranch_scc1', L + '_end')
    kernarg(a)
    c = type('C', (), {})()
    c.sV = sW = Sg(); c.sT = sT = Sg(); c.sT2 = sT2 = Sg(); c.sP = s(2)
    c.vL = vL = V(); c.vN = V(); c.vG = V(); c.t0 = t0 = V(); c.t1 = t1 = V()
    wave_id(a, sW, t0)
    a.I('v_and_b32', vL, 63, v(0))
    a.I('s_cmp_ge_u32', s(2), 129)
    a.I('s_cbranch_scc1', L + '_helper')
    mark_v, mark_s = V.p, Sg.p
    a.I('v_and_b32', c.vN, 15, vL); a.I('v_lshrrev_b32', c.vG, 4, vL)
    p1, p2, p3, p4 = fb_consts(a, c, V)
    c.pre_issue = p1
    fb_issue(a, c, V, Sg)
    fb_addrs(a, c, V, Sg)
    p2(); p3(); p4()
    fb_main(a, c, V, AA, ST)
    fb_store(a, c, L, 'sc1' if O('k2sc1', 0) else '')
    ST(6)
    ST.flush(sW)
    a.I('s_endpgm')
    maxv = V.p
    a.reset_state()
    a.label(L + '_helper')
    V.p, Sg.p = mark_v, mark_s
    a.wait_lg0()
    sTau = Sg(); srdP = Sg(4, 4); vP = V(); PF = V(4); sB = Sg()
    a.I('v_lshlrev_b32', vP, 7, vL)
    sw = O('sw_in', 2) == 2
    Hs = []
    if sw:
        m = Sg.p
        for r in range(2):
            sTa = Sg()
            a.I('s_sub_u32', sTa, s(2), 129); a.I('s_lshl_b32', sTa, sTa, 2); a.I('s_add_u32', sTa, sTa, sW)
            a.I('s_min_u32', sTa, sTa, 447); a.I('s_lshl_b32', sTa, sTa, 1)
            if r: a.I('s_add_u32', sTa, sTa, 1)
            Hs.append(w2_swizzle_issue(a, V, Sg, sTa, vL, sT))
    a.I('s_lshr_b32', sB, s(2), 3); a.I('s_cmp_lt_u32', sB, 17)
    a.I('s_cbranch_scc1', L + '_nopf')
    a.begin_cond()
    a.I('s_sub_u32', sB, sB, 17); a.I('s_lshl_b32', sB, sB, 2); a.I('s_add_u32', sB, sB, sW)
    lo1 = O('k2_w1_lo', 0); hi1 = O('k2_w1_hi', 1792); hi2 = O('k2_w2_hi', 0)
    for (P, off, lo, hi) in ((P_W1, 0, lo1, hi1), (P_WS, W2S, 0, hi2)):
        if hi <= lo: continue
        n = -(-(hi - lo) // (60 * 8))
        srd(a, srdP, P, off, hi * 1024)
        a.I('s_mul_i32', sT2, sB, n * 8192); a.I('s_add_u32', sT2, sT2, lo * 1024)
        touch(a, srdP, vP, sT2, n, PF, sT)
    a.end_cond()
    a.label(L + '_nopf')
    ST(1)
    for H in Hs: w2_swizzle_finish(a, H, 'sc1' if O('k2sc1', 0) else '')
    ST(2)
    ST.flush(sW)
    a.label(L + '_end')
    a.I('s_endpgm')
    return dict(name=L, grid=256, block=256, lds=LDS_K2)
```

```python
from common import *
from k2 import cmul
import math

QS = 0x20000
US = 0x22000

class Ctx: pass

def ids(a, L, Sg, V, ST):
    c = Ctx(); c.ST = ST
    ST(0)
    a.I('s_cmp_ge_u32', s(2), 256)
    a.I('s_cbranch_scc1', L + '_end')
    kernarg(a)
    c.sW = Sg(); c.sR = Sg(); c.sM = Sg(); c.sT = Sg(); c.sT2 = Sg()
    c.vL = V(); c.t0 = V(); c.t1 = V()
    wave_id(a, c.sW, c.t0)
    a.I('v_and_b32', c.vL, 63, v(0))
    a.I('s_and_b32', c.sT, s(2), 7); a.I('s_lshl_b32', c.sR, c.sT, 1)
    a.I('s_lshr_b32', c.sT, s(2), 7); a.I('s_add_u32', c.sR, c.sR, c.sT)
    a.I('s_bfe_u32', c.sM, s(2), 0x40003)
    return c

def c1_issue(a, c, V, Sg, qs=QS):
    c.srdQ = Sg(4, 4); c.srdX = Sg(4, 4)
    c1_issue_q(a, c, V, Sg, qs); c1_issue_x(a, c, V, Sg)

def c1_lanes(a, c, V):
    if not hasattr(c, 'vN'):
        c.vN = V(); c.vG = V()
        a.I('v_and_b32', c.vN, 15, c.vL); a.I('v_lshrrev_b32', c.vG, 4, c.vL)

def c1_addr_q(a, c, V, Sg):
    sW, sR, sM, sT, sT2, vL, t0, t1 = c.sW, c.sR, c.sM, c.sT, c.sT2, c.vL, c.t0, c.t1
    c.sSrc = sSrc = Sg(); c.vQoff = vOff = V()
    a.I('v_lshrrev_b32', t0, 2, vL); a.I('v_lshlrev_b32', vOff, 7, t0)
    a.I('v_bfe_u32', t0, vL, 1, 1); a.I('v_lshl_add_u32', vOff, t0, 6, vOff)
    a.I('v_and_b32', t0, 1, vL); a.I('v_lshl_add_u32', vOff, t0, 4, vOff)
    a.I('s_lshl_b32', sSrc, sR, 3); a.I('s_lshr_b32', sT, sM, 1); a.I('s_add_u32', sSrc, sSrc, sT)
    a.I('s_lshl_b32', sSrc, sSrc, 14); a.I('s_lshl_b32', sT, sW, 12); a.I('s_add_u32', sSrc, sSrc, sT)
    a.I('s_and_b32', sT, sM, 1); a.I('s_lshl_b32', sT, sT, 5); a.I('s_add_u32', sSrc, sSrc, sT)
    srd(a, c.srdQ, P_WS, QT, QT_SZ)

def c1_load_q(a, c, qs, mods=''):
    a.I('s_lshl_b32', c.sT, c.sW, 11); a.I('s_add_u32', M0, c.sT, qs)
    c.hq0 = dma16(a, c.vQoff, c.srdQ, c.sSrc, mods)
    a.I('s_add_u32', M0, M0, 1024); a.I('s_add_u32', c.sT2, c.sSrc, 2048)
    c.hq1 = dma16(a, c.vQoff, c.srdQ, c.sT2, mods)

def c1_issue_q(a, c, V, Sg, qs):
    c1_lanes(a, c, V); c1_addr_q(a, c, V, Sg); c1_load_q(a, c, qs)

def c1_issue_x(a, c, V, Sg):
    sW, sR, sM, sT, sT2, vL, t0, t1 = c.sW, c.sR, c.sM, c.sT, c.sT2, c.vL, c.t0, c.t1
    vN, vG = c.vN, c.vG
    sU = Sg(); sRow = Sg(); c.vXo = vXo = V()
    a.I('s_lshl_b32', sU, sR, 3); a.I('s_lshr_b32', sT, sM, 1); a.I('s_add_u32', sU, sU, sT)
    a.I('s_and_b32', sT, sU, 3); a.I('s_lshl_b32', sRow, sT, 4)
    a.I('s_and_b32', sT, sM, 1); a.I('s_lshl_b32', sT, sT, 3); a.I('s_add_u32', sRow, sRow, sT)
    a.I('s_lshl_b32', sT, sW, 1); a.I('s_add_u32', sRow, sRow, sT); a.I('s_lshl_b32', sRow, sRow, 5)
    a.I('s_lshr_b32', sT, sU, 2); a.I('s_add_u32', sRow, sRow, sT); a.I('s_lshl_b32', sRow, sRow, 10)
    a.I('s_add_u32', sT2, sRow, 32768)
    a.I('v_lshlrev_b32', vXo, 5, vN); a.I('v_lshl_add_u32', vXo, vG, 3, vXo)
    srd(a, c.srdX, P_X, 0, 2048 * 1024)
    c.Xp = Xp = V(8)
    for r in range(2):
        for t in range(2): bload(a, Xp[4 * r + 2 * t:4 * r + 2 * t + 2], vXo, c.srdX, (sRow, sT2)[r], 512 * t, getattr(c, 'xm', ''))
    Sg.free(sU, sRow)

def c1_consts(a, c, V, Sg, qs=QS, us=US):
    c1_consts_a(a, c, V, Sg); c1_consts_b(a, c, V, Sg, qs, us)

def c1_consts_a(a, c, V, Sg):
    c1_lanes(a, c, V)
    sW, sR, sM, sT, sT2, vL, t0, t1, vN, vG = c.sW, c.sR, c.sM, c.sT, c.sT2, c.vL, c.t0, c.t1, c.vN, c.vG
    fN = V(); fG = V(); fNG = V(); a0 = V(); st = V(); c.tmp8 = V(8); C = c.tmp8[0:4]; S_ = c.tmp8[4:8]
    a.I('v_cvt_f32_u32', fN, vN); a.I('v_cvt_f32_u32', fG, vG); a.I('v_mul_f32', fNG, fN, fG)
    sLo = Sg(2); c.sQ0 = sQ0 = Sg(2); sN0 = Sg(2)
    a.I('v_cmp_gt_u32', sLo, 2, vG)
    a.I('s_mov_b64', sQ0, 0xffff)
    a.I('v_cmp_eq_u32', sN0, 0, vN)
    c.Br = Br = V(4); c.Bi = Bi = V(4); c.Bsr = Bsr = V(4); c.Bsi = Bsi = V(4)
    a.I('v_mul_f32', a0, 0.25, fNG); a.I('v_mul_f32', st, 1.0 / 16, fN)
    angles(a, 4, None, a0, st, C, S_)
    a.I('v_mov_b32', t1, 0x80008000)
    a.I('v_cndmask_b32', t0, t1, 0, sLo); a.I('v_xor_b32', t1, t1, t0)
    for h in range(2):
        cvt(a, Br[h], C[2 * h], C[2 * h + 1]); cvt(a, Bi[h], S_[2 * h], S_[2 * h + 1])
        a.I('v_xor_b32', Br[2 + h], Bi[h], t1); a.I('v_xor_b32', Bi[2 + h], Br[h], t0)
    a.I('v_mul_f32', t0, 8.0, fG); a.I('v_add_f32', t1, -15.0, t0); a.I('v_cndmask_b32', t0, t1, t0, sLo)
    a.I('v_mul_f32', a0, t0, fN); a.I('v_mul_f32', a0, 1.0 / 32, a0)
    angles(a, 4, None, a0, st, C, S_)
    sgn = V()
    a.I('v_and_b32', sgn, 1, vN); a.I('v_lshlrev_b32', sgn, 31, sgn); a.I('v_or_b32', sgn, 1.0, sgn)
    for e in range(4):
        a.I('v_mul_f32', C[e], 2.0, C[e]); a.I('v_mul_f32', S_[e], -2.0, S_[e])
    a.I('v_cndmask_b32', C[0], C[0], 1.0, sQ0); a.I('v_cndmask_b32', S_[0], S_[0], sgn, sQ0)
    for h in range(2):
        cvt(a, t0, C[2 * h], C[2 * h + 1]); cvt(a, t1, S_[2 * h], S_[2 * h + 1])
        a.I('v_cndmask_b32', Bsr[h], 0, t0, sLo); a.I('v_cndmask_b32', Bsi[h], t0, 0, sLo)
        a.I('v_cndmask_b32', Bsr[2 + h], 0, t1, sLo); a.I('v_cndmask_b32', Bsi[2 + h], t1, 0, sLo)
    c.TC = TC = V(4); c.TS = TS = V(4)
    a.I('v_mul_f32', a0, 1.0 / 128, fNG); a.I('v_mul_f32', st, 1.0 / 512, fN)
    angles(a, 4, None, a0, st, TC, TS)
    for e in range(4):
        a.I('v_mul_f32', TC[e], 2.0 ** -20, TC[e]); a.I('v_mul_f32', TS[e], 2.0 ** -20, TS[e])
    c.k = (fN, fNG, a0, st, C, S_, sgn, sLo, sQ0, sN0); c.fG = fG

def c1_consts_b(a, c, V, Sg, qs, us):
    sW, sR, sM, sT, sT2, vL, t0, t1, vN, vG = c.sW, c.sR, c.sM, c.sT, c.sT2, c.vL, c.t0, c.t1, c.vN, c.vG
    fN, fNG, a0, st, C, S_, sgn, sLo, sQ0, sN0 = c.k
    c.G = G = V(8)
    a.I('v_mul_f32', a0, 0.125, fNG); a.I('v_mul_f32', st, 1.0 / 32, fN)
    angles(a, 4, None, a0, st, C, S_)
    for e in range(4):
        a.I('v_mul_f32', C[e], 2.0, C[e]); a.I('v_mul_f32', S_[e], -2.0, S_[e])
    a.I('v_cndmask_b32', C[0], C[0], 1.0, sQ0); a.I('v_cndmask_b32', S_[0], S_[0], sgn, sQ0)
    for h in range(2):
        cvt(a, G[h], C[2 * h], C[2 * h + 1]); cvt(a, G[2 + h], S_[2 * h], S_[2 * h + 1])
    for e in range(4): a.I('v_xor_b32', G[4 + e], 0x80000000, G[e])
    c.RA = RA = V(4)
    a.I('v_lshl_add_u32', t0, vG, 7, vN)
    a.I('v_sub_u32', t1, 512, t0)
    a.I('v_cndmask_b32', t1, t1, t0, sLo)
    a.I('v_add_u32', t0, -240, t0)
    a.I('s_andn2_b64', VCC, sN0, sLo)
    a.I('v_cndmask_b32', t1, t1, t0, VCC)
    a.I('s_lshr_b32', sT, sW, 1); a.I('s_lshl_b32', sT, sT, 4); a.I('s_and_b32', sT2, sW, 1); a.I('s_lshl_b32', sT2, sT2, 3)
    a.I('s_add_u32', sT, sT, sT2); a.I('s_add_u32', sT, sT, qs)
    a.I('v_lshl_add_u32', RA[0], t1, 5, sT)
    a.I('s_or_b64', VCC, sN0, sLo)
    a.I('v_mov_b32', t0, -1024); a.I('v_mov_b32', t1, 1024); a.I('v_cndmask_b32', t0, t0, t1, VCC)
    for i in range(1, 4): a.I('v_add_u32', RA[i], RA[i - 1], t0)
    c.UW = UW = V(2); c.UR = UR = V()
    a.I('s_lshl_b32', sT, sW, 1)
    for r in range(2):
        a.I('v_add_u32', t0, sT, vL)
        if r: a.I('v_add_u32', t0, 1, t0)
        a.I('v_and_b32', t0, 7, t0); a.I('v_lshlrev_b32', t0, 4, t0)
        a.I('v_lshl_add_u32', UW[r], vL, 7, t0); a.I('v_add_u32', UW[r], us, UW[r])
    a.I('v_lshrrev_b32', t1, 3, vL); a.I('v_add_u32', t0, t1, vL); a.I('v_and_b32', t0, 7, t0); a.I('v_lshlrev_b32', t0, 4, t0)
    a.I('v_lshl_add_u32', UR, t1, 7, t0)
    a.I('s_lshl_b32', sT, sW, 11); a.I('s_add_u32', sT, sT, us); a.I('v_add_u32', UR, sT, UR)
    if not hasattr(c, 'srdH'): c.srdH = Sg(4, 4); c.srdU = Sg(4, 4)
    c.sHo = Sg(2); c.vUo = V()
    srd(a, c.srdH, P_WS, HH, HH_SZ); srd(a, c.srdU, P_WS, U2, U2_SZ)
    a.I('s_lshl_b32', sT, sR, 4); a.I('s_add_u32', sT, sT, sM)
    a.I('s_lshl_b32', c.sHo[0], sT, 13); a.I('s_lshl_b32', sT2, sW, 11); a.I('s_add_u32', c.sHo[0], c.sHo[0], sT2)
    a.I('s_add_u32', c.sHo[1], c.sHo[0], 1024)
    a.I('v_lshlrev_b32', c.vUo, 4, vL)
    c.sel = Sg(2)
    a.I('s_mov_b32', c.sel[0], 0x05040100); a.I('s_mov_b32', c.sel[1], 0x07060302)
    V.free(fN, fNG, a0, st, sgn, c.fG); Sg.free(sLo, sN0)
    if getattr(c, 'no_y', False): return
    c1_yinit(a, c, V)

def c1_yinit(a, c, V):
    c.Y = Y = V(16)
    for r in range(2):
        for t in range(2):
            for h in range(2):
                x = c.Xp[4 * r + 2 * t + h]
                a.I('v_lshlrev_b32', Y[8 * r + 4 * t + 2 * h], 16, x); a.I('v_and_b32', Y[8 * r + 4 * t + 2 * h + 1], 0xffff0000, x)

def c1_main(a, c, V, Sg, stmods='', defer=False):
    t0, t1 = c.t0, c.t1
    A = V(8); D = V(32); Q = D[16:24]; Y = c.Y; tr = c.tmp8[0:4]; ti = c.tmp8[4:8]
    c.ST(1)
    a.wait(c.hq0, c.hq1)
    c.ST(2)
    a.barrier()
    c.ST(3)
    if hasattr(c, 'hook_after_q'): c.hook_after_q()
    for i in range(4): dsr(a, Q[2 * i:2 * i + 2], c.RA[i])
    for r in range(2):
        Ar = A[4 * r:4 * r + 4]
        a.I('v_perm_b32', Ar[0], Q[2], Q[0], c.sel[r]); a.I('v_perm_b32', Ar[1], Q[6], Q[4], c.sel[r])
        a.I('v_perm_b32', Ar[2], Q[3], Q[1], c.sel[r]); a.I('v_perm_b32', Ar[3], Q[7], Q[5], c.sel[r])
        o = 16 * r
        a.I(MF16, D[o:o + 4], Ar, c.Br, 0); a.I(MF16, D[o + 4:o + 8], Ar, c.Bi, 0)
        a.I(MF16, D[o + 8:o + 12], Ar, c.Bsr, 0); a.I(MF16, D[o + 12:o + 16], Ar, c.Bsi, 0)
    for r in range(2):
        o = 16 * r
        for e in (1, 2, 3, 0):
            if e == 0:
                a.I('v_cndmask_b32', D[o], D[o], D[o + 8], c.sQ0); a.I('v_cndmask_b32', D[o + 4], D[o + 4], D[o + 12], c.sQ0)
            cmul(a, tr[e], ti[e], D[o + e], D[o + 4 + e], c.TC[e], c.TS[e], True)
        Ar = A[4 * r:4 * r + 4]
        cvt(a, Ar[0], tr[0], tr[1]); cvt(a, Ar[1], tr[2], tr[3]); cvt(a, Ar[2], ti[0], ti[1]); cvt(a, Ar[3], ti[2], ti[3])
        for t in range(2):
            y = Y[8 * r + 4 * t:8 * r + 4 * t + 4]
            a.I(MF16, y, Ar, c.G[4 * t:4 * t + 4], y)
    if hasattr(c, 'hook_mid'): c.hook_mid()
    Hp = c.Xp
    ones = Q[0]; S0, Q0, S1, Q1 = Q[1], Q[2], Q[3], Q[4]
    a.I('v_mov_b32', ones, 0x3f803f80)
    for r in range(2):
        for t in range(2):
            for h in range(2): cvt(a, Hp[4 * r + 2 * t + h], Y[8 * r + 4 * t + 2 * h], Y[8 * r + 4 * t + 2 * h + 1])
            if not defer: c.hst = bstore(a, Hp[4 * r + 2 * t:4 * r + 2 * t + 2], c.vXo, c.srdH, c.sHo[r], 512 * t, mods=stmods)
    for e in range(4):
        for r, (S_, Q_) in enumerate(((S0, Q0), (S1, Q1))):
            x = Hp[4 * r + e]
            a.I('v_dot2_f32_bf16', S_, x, ones, S_ if e else 0); a.I('v_dot2_f32_bf16', Q_, x, x, Q_ if e else 0)
    a.I('s_nop', 2)
    a.I('v_permlane32_swap_b32', S0, S1); a.I('v_permlane32_swap_b32', Q0, Q1)
    a.I('v_add_f32', S0, S0, S1); a.I('v_add_f32', Q0, Q0, Q1)
    a.I('v_permlane16_swap_b32', S0, Q0)
    a.I('v_add_f32', S0, S0, Q0)
    for k in (1, 2, 4, 8):
        a.I('v_add_f32_dpp', S0, S0, S0, mods='row_ror:%d row_mask:0xf bank_mask:0xf' % k)
    a.I('v_mov_b32', Q0, S0)
    a.I('v_permlane16_swap_b32', S0, Q0)
    m1, v1, mb, r1, m2, r2 = S0, Q0, Q[5], Q[6], Q[7], S1
    a.I('v_mul_f32', m1, 1.0 / 512, m1); a.I('v_mul_f32', v1, 1.0 / 512, v1)
    a.I('v_fma_f32', v1, Neg(m1), m1, v1); a.I('v_max_f32', v1, 0, v1)
    round_bf16(a, mb, m1); round_bf16(a, r1, v1)
    a.I('v_add_f32', r1, 1e-5, r1); round_bf16(a, r1, r1)
    a.I('v_sqrt_f32', r1, r1); round_bf16(a, r1, r1); a.I('v_rcp_f32', r1, r1)
    a.I('v_sub_f32', m2, m1, mb); a.I('v_mul_f32', m2, m2, r1); round_bf16(a, m2, m2)
    a.I('v_mul_f32', v1, v1, r1); a.I('v_mul_f32', v1, v1, r1); round_bf16(a, r2, v1)
    a.I('v_add_f32', r2, 1e-5, r2); round_bf16(a, r2, r2)
    a.I('v_sqrt_f32', r2, r2); round_bf16(a, r2, r2); a.I('v_rcp_f32', r2, r2)
    a.I('v_fmac_f32', m2, mb, r1); a.I('v_mul_f32', m2, m2, r2)
    a.I('v_mul_f32', r1, r1, r2)
    sc = (r1, t0); sh = (m2, t1)
    a.I('v_mov_b32', t0, r1); a.I('v_mov_b32', t1, m2)
    a.I('v_permlane32_swap_b32', r1, t0); a.I('v_permlane32_swap_b32', m2, t1)
    for r in range(2):
        for e in range(8): a.I('v_fma_f32', Y[8 * r + e], Y[8 * r + e], sc[r], Neg(sh[r]))
        Ar = A[4 * r:4 * r + 4]
        for e in range(4): cvt(a, Ar[e], Y[8 * r + 2 * e], Y[8 * r + 2 * e + 1])
        dsw(a, c.UW[r], Ar)
    c.ST(4)
    a.wait_lg0()
    a.barrier()
    c.ST(5)
    for nn in range(2): dsr(a, D[4 * nn:4 * nn + 4], c.UR, 1024 * nn)
    if hasattr(c, 'hook_before_st'): c.hook_before_st()
    c.UD = D
    if defer: return
    for nn in range(2): c.ust = bstore(a, D[4 * nn:4 * nn + 4], c.vUo, c.srdU, c.sHo[nn], mods=stmods)

def gen_c1(a, L, opt):
    ST = Stamps(a, 2, opt)
    V = Alloc('v', 1, 255); Sg = Alloc('s', 26, 92)
    a.reset_state()
    c = ids(a, L, Sg, V, ST)
    c1_issue(a, c, V, Sg, qs=0)
    c1_consts(a, c, V, Sg, qs=0, us=8192)
    c1_main(a, c, V, Sg)
    ST(6)
    ST.flush(c.sW, 7)
    a.label(L + '_end')
    a.I('s_endpgm')
    return dict(name=L, grid=256, block=256, lds=16384, nv=V.p, na=0, ns=102)

GC1 = -2.0 * math.sqrt(2.0 / math.pi) * math.log2(math.e)
GC2 = GC1 * 0.044715

def gelu_ops(a, acc, tmp, out, sC2, vC1):
    ops = []
    nt = len(tmp) // 2
    for base in range(0, 16, nt):
        idx = list(range(base, base + nt))
        t = lambda e: tmp[e % nt]
        u = lambda e: tmp[nt + e % nt]
        for e in idx: ops.append(lambda e=e: a.I('v_mul_f32', t(e), acc[e], acc[e]))
        for e in idx: ops.append(lambda e=e: a.I('v_fma_f32', t(e), t(e), sC2, vC1))
        for e in idx: ops.append(lambda e=e: a.I('v_mul_f32', t(e), t(e), acc[e]))
        for e in idx: ops.append(lambda e=e: a.I('v_exp_f32', t(e), t(e)))
        for e in idx: ops.append(lambda e=e: a.I('v_add_f32', t(e), 1.0, t(e)))
        for e in idx: ops.append(lambda e=e: a.I('v_rcp_f32', t(e), t(e)))
        for e in idx: ops.append(lambda e=e: a.I('v_mul_f32', t(e), t(e), acc[e]))
        for e in idx[::2]: ops.append(lambda e=e: cvt(a, out[e // 2], t(e), t(e + 1)))
    return ops

def gen_g1(a, L, opt):
    ST = Stamps(a, 3, opt)
    V = Alloc('v', 1, 255); Sg = Alloc('s', 26, 92); AA = Alloc('a', 0, 256)
    a.reset_state()
    c = ids(a, L, Sg, V, ST)
    sW, sR, sM, sT, sT2, vL, t0, t1 = c.sW, c.sR, c.sM, c.sT, c.sT2, c.vL, c.t0, c.t1
    a.I('s_cmp_ge_u32', sM, 14)
    a.I('s_cbranch_scc1', L + '_end')
    srdU = Sg(4, 4); srdW = Sg(4, 4); srdB = Sg(4, 4); srdH1 = Sg(4, 4)
    vUo = V(); vL16 = V(); vL16b = V(); vBo = V(); vC1 = V(); sC2 = Sg()
    sUo = Sg(2); sWo = Sg(); sHo = Sg()
    TK = V(128, 4); ACC = V(64, 4); TMP = V(32, 4)
    WF = AA(32)
    a.I('v_lshlrev_b32', vL16, 4, vL)
    a.I('v_bfe_u32', t0, vL, 3, 2); a.I('v_lshlrev_b32', vUo, 13, t0)
    a.I('v_lshrrev_b32', t0, 5, vL); a.I('v_lshl_add_u32', vUo, t0, 7, vUo)
    a.I('v_lshlrev_b32', vBo, 4, t0)
    a.I('v_and_b32', t0, 7, vL); a.I('v_lshl_add_u32', vUo, t0, 4, vUo)
    a.I('s_lshl_b32', sT, sR, 2); a.I('s_add_u32', sT, sT, sW)
    a.I('s_lshl_b32', sUo[0], sT, 15); a.I('s_add_u32', sUo[1], sUo[0], 4096)
    a.I('s_mul_i32', sHo, sT, 4 * 28 * 1024); a.I('s_lshl_b32', sT2, sM, 11); a.I('s_add_u32', sHo, sHo, sT2)
    srd(a, srdU, P_WS, U2, U2_SZ); srd(a, srdW, P_WS, W1S, W1S_SZ); srd(a, srdB, P_B1, 0, 3584); srd(a, srdH1, P_WS, H1, H1_SZ)
    a.I('s_lshl_b32', sT, sM, 8)
    for q in range(8): bload(a, TMP[4 * q:4 * q + 4], vBo, srdB, sT, 32 * q)
    a.I('s_lshl_b32', sWo, sM, 17); a.I('s_lshl_b32', sT, sW, 11); a.I('s_add_u32', sWo, sWo, sT)
    sM0 = Sg(); sSo = Sg()
    def wdma(T, q):
        hs = []
        for e in range(2):
            off = (T * 32 + 8 * q + e) * 1024
            a.I('s_add_u32', M0, sT, off); a.I('s_add_u32', sSo, sWo, off)
            hs.append(dma16(a, vL16, srdW, sSo))
        return hs
    chunk = []
    for q in range(4):
        hs = wdma(0, q) + wdma(1, q)
        for f in range(8 * q, 8 * q + 8):
            hs.append(bload(a, TK[4 * f:4 * f + 4], vUo, srdU, sUo[f // 16], 256 * (f % 16)))
        chunk.append(hs)
    a.I('v_add_u32', vL16b, 65536, vL16)
    a.I('v_mov_b32', vC1, GC1); a.I('s_mov_b32', sC2, GC2)
    for TT in range(2):
        for j in range(4):
            for i in range(4):
                x = TMP[4 * (4 * TT + j) + i]
                a.I('v_lshlrev_b32', ACC[16 * (2 * TT) + 4 * j + i], 16, x)
                a.I('v_and_b32', ACC[16 * (2 * TT + 1) + 4 * j + i], 0xffff0000, x)
    late = []
    seq = [(T, f) for f in range(32) for T in (0, 1)] + [(2, f) for f in range(32)] + [(3, f) for f in range(32)]
    NB = 8
    def rd(n):
        T, f = seq[n]
        dsr(a, WF[4 * (n % NB):4 * (n % NB) + 4], vL16 if T < 2 else vL16b, ((T % 2) * 32 + f) * 1024)
    fill = []
    OUT = TMP[16:24]
    hoff = [0]
    def gelu_tile(T):
        ops = gelu_ops(a, ACC[16 * T:16 * T + 16], TMP[0:16], OUT, sC2, vC1)
        def st(u):
            a.I('s_add_u32', sSo, sHo, (T * 28 + u) * 1024)
            bstore(a, OUT[4 * u:4 * u + 4], vL16, srdH1, sSo)
        res = []
        for k, o in enumerate(ops):
            res.append(o)
        half = len(ops) // 2
        res.insert(half, lambda: st(0))
        res.append(lambda: st(1))
        return res
    nread = 0
    for n, (T, f) in enumerate(seq):
        if n < 64 and n % 16 == 0:
            q = n // 16
            if q == 0: ST(1)
            a.wait(*chunk[q])
            a.barrier()
            ST(2 + q)
            if q == 0:
                for TT in (2, 3):
                    for qq in range(4): late += wdma(TT, qq)
            lim = n + 16
        if n == 64:
            ST(6)
            a.wait(*late); a.barrier(); lim = 128
            ST(7)
            fill = gelu_tile(0) + gelu_tile(1)
        if n == 96:
            fill += gelu_tile(2)
        while nread < min(n + NB - 1, lim):
            rd(nread); nread += 1
        if nread <= n: rd(nread); nread += 1
        d = ACC[16 * T:16 * T + 16]
        a.I(MF32, d, WF[4 * (n % NB):4 * (n % NB) + 4], TK[4 * f:4 * f + 4], d)
        k = 0
        while fill and k < 5:
            fill.pop(0)(); k += 1
    ST(8)
    fill += gelu_tile(3)
    for o in fill: o()
    ST.flush(sW, 9)
    a.label(L + '_end')
    a.I('s_endpgm')
    return dict(name=L, grid=256, block=256, lds=131072, nv=V.p, na=AA.p, ns=102)

def gen_g2(a, L, opt):
    ST = Stamps(a, 4, opt)
    V = Alloc('v', 1, 255); Sg = Alloc('s', 26, 92)
    a.reset_state()
    c = ids(a, L, Sg, V, ST)
    sW, sR, sM, sT, sT2, vL, t0, t1 = c.sW, c.sR, c.sM, c.sT, c.sT2, c.vL, c.t0, c.t1
    srdH1 = Sg(4, 4); srdW = Sg(4, 4); srdH = Sg(4, 4); srdB = Sg(4, 4); srdO = Sg(4, 4)
    vL16 = V(); vWo = V(); vHo = V(); vBo = V(); vOo = V(); vWr = V(3); vRd = V()
    sTk = Sg(); sA0 = Sg(); sA1 = Sg(); sWo = Sg(); sSo = Sg(); sCol = Sg(); sHo = Sg(); sOo = Sg()
    ACC = V(64, 4)
    NS = 8
    BUF = V(16 * NS, 4)
    HB = V(16, 4)
    a.I('v_lshlrev_b32', vL16, 4, vL)
    a.I('s_and_b32', sT, sW, 1); a.I('s_lshl_b32', sT, sT, 8); a.I('v_xor_b32', vWo, sT, vL16)
    a.I('s_lshl_b32', sTk, sR, 2); a.I('s_lshr_b32', sT, sM, 3); a.I('s_lshl_b32', sT, sT, 1); a.I('s_add_u32', sTk, sTk, sT)
    a.I('s_lshr_b32', sT, sW, 1); a.I('s_add_u32', sTk, sTk, sT)
    a.I('s_mul_i32', sT2, sW, 7 * 1024)
    a.I('s_mul_i32', sA0, sTk, 4 * 28 * 1024); a.I('s_add_u32', sA0, sA0, sT2)
    a.I('s_xor_b32', sT, sTk, 1); a.I('s_mul_i32', sA1, sT, 4 * 28 * 1024); a.I('s_add_u32', sA1, sA1, sT2)
    a.I('s_and_b32', sT, sM, 7); a.I('s_lshl_b32', sT, sT, 2); a.I('s_add_u32', sT, sT, sW); a.I('s_mul_i32', sWo, sT, 28 * 2048)
    srd(a, srdH1, P_WS, H1, H1_SZ); srd(a, srdW, P_WS, W2S, W2S_SZ)
    srd(a, srdH, P_WS, HH, HH_SZ); srd(a, srdB, P_B2, 0, 1024); srd(a, srdO, P_OUT, 0, 2048 * 1024)
    a.I('s_and_b32', sCol, sM, 7); a.I('s_lshl_b32', sCol, sCol, 7); a.I('s_and_b32', sT, sW, 1); a.I('s_lshl_b32', sT, sT, 6); a.I('s_add_u32', sCol, sCol, sT)
    a.I('v_lshrrev_b32', t0, 5, vL); a.I('v_lshlrev_b32', vBo, 4, t0)
    a.I('v_and_b32', t0, 31, vL); a.I('v_lshl_add_u32', vHo, t0, 10, vBo)
    a.I('s_lshl_b32', sHo, sTk, 15); a.I('s_add_u32', sHo, sHo, sCol)
    HP = BUF[16 * (NS - 1):16 * NS]
    for jj in range(2):
        bload(a, HP[4 * jj:4 * jj + 4], vHo, srdH, sHo, 32 * jj)
        bload(a, HP[8 + 4 * jj:12 + 4 * jj], vBo, srdB, sCol, 32 * jj)
    steps = [(T, zz) for T in range(4) for zz in range(7)]
    sAo = Sg(2); sWs = Sg()
    def ld(n):
        T, zz = steps[n]; b = BUF[16 * (n % NS):16 * (n % NS) + 16]
        if zz % 4 == 0:
            a.I('s_add_u32', sAo[0], sA0, (T * 28 + zz) * 1024); a.I('s_add_u32', sAo[1], sA1, (T * 28 + zz) * 1024)
        if n % 2 == 0: a.I('s_add_u32', sWs, sWo, n * 2048)
        bload(a, b[0:4], vWo, srdW, sWs, (n % 2) * 2048); bload(a, b[8:12], vL16, srdH1, sAo[0], (zz % 4) * 1024)
        bload(a, b[4:8], vWo, srdW, sWs, (n % 2) * 2048 + 1024); bload(a, b[12:16], vL16, srdH1, sAo[1], (zz % 4) * 1024)
    for n in range(NS - 1): ld(n)
    a.I('v_bfe_u32', t0, vL, 4, 1); a.I('v_lshl_add_u32', vOo, t0, 19, vBo)
    a.I('v_and_b32', t0, 15, vL); a.I('v_lshl_add_u32', vOo, t0, 15, vOo)
    a.I('s_and_b32', sOo, sTk, 1); a.I('s_lshl_b32', sOo, sOo, 20); a.I('s_lshr_b32', sT, sTk, 1); a.I('s_lshl_b32', sT, sT, 10)
    a.I('s_add_u32', sOo, sOo, sT); a.I('s_add_u32', sOo, sOo, sCol)
    for x in range(1, 4):
        a.I('s_xor_b32', sT, sW, x); a.I('s_mul_i32', sT, sT, 3 * 4096); a.I('s_add_u32', sT, sT, (x - 1) * 4096)
        a.I('v_add_u32', vWr[x - 1], sT, vL16)
    a.I('s_mul_i32', sT, sW, 3 * 4096); a.I('v_add_u32', vRd, sT, vL16)
    for jj in range(2):
        for i in range(4):
            h = HP[4 * jj + i]; b = HP[8 + 4 * jj + i]
            a.I('v_lshlrev_b32', HB[4 * jj + i], 16, h); a.I('v_lshlrev_b32', t0, 16, b); a.I('v_add_f32', HB[4 * jj + i], HB[4 * jj + i], t0)
            a.I('v_and_b32', HB[8 + 4 * jj + i], 0xffff0000, h); a.I('v_and_b32', t0, 0xffff0000, b); a.I('v_add_f32', HB[8 + 4 * jj + i], HB[8 + 4 * jj + i], t0)
    ST(1)
    for n in range(28):
        if n in (1, 7, 14, 21): ST({1: 2, 7: 3, 14: 4, 21: 5}[n])
        if n + NS - 1 < 28: ld(n + NS - 1)
        b = BUF[16 * (n % NS):16 * (n % NS) + 16]
        for tk in range(2):
            for cp in range(2):
                d = ACC[32 * tk + 16 * cp:32 * tk + 16 * cp + 16]
                a.I(MF32, d, b[4 * cp:4 * cp + 4], b[8 + 4 * tk:12 + 4 * tk], d if n else 0)
    ST(6)
    for x in range(1, 4):
        tk = x >> 1; h = x & 1
        for cp in range(2):
            for q in range(2):
                o = 32 * tk + 16 * cp + 8 * h + 4 * q
                dsw(a, vWr[x - 1], ACC[o:o + 4], (2 * cp + q) * 1024)
    for cp in range(2):
        for e in range(8): a.I('v_add_f32', ACC[16 * cp + e], ACC[16 * cp + e], HB[8 * cp + e])
    a.wait_lg0()
    a.barrier()
    ST(7)
    for x in range(3):
        for k in range(4): dsr(a, BUF[16 * x + 4 * k:16 * x + 4 * k + 4], vRd, x * 4096 + k * 1024)
    for x in range(3):
        for cp in range(2):
            for e in range(8): a.I('v_add_f32', ACC[16 * cp + e], ACC[16 * cp + e], BUF[16 * x + 8 * cp + e])
    for jj in range(2):
        for i in range(4): cvt(a, HB[4 * jj + i], ACC[4 * jj + i], ACC[16 + 4 * jj + i])
        bstore(a, HB[4 * jj:4 * jj + 4], vOo, srdO, sOo, 32 * jj)
    ST(8)
    ST.flush(sW, 9)
    a.label(L + '_end')
    a.I('s_endpgm')
    return dict(name=L, grid=256, block=256, lds=49152, nv=V.p, na=0, ns=102)

def c1_stores(a, c, stmods):
    for nn in range(2): c.ust = bstore(a, c.UD[4 * nn:4 * nn + 4], c.vUo, c.srdU, c.sHo[nn], mods=stmods)
    for r in range(2):
        for t in range(2): c.ust = bstore(a, c.Xp[4 * r + 2 * t:4 * r + 2 * t + 2], c.vXo, c.srdH, c.sHo[r], 512 * t, mods=stmods)
```

```python
from common import *

LDS_K1 = 8 * 2064

def gen_k1(a, L, opt):
    name = L
    V = Alloc('v', 1, 255); Sg = Alloc('s', 26, 92)
    ST = Stamps(a, 0, opt)
    a.reset_state()
    ST(0)
    a.I('s_cmp_ge_u32', s(2), 256)
    a.I('s_cbranch_scc1', L + '_end')
    kernarg(a)
    if int(opt.get('selfpf', 0)):
        q = s(96, 4) if not int(opt.get('stamp', 0)) else s(92, 4)
        a.I('s_getpc_b64', q[0:2])
        a.label(L + '_spc')
        a.raw('s_mov_b32 s%d, %s-%s' % (q.i + 2, L + '_end', L + '_spc'))
        a.I('s_mov_b32', q[3], 0x20000)
        a.I('v_lshlrev_b32', v(254), 7, v(0)); a.I('v_add_u32', v(254), int(opt['selfpf']) * 128, v(254))
        a.I('s_mov_b64', EXEC, -1)
        h = bload(a, v(253), v(254), q, 0); a.pend.pop(('v', 253), None)
    sW = Sg(); sXcd = Sg(); sIdx = Sg(); sT = Sg(); sT2 = Sg()
    vL = V(); vN = V(); vG = V(); t0 = V(); t1 = V()
    wave_id(a, sW, t0)
    a.I('v_and_b32', vL, 63, v(0))
    a.I('s_and_b32', sXcd, s(2), 7)
    a.I('s_lshr_b32', sIdx, s(2), 3)
    a.I('s_cmp_ge_u32', sIdx, 16)
    a.I('s_cbranch_scc1', L + '_helper')
    mark_v, mark_s = V.p, Sg.p
    srdX = Sg(4, 4); srdZ = Sg(4, 4)
    sU = Sg(); sRow = Sg()
    a.I('s_lshl_b32', sU, sXcd, 4); a.I('s_add_u32', sU, sU, sIdx)
    a.I('s_and_b32', sT, sU, 3); a.I('s_lshl_b32', sT, sT, 4)
    a.I('s_lshl_b32', sT2, sW, 1); a.I('s_add_u32', sT, sT, sT2); a.I('s_lshl_b32', sT, sT, 5)
    a.I('s_lshr_b32', sT2, sU, 2); a.I('s_add_u32', sT, sT, sT2); a.I('s_lshl_b32', sRow, sT, 10)
    vOff = V()
    a.I('v_and_b32', vN, 15, vL); a.I('v_lshrrev_b32', vG, 4, vL)
    a.I('v_bfe_u32', t0, vL, 1, 1); a.I('v_lshlrev_b32', vOff, 15, t0)
    a.I('v_lshl_add_u32', vOff, vG, 5, vOff)
    a.I('v_bfe_u32', t0, vL, 2, 2); a.I('v_lshl_add_u32', vOff, t0, 3, vOff)
    a.I('v_and_b32', t0, 1, vL); a.I('v_lshl_add_u32', vOff, t0, 2, vOff)
    srd(a, srdX, P_X, 0, 2048 * 1024)
    X = V(8)
    for j in range(8): hx = bload(a, X[j], vOff, srdX, sRow, 128 * j, 'nt' if int(opt.get('xnt', 0)) else '')
    srd(a, srdZ, P_WS, ZT, ZT_SZ)
    fN = V(); fG = V(); a0 = V(); st = V(); C = V(8); S_ = V(8)
    a.I('v_cvt_f32_u32', fN, vN); a.I('v_cvt_f32_u32', fG, vG)
    sM0 = Sg(2); sLo = Sg(2); sQ0 = Sg(2)
    a.I('v_cmp_eq_u32', sM0, 0, vN)
    a.I('v_cmp_gt_u32', sLo, 8, vN)
    a.I('s_mov_b64', sQ0, 0xffff)
    fNG = V()
    a.I('v_mul_f32', fNG, fN, fG)
    B1r = V(4); B1i = V(4)
    a.I('v_mul_f32', a0, 1.0 / 32, fNG); a.I('v_mul_f32', st, 0.125, fN)
    angles(a, 8, None, a0, st, C, S_)
    a.I('v_and_b32', t0, 1, vG); a.I('v_mul_u32_u24', t0, 0x8000, t0); a.I('v_lshl_or_b32', t0, t0, 16, t0)
    a.I('v_or_b32', t0, 0x3f803f80, t0)
    for jj in range(4):
        cvt(a, B1r[jj], C[2 * jj], C[2 * jj + 1])
        cvt(a, B1i[jj], Neg(S_[2 * jj]), Neg(S_[2 * jj + 1]))
        a.I('v_cndmask_b32', B1i[jj], B1i[jj], t0, sM0)
    TC = V(4); TS = V(4)
    a.I('v_mul_f32', a0, 1.0 / 128, fNG); a.I('v_mul_f32', st, 1.0 / 512, fN)
    angles(a, 4, None, a0, st, TC, TS)
    B2r = V(4); B2i = V(4); B2sr = V(4); B2si = V(4)
    a.I('v_mul_f32', a0, 0.25, fNG); a.I('v_mul_f32', st, 1.0 / 16, fN)
    angles(a, 4, None, a0, st, C, S_)
    a.I('v_mov_b32', t1, 0x80008000)
    a.I('v_cndmask_b32', t0, t1, 0, sLo)
    a.I('v_xor_b32', t1, t1, t0)
    for h in range(2):
        cvt(a, B2r[h], C[2 * h], C[2 * h + 1]); cvt(a, B2r[2 + h], S_[2 * h], S_[2 * h + 1])
        a.I('v_xor_b32', B2i[h], B2r[2 + h], t1)
        a.I('v_xor_b32', B2i[2 + h], B2r[h], t0)
    a.I('v_add_f32', t0, fN, fN); a.I('v_add_f32', t1, -15.0, t0); a.I('v_cndmask_b32', t0, t1, t0, sLo)
    a.I('v_mul_f32', st, 1.0 / 32, t0); a.I('v_mul_f32', a0, fG, st); a.I('v_mul_f32', a0, 4.0, a0)
    angles(a, 4, None, a0, st, C, S_)
    a.I('v_mov_b32', t1, 0xbf803f80)
    for h in range(2):
        cvt(a, t0, C[2 * h], C[2 * h + 1])
        a.I('v_cndmask_b32', B2sr[h], 0, t0, sLo); a.I('v_cndmask_b32', B2sr[2 + h], t0, 0, sLo)
        cvt(a, t0, Neg(S_[2 * h]), Neg(S_[2 * h + 1]))
        a.I('v_cndmask_b32', t0, t0, t1, sM0)
        a.I('v_cndmask_b32', B2si[h], 0, t0, sLo); a.I('v_cndmask_b32', B2si[2 + h], t0, 0, sLo)
    WA = V(4)
    a.I('s_mul_i32', sT, sW, 2064)
    a.I('v_lshl_add_u32', t1, vG, 7, sT)
    for i in range(4):
        a.I('v_add_u32', t0, i, vN); a.I('v_and_b32', t0, 15, t0)
        a.I('v_lshl_add_u32', WA[i], t0, 3, t1)
        if i: a.I('v_add_u32', WA[i], 512 * i, WA[i])
    RA = V(2); vZ = V(); vK1 = V(); vNn = V()
    a.I('v_lshrrev_b32', vZ, 2, vL)
    def sigma_addr(dst, k1, nn):
        a.I('v_and_b32', t0, 3, k1)
        a.I('v_add_u32', t1, nn, t0); a.I('v_and_b32', t1, 15, t1)
        a.I('v_lshl_add_u32', t1, t0, 6, t1)
        a.I('v_lshrrev_b32', t0, 2, k1); a.I('v_lshl_add_u32', t1, t0, 4, t1)
        a.I('v_and_b32', t0, 3, vL); a.I('v_mul_u32_u24', t0, 4128, t0)
        a.I('v_lshl_add_u32', dst, t1, 3, t0)
    a.I('v_mov_b32', vNn, sW)
    sigma_addr(RA[0], vZ, vNn)
    a.I('v_cmp_eq_u32', VCC, 0, vZ)
    a.I('v_sub_u32', vK1, 16, vZ); a.I('v_and_b32', vK1, 15, vK1)
    a.I('s_sub_u32', sT, 15, sW); a.I('s_add_u32', sT2, sW, 8)
    a.I('v_mov_b32', vNn, sT); a.I('v_mov_b32', t0, sT2)
    a.I('v_cndmask_b32', vNn, vNn, t0, VCC)
    sigma_addr(RA[1], vK1, vNn)
    vZo = V(); sZo = Sg(); sZo1 = Sg()
    a.I('v_lshrrev_b32', t0, 3, vL); a.I('v_and_b32', t1, 7, vL)
    a.I('v_lshlrev_b32', t1, 4, t1); a.I('v_lshl_add_u32', vZo, t0, 14, t1)
    a.I('s_lshl_b32', sZo, sW, 18); a.I('s_lshl_b32', sT, sU, 7); a.I('s_add_u32', sZo, sZo, sT)
    a.I('s_add_u32', sZo1, sZo, 8 * 16384)
    ST(1)
    a.wait(hx)
    ST(2)
    Ssum = V(); Q = V(); ones = V()
    a.I('v_mov_b32', ones, 0x3f803f80)
    a.I('v_dot2_f32_bf16', Ssum, X[0], ones, 0); a.I('v_dot2_f32_bf16', Q, X[0], X[0], 0)
    for j in range(1, 8):
        a.I('v_dot2_f32_bf16', Ssum, X[j], ones, Ssum); a.I('v_dot2_f32_bf16', Q, X[j], X[j], Q)
    a.I('s_nop', 2)
    xf = V(16)
    ln_reduce_pairs(a, Ssum, Q, t0)
    for j in range(8):
        a.I('v_lshlrev_b32', xf[2 * j], 16, X[j]); a.I('v_and_b32', xf[2 * j + 1], 0xffff0000, X[j])
    a.I('v_mul_f32', Ssum, 1.0 / 512, Ssum); a.I('v_mul_f32', Q, 1.0 / 512, Q)
    a.I('v_fma_f32', Q, Neg(Ssum), Ssum, Q); a.I('v_max_f32', Q, 0, Q)
    round_bf16(a, Ssum, Ssum); round_bf16(a, Q, Q)
    a.I('v_add_f32', Q, 1e-5, Q); round_bf16(a, Q, Q)
    a.I('v_sqrt_f32', Q, Q); round_bf16(a, Q, Q)
    a.I('v_rcp_f32', Q, Q)
    a.I('v_mul_f32', Ssum, Ssum, Q)
    for e in range(16): a.I('v_fma_f32', xf[e], xf[e], Q, Neg(Ssum))
    P = V(8)
    for b in range(2):
        for jj in range(4): cvt(a, P[4 * b + jj], xf[4 * jj + b], xf[4 * jj + 2 + b])
    D = V(16)
    for b in range(2):
        a.I(MF16, D[8 * b:8 * b + 4], P[4 * b:4 * b + 4], B1r, 0)
        a.I(MF16, D[8 * b + 4:8 * b + 8], P[4 * b:4 * b + 4], B1i, 0)
    A2 = V(8); tr = xf[0:4]; ti = xf[4:8]
    D2 = V(32)
    for r in range(2):
        for db in range(2):
            for b in range(2):
                e = 2 * db + b; Tr = D[8 * b + 2 * r + db]; Ti = D[8 * b + 4 + 2 * r + db]
                a.I('v_mul_f32', tr[e], Tr, TC[e]); a.I('v_mul_f32', ti[e], Ti, TC[e])
                a.I('v_fmac_f32', tr[e], Ti, TS[e]); a.I('v_fma_f32', ti[e], Neg(Tr), TS[e], ti[e])
        A = A2[4 * r:4 * r + 4]
        cvt(a, A[0], tr[0], tr[1]); cvt(a, A[1], tr[2], tr[3]); cvt(a, A[2], ti[0], ti[1]); cvt(a, A[3], ti[2], ti[3])
        o = 16 * r
        a.I(MF16, D2[o:o + 4], A, B2r, 0); a.I(MF16, D2[o + 4:o + 8], A, B2i, 0)
        a.I(MF16, D2[o + 8:o + 12], A, B2sr, 0); a.I(MF16, D2[o + 12:o + 16], A, B2si, 0)
    O = xf[8:16]
    for i in (1, 2, 3, 0):
        if i == 0:
            for r in range(2):
                for c in range(2):
                    a.I('v_cndmask_b32', D2[16 * r + 4 * c], D2[16 * r + 4 * c], D2[16 * r + 8 + 4 * c], sQ0)
        cvt(a, O[2 * i], D2[i], D2[16 + i]); cvt(a, O[2 * i + 1], D2[4 + i], D2[20 + i])
        dsw(a, WA[i], O[2 * i:2 * i + 2])
    ST(3)
    a.wait_lg0()
    a.barrier()
    ST(4)
    for it in range(2):
        dsr(a, P[4 * it:4 * it + 2], RA[it], 0); dsr(a, P[4 * it + 2:4 * it + 4], RA[it], 2064)
    zm = {0: '', 1: 'sc1', 2: 'nt'}[int(opt.get('zst', 0))]
    bstore(a, P[0:4], vZo, srdZ, sZo, 0, zm); bstore(a, P[4:8], vZo, srdZ, sZo1, 0, zm)
    a.I('s_cmp_lg_u32', sW, 0)
    a.I('s_cbranch_scc1', L + '_nosp')
    a.begin_cond()
    a.I('s_mov_b64', EXEC, 15)
    X8 = xf[0:8]
    for h in range(2):
        a.I('v_mov_b32', X8[4 * h], P[h]); a.I('v_mov_b32', X8[4 * h + 1], 0); a.I('v_mov_b32', X8[4 * h + 2], P[2 + h]); a.I('v_mov_b32', X8[4 * h + 3], 0)
    a.I('s_add_u32', sT, sZo, 128 * 16384)
    bstore(a, X8[0:4], vZo, srdZ, sT, 0, zm); bstore(a, X8[4:8], vZo, srdZ, sT, 64, zm)
    a.I('s_mov_b64', EXEC, -1)
    a.end_cond()
    a.label(L + '_nosp')
    ST(5)
    ST.flush(sW, 6)
    a.I('s_endpgm')
    maxv = V.p
    a.reset_state()
    a.label(L + '_helper')
    V.p, Sg.p = mark_v, mark_s
    sHb = Sg(); srdC = Sg(4, 4)
    a.I('s_sub_u32', sHb, sIdx, 16); a.I('s_lshl_b32', sHb, sHb, 3); a.I('s_add_u32', sHb, sHb, sXcd)
    a.I('s_cmp_lg_u32', sW, 0)
    a.I('s_cbranch_scc1', L + '_hw2')
    m2v, m2s = V.p, Sg.p
    srdR = Sg(4, 4); srdI = Sg(4, 4); srdW = Sg(4, 4)
    sJp = Sg(); sQ = Sg(); sBase = Sg(); sDst = Sg(); so = Sg(8)
    a.I('s_lshr_b32', sJp, sHb, 2); a.I('s_and_b32', sQ, sHb, 3)
    a.I('s_lshl_b32', sT, sJp, 1); a.I('s_lshl_b32', sT2, sQ, 8); a.I('s_add_u32', sT, sT, sT2); a.I('s_mul_i32', sBase, sT, 514)
    for tj in range(2):
        for rho in range(4):
            a.I('s_add_u32', so[4 * tj + rho], sBase, (1024 * tj + 64 * rho) * 514)
    vK = V(); vH = V(); vS = V(); vD = V(); vD0 = V(); vS2 = V(); vD2 = V()
    a.I('v_and_b32', vK, 31, vL); a.I('v_lshrrev_b32', vH, 5, vL)
    a.I('v_mul_u32_u24', vS, 514, vH); a.I('v_lshl_add_u32', vS, vK, 4, vS)
    a.I('v_mul_u32_u24', vS2, 514, vL); a.I('v_add_u32', vS2, 512, vS2)
    a.wait_lg0()
    srd(a, srdR, P_WR, 0, 2048 * 514); srd(a, srdI, P_WI, 0, 2048 * 514)
    wnt = 'nt' if int(opt.get('wnt', 0)) else ''
    WRr = V(32, 4); WIr = V(32, 4); WR2 = V(8); WI2 = V(8); OB = V(16, 4)
    for e in range(8):
        bload(a, WRr[4 * e:4 * e + 4], vS, srdR, so[e], 0, wnt); bload(a, WIr[4 * e:4 * e + 4], vS, srdI, so[e], 0, wnt)
    a.I('s_mov_b64', EXEC, 3)
    for e in range(8):
        a.I('buffer_load_ushort', WR2[e], vS2, srdR, so[e], mods='offen')
        a.I('buffer_load_ushort', WI2[e], vS2, srdI, so[e], mods='offen')
    a.I('s_mov_b64', EXEC, -1)
    srd(a, srdW, P_WS, WT, WT_SZ)
    a.I('v_lshlrev_b32', vD, 16, vK); a.I('v_lshl_add_u32', vD, vH, 5, vD)
    a.I('v_cmp_eq_u32', VCC, 0, vK); a.I('v_add_u32', t0, 128 * 16384, vD); a.I('v_cndmask_b32', vD0, vD, t0, VCC)
    a.I('v_lshlrev_b32', vD2, 5, vL); a.I('v_add_u32', vD2, 128 * 16384 + 64, vD2)
    a.I('s_lshr_b32', sT, sJp, 3); a.I('s_lshl_b32', sDst, sT, 12)
    a.I('s_and_b32', sT, sJp, 7); a.I('s_lshl_b32', sT2, sQ, 3); a.I('s_add_u32', sT, sT, sT2); a.I('s_lshl_b32', sT, sT, 7)
    a.I('s_add_u32', sDst, sDst, sT)
    sel = Sg(2); sD = Sg(4)
    a.I('s_mov_b32', sel[0], 0x05040100); a.I('s_mov_b32', sel[1], 0x07060302)
    for p in range(4): a.I('s_add_u32', sD[p], sDst, 16384 * p)
    ST(1)
    SM = {0: '', 1: 'sc1', 2: 'nt'}[int(opt.get('wst', 0))]
    for cidx in range(8):
        O = OB[8 * (cidx % 2):8 * (cidx % 2) + 8]
        for e in range(8): a.I('v_perm_b32', O[e], WIr[4 * e + cidx // 2], WRr[4 * e + cidx // 2], sel[cidx % 2])
        if cidx == 0: ST(2)
        for h in range(2): bstore(a, O[4 * h:4 * h + 4], vD0 if cidx == 0 else vD, srdW, sD[cidx // 2], (cidx % 2) * 64 + 16 * h, SM)
    a.I('s_mov_b64', EXEC, 3)
    for e in range(8): a.I('v_lshl_or_b32', WR2[e], WI2[e], 16, WR2[e])
    bstore(a, WR2[0:4], vD2, srdW, sDst, 0, SM); bstore(a, WR2[4:8], vD2, srdW, sDst, 16, SM)
    a.I('s_mov_b64', EXEC, -1)
    ST.flush(sW)
    a.I('s_endpgm')
    maxv = max(maxv, V.p)
    a.reset_state()
    a.label(L + '_hw2')
    V.p, Sg.p = m2v, m2s
    a.wait_lg0()
    sTau = Sg()
    a.I('s_mul_i32', sTau, sHb, 7); a.I('s_add_u32', sTau, sTau, sW); a.I('s_sub_u32', sTau, sTau, 1)
    sw = int(opt.get('sw_in', 1)) == 1
    dly = int(opt.get('k1delay', 0))
    if sw and not dly: H = w2_swizzle_issue(a, V, Sg, sTau, vL, sT, 'nt' if int(opt.get('w2nt', 0)) else '')
    PF = V(4); vP = V(); sB = Sg()
    if opt.get('clear_cnt'):
        srd(a, srdC, P_WS, CNT, CNT_SZ)
        Z4 = V(4); vZ = V()
        for e in range(4): a.I('v_mov_b32', Z4[e], 0)
        a.I('v_subrev_u32', t0, 64, v(0)); a.I('v_lshlrev_b32', vZ, 4, t0); a.I('v_mov_b32', t1, 0x10000000)
        a.I('v_cmp_gt_u32', VCC, 96, t0); a.I('v_cndmask_b32', vZ, t1, vZ, VCC)
        a.I('s_mul_i32', sT, sHb, 1536)
        bstore(a, Z4, vZ, srdC, sT)
    if int(opt.get('pf_code', 0)):
        pc = Sg(2)
        a.I('s_getpc_b64', pc)
        a.label(L + '_pc')
        a.raw('s_add_u32 s%d, s%d, %s-%s' % (pc.i, pc.i, opt['code_lo'], L + '_pc'))
        a.raw('s_addc_u32 s%d, s%d, 0' % (pc.i + 1, pc.i + 1))
        srd(a, srdC, pc, 0, 0)
        a.raw('s_mov_b32 s%d, %s-%s' % (srdC.i + 2, opt['code_hi'], opt['code_lo']))
        if dly:
            a.I('s_sub_u32', sT, sW, 1); a.I('s_mul_i32', sT, sT, 3); a.I('v_add_u32', t0, sT, vL); a.I('v_lshlrev_b32', vP, 7, t0); a.I('v_mov_b32', t1, 0x10000000)
            a.I('v_cmp_gt_u32', VCC, 3, vL); a.I('v_cndmask_b32', vP, t1, vP, VCC)
        else:
            a.I('v_subrev_u32', t0, 192, v(0)); a.I('v_lshlrev_b32', vP, 7, t0); a.I('v_mov_b32', t1, 0x10000000)
            a.I('v_cmp_gt_u32', VCC, 16, t0); a.I('v_cndmask_b32', vP, t1, vP, VCC)
        a.I('s_sub_u32', sB, sIdx, 16); a.I('s_lshl_b32', sB, sB, 11)
        bload(a, PF[0], vP, srdC, sB)
    if sw and dly:
        a.wait_vm0()
        H = w2_swizzle_issue(a, V, Sg, sTau, vL, sT, 'nt' if int(opt.get('w2nt', 0)) else '')
    ST(1)
    hi1 = int(opt.get('k1_w1_hi', 0))
    if hi1:
        n = -(-hi1 // (112 * 8))
        if sw: a.wait(a.pend[('v', H.IN[7].i)])
        srd(a, srdC, P_W1, 0, hi1 * 1024)
        a.I('v_lshlrev_b32', vP, 7, vL)
        a.I('s_sub_u32', sB, sIdx, 16); a.I('s_mul_i32', sB, sB, 7); a.I('s_add_u32', sB, sB, sW); a.I('s_sub_u32', sB, sB, 1); a.I('s_mul_i32', sB, sB, n * 8192)
        touch(a, srdC, vP, sB, n, PF[1:4], sT)
    if sw: w2_swizzle_finish(a, H, {0: '', 1: 'sc1', 2: 'nt'}[int(opt.get('sst', 0))])
    if int(opt.get('k1wb', 0)):
        a.I('s_cmp_lg_u32', sW, 7); a.I('s_cbranch_scc1', L + '_nwb'); a.I('s_cmp_lt_u32', sIdx, 32 - int(opt['k1wb'])); a.I('s_cbranch_scc1', L + '_nwb')
        a.wait_vm0(); a.I('buffer_wbl2', mods='sc1')
        a.label(L + '_nwb')
    ST(2)
    ST.flush(sW)
    a.label(L + '_end')
    a.I('s_endpgm')
    maxv = max(maxv, V.p)
    return dict(name=name, grid=256, block=512, lds=LDS_K1, nv=maxv, na=0, ns=102)
```

```python
from common import *
from k3 import ids, c1_lanes, c1_addr_q, c1_load_q, c1_issue_x, c1_consts_a, c1_consts_b, c1_yinit, c1_main, c1_stores, gelu_ops, GC1, GC2, Ctx
from k3g import gelu_pk_ops, apoll_issue, apoll_check
from k2b import fb_consts, fb_issue, fb_addrs, fb_main, fb_store

CA = 0
CB = 256 * 128
CX = CB + 1024 * 128
SPIN = 1 << 16
SPECIAL = 120

def gen_k23(a, L, opt):
    ST = Stamps(a, 1, opt, vreg=23)
    det = opt.get('det', '')
    O = lambda k, d: int(opt.get(k, d))
    AT = 1; fast = False; SM = SM1 = LM = LM1 = 'sc1'; allp = 1
    Vp = Alloc('v', 1, 23)
    Sg = Alloc.ranges('s', (3, 4), (26, 28), (60, 92))
    srdC, srdW2, srdH, srdU, srdA, srdB, srdG, srdX = [s(28 + 4 * k, 4) for k in range(8)]
    a.reset_state()
    c = ids(a, L, Sg, Vp, ST)
    if det in ('g1', 'g2', 'clk'): ST.on = False
    if det == 'clk': ST.both(1)
    sW, sR, sM, sT, sT2, vL, t0, t1 = c.sW, c.sR, c.sM, c.sT, c.sT2, c.vL, c.t0, c.t1
    c1_lanes(a, c, Vp)
    c.xm = 'nt' if O('x2nt', 0) else ''
    c.srdH, c.srdU, c.srdQ, c.srdX = srdH, srdU, srdG, srdX
    ACC = v(24, 64); BIAS = v(240, 16); ACC2 = v(24, 64)
    W2V = v(88, 96); RING = v(184, 32); TMP = v(216, 40)
    W1 = R('a', 0, 128); W2A = R('a', 128, 128)
    W2 = lambda n: W2A[4 * n:4 * n + 4] if n < 32 else W2V[4 * (n - 32):4 * (n - 32) + 4]
    vL16 = Vp(); vSig = Vp(); vSigA = Vp(); vOne = Vp(); vBo = Vp(); vW1 = Vp(); vWo = Vp()
    sCnt = s(6, 2); sPc = Sg(); sWg = [s(8), s(9)]; sPv = Sg(4, 4)
    sSo = Sg(); sM0 = Sg(); sWo = Sg(); sTh = Sg(); sOwn = Sg(); sTk = Sg(); sA = Sg(2); sCb = Sg(); sCol = Sg()
    srdH1 = srdG
    sR1 = Sg(); sM1 = Sg(); sOwn1 = Sg()
    if O('g1_2d', 1):
        a.I('s_lshr_b32', sT, s(2), 7); a.I('s_mul_i32', sT, sT, 14); a.I('s_add_u32', sT, sT, sM)
        a.I('s_mul_i32', sR1, sT, 37); a.I('s_lshr_b32', sR1, sR1, 8)
        a.I('s_mul_i32', sT2, sR1, 7); a.I('s_sub_u32', sM1, sT, sT2)
        a.I('s_and_b32', sT, s(2), 1); a.I('s_mul_i32', sT, sT, 7); a.I('s_add_u32', sM1, sM1, sT)
        a.I('s_bfe_u32', sT, s(2), 0x20001); a.I('s_lshl_b32', sT, sT, 2); a.I('s_add_u32', sR1, sR1, sT)
    else:
        a.I('s_mov_b32', sR1, sR); a.I('s_mov_b32', sM1, sM)
    a.I('s_lshl_b32', sOwn1, sR1, 4); a.I('s_add_u32', sOwn1, sOwn1, sM1); a.I('s_lshl_b32', sOwn1, sOwn1, 7)
    a.I('v_mov_b32', t0, 0x10000000)
    a.I('v_cmp_gt_u32', VCC, 16, vL); a.I('v_lshlrev_b32', t1, 7, vL); a.I('v_cndmask_b32', vSigA, t0, t1, VCC)
    a.I('v_cmp_gt_u32', VCC, 8, vL); a.I('v_lshlrev_b32', t1, 9, vL); a.I('v_cndmask_b32', vSig, t0, t1, VCC)
    a.I('v_mov_b32', vOne, 1)
    a.I('v_lshlrev_b32', vL16, 4, vL)
    a.I('v_lshrrev_b32', t0, 5, vL); a.I('v_lshlrev_b32', vBo, 3, t0)
    a.I('v_lshrrev_b32', t0, 4, vL); a.I('v_mul_u32_u24', vW1, 3584, t0)
    a.I('v_lshlrev_b32', t0, 2, t0); a.I('v_and_b32', t1, 15, vL); a.I('v_xor_b32', t0, t0, t1); a.I('v_lshl_add_u32', vW1, t0, 4, vW1)
    a.I('s_lshl_b32', sT, sW, 7); a.I('v_xor_b32', vWo, sT, vL16)
    a.I('s_lshr_b32', sTh, sM, 3)
    a.I('s_lshl_b32', sOwn, sR, 4); a.I('s_add_u32', sOwn, sOwn, sM); a.I('s_lshl_b32', sOwn, sOwn, 7)
    a.I('s_lshl_b32', sTk, sR, 2); a.I('s_lshl_b32', sT, sTh, 1); a.I('s_add_u32', sTk, sTk, sT)
    for g in range(2):
        if g: a.I('s_xor_b32', sT2, sTh, 1)
        p = sT2 if g else sTh
        a.I('s_lshl_b32', sT, sTk, 2); a.I('s_add_u32', sT, sT, sW); a.I('s_lshl_b32', sT, sT, 1); a.I('s_add_u32', sT, sT, p)
        a.I('s_mul_i32', sA[g], sT, 14 * 1024)
    a.I('s_lshl_b32', sCb, sOwn, 2); a.I('s_lshl_b32', sT, sW, 7); a.I('s_add_u32', sCb, sCb, sT); a.I('s_add_u32', sCb, sCb, CB)
    Sg.free(sOwn)
    a.I('s_mul_i32', sSo, sW, 14336); a.I('s_lshl_b32', sT, sM1, 8); a.I('s_add_u32', sSo, sSo, sT)
    a.I('s_lshl_b32', sM0, sW, 10)
    sRot = s(23)
    def rot_setup():
        if not ROT: return
        a.I('s_and_b32', sT, sR1, 1); a.I('s_mul_i32', sT2, sT, 256 * 3584); a.I('s_add_u32', sSo, sSo, sT2)
        a.I('s_lshl_b32', sT2, sT, 16); a.I('s_add_u32', sM0, sM0, sT2)
        a.I('s_mul_i32', sRot, sT, 512 * 3584)
    a.I('s_and_b32', sT, sM, 7); a.I('s_lshl_b32', sT, sT, 2); a.I('s_add_u32', sT, sT, sW); a.I('s_mul_i32', sWo, sT, 56 * 1024)
    hdma = []; nw2 = [0]
    ROT = O('rot', 1); W1M = ['']
    POL = {0: '', 1: 'nt', 2: 'sc1', 3: 'sc0', 4: 'sc1 nt', 5: 'sc0 nt', 6: 'sc0 sc1', 7: 'sc0 sc1 nt'}
    def w1dma(i):
        if i == 16 and ROT:
            a.I('s_xor_b32', sM0, sM0, 65536); a.I('s_sub_u32', sSo, sSo, sRot)
        a.I('s_add_u32', M0, sM0, 4096 * (i % 16 if ROT else i))
        hdma.append(dma16(a, vW1, srdA, sSo, W1M[0]))
        if i < 31: a.I('s_add_u32', sSo, sSo, 4 * 14336)
    KS = O('w2_split', 28)
    ORDER = list(range(KS)) + list(range(28, 28 + KS)) + list(range(KS, 28)) + list(range(28 + KS, 56))
    def w2load():
        n = ORDER[nw2[0]]; nw2[0] += 1; k = n % 28
        if k % 4 == 0: a.I('s_add_u32', sWo, sWg[n // 28], k * 1024)
        return bload(a, W2(n), vWo, srdW2, sWo, (k % 4) * 1024)
    def late_setup():
        srd(a, srdC, P_WS, CNT, CNT_SZ); srd(a, srdW2, P_WS, W2S, W2S_SZ); srd(a, srdA, P_W1, 0, 512 * 3584)
        a.I('s_cmp_ge_u32', sM, 14)
        a.I('s_cselect_b32', srdA[2], 0, 512 * 3584)
        rot_setup()
        a.I('s_mov_b32', sCnt[0], srdC[0]); a.I('s_mov_b32', sCnt[1], srdC[1])
        a.I('s_mul_i32', sT, sTh, 28 * 1024); a.I('s_add_u32', sWg[0], sWo, sT)
        a.I('s_xor_b32', sT, sTh, 1); a.I('s_mul_i32', sT, sT, 28 * 1024); a.I('s_add_u32', sWg[1], sWo, sT)
    def bias_load():
        srd(a, srdB, P_B1, 0, 3584)
        a.I('s_lshl_b32', sT, sM1, 8); a.I('s_lshl_b32', sT2, sW, 6); a.I('s_add_u32', sT, sT, sT2)
        for j in range(4): bload(a, BIAS[8 + 2 * j:10 + 2 * j], vBo, srdB, sT, 16 * j)
    def bias_unpack():
        for e in range(8):
            a.I('v_lshlrev_b32', BIAS[2 * e], 16, BIAS[8 + e]); a.I('v_and_b32', BIAS[2 * e + 1], 0xffff0000, BIAS[8 + e])
    TA = Vp(2)
    def tr_addr():
        a.I('v_bfe_u32', t0, vL, 2, 2)
        a.I('v_lshrrev_b32', t1, 5, vL); a.I('v_lshl_add_u32', t1, t1, 4, t0); a.I('v_lshlrev_b32', TA[0], 8, t1)
        a.I('v_and_b32', t1, 3, vL); a.I('v_lshl_add_u32', TA[0], t1, 3, TA[0])
        a.I('v_bfe_u32', t1, vL, 4, 1); a.I('v_lshl_add_u32', TA[0], t1, 5, TA[0])
        a.I('v_xor_b32', t0, sW, t0); a.I('v_lshl_add_u32', TA[0], t0, 6, TA[0]); a.I('v_add_u32', TA[1], 65536, TA[0])
    def tr_reads():
        for f in range(32):
            off = (32 * (f % 8) + 4 * (f // 8)) * 256
            for h in range(2): a.I('ds_read_b64_tr_b16', W1[4 * f + 2 * h:4 * f + 2 * h + 2], TA[h], mods='offset:%d' % off)
    A1 = O('a2a1', 1)
    def wait_all2all(tag):
        a.I('s_cmp_lg_u32', sW, 0); a.I('s_cbranch_scc1', L + '_np' + tag)
        if not A1:
            a.I('s_and_b32', sT2, s(2), 63); a.I('s_lshl_b32', sT2, sT2, 7); a.I('s_add_u32', sT2, sT2, CX + 1024)
            apoll_issue(a, sCnt, sT2, sPv); apoll_check(a, L, 'y' + tag, sCnt, sT2, sPv, 0, 8, sPc)
        else:
            T8 = [sPv[k] for k in range(4)] + [s(12 + k) for k in range(4)]
            a.wait_lg0()
            a.I('s_and_b32', sT2, s(2), 31); a.I('s_lshl_b32', sT2, sT2, 10); a.I('s_add_u32', sT2, sT2, CX)
            a.I('s_add_u32', s(16), sCnt[0], sT2); a.I('s_addc_u32', s(17), sCnt[1], 0)
            a.I('s_mov_b32', sPc, SPIN)
            a.label(L + '_polly' + tag)
            for k in range(8): a.I('s_load_dword', T8[k], s(16, 2), 128 * k, mods='glc')
            a.wait_lg0()
            a.I('s_sub_u32', T8[SPECIAL & 7], T8[SPECIAL & 7], 1)
            a.I('s_cmp_eq_u32', T8[SPECIAL & 7], -1); a.I('s_cselect_b32', T8[SPECIAL & 7], 0, T8[SPECIAL & 7])
            for k in (0, 2, 4, 6): a.I('s_min_u32', T8[k], T8[k], T8[k + 1])
            a.I('s_min_u32', T8[0], T8[0], T8[2]); a.I('s_min_u32', T8[4], T8[4], T8[6]); a.I('s_min_u32', T8[0], T8[0], T8[4])
            a.I('s_cmp_ge_u32', T8[0], 16); a.I('s_cbranch_scc1', L + '_np' + tag)
            a.I('s_sub_u32', sPc, sPc, 1); a.I('s_cmp_lg_u32', sPc, 0); a.I('s_cbranch_scc1', L + '_polly' + tag)
        a.label(L + '_np' + tag)
        a.barrier()
    def c1_signal(tag):
        a.wait(c.ust)
        a.barrier()
        a.I('s_cmp_lg_u32', sW, 0)
        a.I('s_cbranch_scc1', L + '_nosig' + tag)
        a.begin_cond()
        a.I('s_lshl_b32', sT, sR, 11)
        if O('ptile', 1): a.I('s_and_b32', sT2, sM, 12); a.I('s_add_u32', sT, sT, sT2)
        a.I('buffer_atomic_add', vOne, vSigA, srdC, sT, mods='offen sc1')
        a.end_cond()
        a.label(L + '_nosig' + tag)
    NJ = O('w2_join', 28)
    c1pool = lambda: Alloc.ranges('v', (24, 88), (184, 240))
    a.I('s_and_b32', sT, sR, 1); a.I('s_cmp_eq_u32', s(2), SPECIAL); a.I('s_cselect_b32', sT, 1, sT); a.I('s_cmp_lg_u32', sT, 0)
    a.I('s_cbranch_scc0', L + '_helper')
    snap0 = (a.snapshot(), Sg.snapshot(), Vp.snapshot())
    def emit_helper(npend):
        a.reset_state()
        a.label(L + '_helper')
        a.restore(snap0[0]); Sg.restore(snap0[1]); Vp.restore(snap0[2]); hdma[:] = []; nw2[0] = 0
        for nm in ('hook_after_q', 'hook_before_st'):
            if hasattr(c, nm): delattr(c, nm)
        ST.on = bool(O('stamp', 0)) and det not in ('g1', 'g2', 'clk'); ST.map = None
        V = c1pool()
        W1M[0] = POL[O('w1h', 0)]
        depth = O('hdepth', 8); early = O('hearly', 0)
        c1_consts_a(a, c, V, Sg)
        late_setup(); bias_load(); tr_addr()
        c.no_y = True
        c1_issue_x(a, c, V, Sg)
        c1_addr_q(a, c, V, Sg)
        n0 = O('hw2first', 0); n1 = min(NJ, O('hw2', 12))
        seq = ['w2'] * n0 + ['w1'] * 32 + ['w2'] * (n1 - n0)
        allh = []; trd = False; trat = n0 + 32 + min(n1 - n0, O('htr', 8))
        def step(x):
            allh.append(w2load() if x == 'w2' else (w1dma(len(hdma)), hdma[-1])[1])
        for x in seq[:early]: step(x)
        c1_consts_b(a, c, V, Sg, 0x20000, 0x22000)
        ST(1)
        for k in range(early, len(seq)):
            if len(allh) >= depth: a.wait(allh[len(allh) - depth])
            step(seq[k])
            if k + 1 == trat: a.wait(hdma[-1]); a.barrier(); tr_reads()
        c1_yinit(a, c, V); bias_unpack()
        ST(2)
        wait_all2all('h')
        c1_load_q(a, c, 0x20000, 'sc1')
        ST.map = {1: None, 2: 3, 3: None, 4: None, 5: 4}
        c1_main(a, c, V, Sg, defer=True)
        ST.map = None
        c1_stores(a, c, SM)
        for _ in range(O('hw2post', 8)):
            if nw2[0] < NJ: w2load()
        c1_signal('h')
        ST(10)
        while nw2[0] < NJ: w2load()
        a._emit_wait(vm=npend if O('hwait', 0) == 0 else 0, lg=0)
        a.I('s_branch', L + '_join_h')
    W1M[0] = POL[O('w1f', 0)]
    V = Alloc('v', 24, 256); AA = Alloc('a', 0, 128)
    b = Ctx(); b.sV = sW; b.sT = sT; b.sT2 = sT2; b.vL = vL; b.vN = c.vN; b.vG = c.vG; b.t0 = t0; b.t1 = t1
    b.sP = Sg(); b.srds = (srdG, srdX, srdB)
    a.I('s_and_b32', sT, s(2), 7); a.I('s_lshl_b32', sT, sT, 4); a.I('s_add_u32', sT, sT, sM)
    a.I('s_cmp_eq_u32', s(2), SPECIAL); a.I('s_cselect_b32', b.sP, 128, sT)
    p1, p2, p3, p4 = fb_consts(a, b, V)
    b.pre_issue = p1
    fb_issue(a, b, V, Sg, lds0=0x20000, ldm='nt' if O('znt', 0) else '')
    fb_addrs(a, b, V, Sg, 0x20000)
    late_setup()
    p2(); p3(); p4()
    STb = lambda k: ST({1: 1, 2: 5, 3: 6, 4: 7, 5: 8}.get(k)) if (det == 'b' or k == 1) else None
    nt = O('ftouch', 0)
    if nt:
        vP = V(); PF = V(2); sB = Sg()
        a.I('v_lshlrev_b32', vP, 7, vL)
        a.I('s_lshl_b32', sB, sM, 2); a.I('s_add_u32', sB, sB, sW)
        a.I('s_mul_i32', sB, sB, 28 * 1024)
        def ftouch():
            for e in range(nt):
                a.I('s_add_u32', sT, sB, (28 - 8 * nt + 8 * e) * 1024)
                bload(a, PF[e % 2], vP, srdW2, sT)
        b.after_z = ftouch
    nbw = O('b_w2', 0)
    if nbw:
        a.bg = [w2load for _ in range(nbw)]
        b.after_z = lambda: setattr(a, 'bg_every', O('b_w2_every', 14))
        b.before_x = lambda: (setattr(a, 'bg_every', 0), a.bg_flush())
    fb_main(a, b, V, AA, STb, lds0=0x20000)
    fb_store(a, b, L, 'sc1')
    Sg.free(b.sP, b.sQo)
    hq = a.vmq[-1]
    nq = O('q_drain', 0)
    a.bg = [lambda i=i: w1dma(i) for i in range(nq)]; a.bg_every = 6
    V = c1pool()
    c1_consts_a(a, c, V, Sg)
    a.bg_every = 0; a.bg_flush()
    a.wait(hq)
    a.barrier()
    keep = list(a.vmq)
    a.I('s_cmp_lg_u32', sW, 0); a.I('s_cbranch_scc1', L + '_nsy')
    if not A1:
        a.I('s_and_b32', sT, s(2), 7); a.I('s_lshl_b32', sT, sT, 7); a.I('s_add_u32', sT, sT, CX)
        a.I('s_mov_b64', EXEC, 1); a.I('v_mov_b32', t0, 1); a.I('v_mov_b32', t1, 0)
        a.I('buffer_atomic_add', t0, t1, srdC, sT, mods='offen sc0 sc1'); a.wait_vm0()
        a.I('s_mov_b64', EXEC, -1); a.I('v_readfirstlane_b32', sT, t0)
        a.I('s_and_b32', sT2, s(2), 7); a.I('s_cmp_eq_u32', sT2, SPECIAL & 7); a.I('s_cselect_b32', sT2, 16, 15)
        a.I('s_cmp_lg_u32', sT, sT2); a.I('s_cbranch_scc1', L + '_nsy')
        a.I('v_lshlrev_b32', t0, 7, vL); a.I('s_mov_b32', sT, CX + 1024)
        a.I('buffer_atomic_add', vOne, t0, srdC, sT, mods='offen sc1')
    else:
        a.I('v_lshlrev_b32', t0, 10, vL); a.I('v_mov_b32', t1, 0x10000000); a.I('v_cmp_gt_u32', VCC, 32, vL); a.I('v_cndmask_b32', t0, t1, t0, VCC)
        a.I('s_and_b32', sT, s(2), 7); a.I('s_lshl_b32', sT, sT, 7); a.I('s_add_u32', sT, sT, CX)
        a.I('buffer_atomic_add', vOne, t0, srdC, sT, mods='offen sc1')
    a.label(L + '_nsy')
    a.restore((keep, [], {r: h for h in keep for r in h.defs}))
    ST(2)
    bias_load(); tr_addr()
    c.no_y = True
    c1_issue_x(a, c, V, Sg)
    c1_addr_q(a, c, V, Sg)
    nb = O('dma_wait', 20)
    a.bg = [lambda i=i: w1dma(i) for i in range(nq, nb)]; a.bg_every = O('dma_wait_every', 8)
    c1_consts_b(a, c, V, Sg, 0x20000, 0x22000)
    a.bg_every = 0; a.bg_flush()
    c1_yinit(a, c, V); bias_unpack()
    wait_all2all('f')
    c1_load_q(a, c, 0x20000, 'sc1')
    a.bg = [lambda i=i: w1dma(i) for i in range(len(hdma), 32)] + [w2load for _ in range(NJ - nw2[0])]
    for i in range(O('dma_q', 4)): a.bg.pop(0)()
    c.hook_after_q = lambda: setattr(a, 'bg_every', O('dma_every', 12))
    c.hook_before_st = lambda: setattr(a, 'bg_every', 0)
    ST.map = {1: None, 2: 3, 3: None, 4: None, 5: 4}
    c1_main(a, c, V, Sg, defer=True)
    ST.map = None
    c1_stores(a, c, SM)
    for _ in range(O('dma_post', 8)):
        if a.bg: a.bg.pop(0)()
    c1_signal('f')
    ST(9 if det == 'b' else 10)
    a.bg_flush()
    assert len(hdma) == 32 and nw2[0] == NJ
    a.wait(hdma[-1]); a.barrier(); tr_reads(); a.wait_lg0()
    npend = sum(1 for h in a.vmq if h.region == 0)
    assert all(h.region or (h.op == 'buffer_load_dwordx4' and h.defs) for h in a.vmq), [h.text for h in a.vmq]
    a.label(L + '_join_h')
    if det == 'clk': ST.both(3)
    def vpoll_issue(soff): return apoll_issue(a, sCnt, soff, sPv)
    def vpoll_check(tag, soff, mask, h=None):
        word, target = {0xffff: (0, 16), 0x7f: (0, 7), 0x7f00: (1, 7), 0x7f0000: (2, 7), 0x7f000000: (3, 7)}[mask]
        return apoll_check(a, L, tag, sCnt, soff, sPv, word, target, sPc)
    nw2_br = nw2[0]
    srd(a, srdH1, P_WS, H1, H1_SZ)
    srdB2 = srdB; srdO = srdA
    vHo = c.vN; vOo = c.vG; vB2 = vBo; vRd = vW1; vWr = Vp(3)
    sHo = Sg(2); sOo = Sg(2)
    vTch = Vp(); vDum = vSigA
    a.I('s_and_b32', sT, sM, 7); a.I('s_lshl_b32', sT, sT, 7); a.I('v_lshl_add_u32', t0, vL, 10, sT)
    a.I('v_mov_b32', t1, 0x10000000); a.I('v_cmp_gt_u32', VCC, 14, vL); a.I('v_cndmask_b32', vTch, t1, t0, VCC)
    srd(a, srdB2, P_B2, 0, 1024); srd(a, srdO, P_OUT, 0, 2048 * 1024)
    a.I('s_and_b32', sCol, sM, 7); a.I('s_lshl_b32', sCol, sCol, 7); a.I('s_lshl_b32', sT, sW, 5); a.I('s_add_u32', sCol, sCol, sT)
    a.I('v_lshrrev_b32', t0, 5, vL); a.I('v_lshlrev_b32', vB2, 4, t0)
    a.I('v_and_b32', t0, 31, vL); a.I('v_lshl_add_u32', vHo, t0, 10, vB2)
    a.I('s_lshl_b32', sHo[0], sTk, 15); a.I('s_add_u32', sHo[0], sHo[0], sCol); a.I('s_add_u32', sHo[1], sHo[0], 32768)
    a.I('v_bfe_u32', t0, vL, 4, 1); a.I('v_lshl_add_u32', vOo, t0, 19, vB2)
    a.I('v_and_b32', t0, 15, vL); a.I('v_lshl_add_u32', vOo, t0, 15, vOo)
    a.I('s_lshr_b32', sT, sTk, 1); a.I('s_lshl_b32', sT, sT, 10); a.I('s_add_u32', sOo[0], sT, sCol); a.I('s_add_u32', sOo[1], sOo[0], 1 << 20)
    for x in range(1, 4):
        a.I('s_xor_b32', sT, sW, x); a.I('s_mul_i32', sT, sT, 6144); a.I('s_add_u32', sT, sT, (x - 1) * 2048)
        a.I('v_add_u32', vWr[x - 1], sT, vL16)
    a.I('s_mul_i32', sT, sW, 6144); a.I('v_add_u32', vRd, sT, vL16)
    a.I('s_cmp_ge_u32', sM, 14)
    a.I('s_cbranch_scc1', L + '_nog1')
    snap_br = a.snapshot()
    vUo = Vp(); vC1 = Vp(2); sC2 = s(10, 2); sPar = s(5); sTile = s(12, 4); sX = s(16); sY = s(17)
    a.I('v_bfe_u32', t0, vL, 3, 2); a.I('v_lshlrev_b32', vUo, 13, t0)
    a.I('v_lshrrev_b32', t0, 5, vL); a.I('v_lshl_add_u32', vUo, t0, 7, vUo)
    a.I('v_and_b32', t0, 7, vL); a.I('v_lshl_add_u32', vUo, t0, 4, vUo)
    a.I('s_and_b32', sPar, sM1, 1)
    for sg in range(4):
        a.I('s_lshl_b32', sT, sPar, 1); a.I('s_xor_b32', sT, sT, 2 * (sg & 1) + (sg >> 1)); a.I('s_lshl_b32', sT2, sR1, 2); a.I('s_add_u32', sTile[sg], sT, sT2)
    for e in range(2): a.I('v_mov_b32', vC1[e], GC1); a.I('s_mov_b32', sC2[e], GC2)
    sH1o = sSo; sQ = s(4); sSg = (sPar, sM0)
    a.I('s_lshr_b32', sT, sM1, 1); a.I('s_mul_i32', sT2, sPar, 7); a.I('s_add_u32', sT2, sT, sT2); a.I('s_lshl_b32', sQ, sT2, 11)
    a.I('s_mul_i32', sT2, sW, 28 * 1024); a.I('s_add_u32', sQ, sQ, sT2)
    a.I('s_lshl_b32', sM0, sT, 2)
    if AT: a.I('s_mov_b32', sM0, 0)
    a.I('s_lshl_b32', sT, sR1, 4); a.I('s_lshl_b32', sT2, sPar, 3); a.I('s_add_u32', sT2, sT2, sT)
    a.I('s_lshl_b32', sT2, sT2, 2); a.I('s_add_u32', sT2, sT2, sW); a.I('s_lshl_b32', sT2, sT2, 7); a.I('s_add_u32', sT2, sT2, sM0)
    a.I('s_add_u32', sPar, sT2, CB); a.I('s_xor_b32', sM0, sPar, 8 * 512)
    PT = O('ptile', 1)
    def tile_check(tag, sg, h_issue=True):
        a.I('s_and_b32', sT2, sTile[sg], 3); a.I('s_lshl_b32', sT2, sT2, 2); a.I('s_add_u32', sT2, sT2, sOwn1)
        a.wait_lg0()
        a.I('s_mov_b32', sPc, SPIN)
        a.label(L + '_pollt' + tag)
        a.I('s_load_dword', sPv[0], sCnt, sT2, mods='glc'); a.wait_lg0()
        a.I('s_cmp_ge_u32', sPv[0], 4); a.I('s_cbranch_scc1', L + '_donet' + tag)
        a.I('s_sub_u32', sPc, sPc, 1); a.I('s_cmp_lg_u32', sPc, 0); a.I('s_cbranch_scc1', L + '_pollt' + tag)
        a.label(L + '_donet' + tag)
    def all_check(tag):
        a.wait_lg0()
        a.I('s_mov_b32', sPc, SPIN)
        a.label(L + '_pollt' + tag)
        a.I('s_load_dwordx4', sPv, sCnt, sOwn1, mods='glc'); a.wait_lg0()
        a.I('s_min_u32', sPv[0], sPv[0], sPv[1]); a.I('s_min_u32', sPv[2], sPv[2], sPv[3]); a.I('s_min_u32', sPv[0], sPv[0], sPv[2])
        a.I('s_cmp_ge_u32', sPv[0], 4); a.I('s_cbranch_scc1', L + '_donet' + tag)
        a.I('s_sub_u32', sPc, sPc, 1); a.I('s_cmp_lg_u32', sPc, 0); a.I('s_cbranch_scc1', L + '_pollt' + tag)
        a.label(L + '_donet' + tag)
    if PT: tile_check('0', 0)
    else:
        vpoll_issue(sOwn1)
        vpoll_check('a', sOwn1, 0xffff)
    ST(5 if det != 'b' else 10)
    hslot = {}
    if det == 'g0': ST.map = {5: 9, 6: None, 7: None, 8: None, 9: None, 10: None, 11: None, 12: None}
    SLOT = (0x20000, 0, 0x8000, 0x10000)
    def tokdma(sg, i):
        if i == 0:
            a.I('s_lshl_b32', sX, sTile[sg], 15); a.I('s_lshl_b32', sT, sW, 11); a.I('s_add_u32', sX, sX, sT)
            a.I('s_lshl_b32', sY, sW, 13); a.I('s_add_u32', sY, sY, SLOT[sg])
        a.I('s_add_u32', M0, sY, 1024 * i)
        a.I('s_add_u32', sT, sX, 256 * i)
        hslot[sg] = dma16(a, vUo, srdU, sT, LM)
    tt = O('ttouch', 0)
    if tt:
        vT2 = TA[0]
        a.I('s_lshr_b32', sT, sM1, 1); a.I('v_mul_u32_u24', t0, 7, vL); a.I('v_add_u32', t0, sT, t0)
        a.I('v_lshlrev_b32', t1, 7, t0); a.I('v_mov_b32', vT2, 0x10000000); a.I('v_cmp_gt_u32', VCC, 256, t0); a.I('v_cndmask_b32', vT2, vT2, t1, VCC)
        a.I('s_cmp_eq_u32', sW, 0); a.I('s_cselect_b32', sT, sTile[0], sTile[1]); a.I('s_cmp_eq_u32', sW, 2); a.I('s_cselect_b32', sT, sTile[2], sT)
        a.I('s_cmp_eq_u32', sW, 3); a.I('s_cselect_b32', sT, sTile[3], sT); a.I('s_lshl_b32', sT, sT, 15)
        bload(a, vDum, vT2, srdU, sT, 0, LM); a.pend.pop(('v', vDum.i), None)
    for i in range(8): tokdma(0, i)
    a.barrier()
    if PT: all_check('1')
    for i in range(8): tokdma(1, i)
    def w2touch():
        nl = (28 - KS) * 8 * 2 // 4
        per = (28 - KS) * 8
        a.I('s_and_b32', sT, sR, 1); a.I('s_lshl_b32', sT, sT, 1); a.I('s_add_u32', sT, sT, sTh); a.I('s_mul_i32', sT, sT, nl)
        a.I('v_add_u32', t0, sT, vL)
        a.I('v_lshlrev_b32', t1, 7, t0); a.I('v_add_u32', t1, KS * 1024, t1)
        a.I('v_cmp_le_u32', VCC, per, t0); a.I('v_add_u32', t0, KS * 1024, t1); a.I('v_cndmask_b32', t1, t1, t0, VCC)
        a.I('v_mov_b32', t0, 0x10000000); a.I('v_cmp_gt_u32', VCC, nl, vL); a.I('v_cndmask_b32', t1, t0, t1, VCC)
        a.I('s_min_u32', sT, sWg[0], sWg[1])
        bload(a, vDum, t1, srdW2, sT); a.pend.pop(('v', vDum.i), None)
    if O('wtouch', 0) and KS < 28: w2touch()
    ne = O('w2_early', 0) + nw2[0]
    while nw2[0] < ne: w2load()
    vL16b = TA[1]; vL16c = TA[0]
    a.I('v_add_u32', vL16b, 65536, vL16); a.I('v_add_u32', vL16c, 0x20000, vL16)
    a.wait(hslot[0]); a.barrier()
    ST(6 if det != 'b' else 11)
    if det == 'b': ST.on = False
    ST.map = {6: 7, 7: 8, 8: 9, 9: 11, 10: None, 11: 12, 12: 13}
    if det == 'g1': ST.on = True; ST.map = None; ST(5)
    if det == 'clk': ST.both(5)
    NB = 8
    def rd(n):
        sg, f = n // 32, n % 32
        dsr(a, RING[4 * (n % NB):4 * (n % NB) + 4], (vL16, vL16b, vL16c)[SLOT[sg] >> 16], SLOT[sg] % 65536 + f * 1024)
    OUT = TMP[16:24]
    lastst = {}
    def signal(sg):
        a.wait(lastst[sg])
        if AT: a.I('buffer_atomic_add', vOne, vSig, srdC, sSg[sg & 1], mods='offen offset:%d sc1' % (4 * sg))
        else: bstore(a, vOne, vSig, srdC, sSg[sg & 1], 32 * sg, SM1)
    def gelu_tile(sg, pk=False):
        acc = ACC[32 * (sg % 2):32 * (sg % 2) + 16]
        def st(u):
            if u == 0:
                a.I('s_mul_i32', sH1o, sTile[sg], 112 * 1024); a.I('s_add_u32', sH1o, sH1o, sQ)
            lastst[sg] = bstore(a, OUT[4 * u:4 * u + 4], vL16, srdH1, sH1o, 1024 * u, SM1)
        if pk:
            return gelu_pk_ops(a, acc, TMP[0:16], OUT, sC2, vC1) + [lambda: st(0), lambda: st(1)]
        ops = gelu_ops(a, acc, TMP[0:16], OUT, sC2[0], vC1[0])
        half = len(ops) // 2
        return ops[:half] + [lambda: st(0)] + ops[half:] + [lambda: st(1)]
    w2s = O('w2_start', 9); w2e = O('w2_every', 2); sigat = O('sigat', 26 if SM1 else 12)
    fill = []; nread = 0; lim = 0; nl0 = 0
    apf = O('apf', 10); l0f = O('l0f', 17)
    sAo = sX
    L3X = 1
    def hbuf(sg, k):
        if sg == 3 and L3X:
            if k < 4: return W1[112 + 4 * k:116 + 4 * k]
            if k < 12: return RING[4 * (k - 4):4 * (k - 4) + 4]
            return TMP[16 + 4 * (k - 12):20 + 4 * (k - 12)]
        n = (14 * sg + k) % 28
        return W1[4 * n:4 * n + 4]
    cur = [None]
    def ldfrag(sg, k):
        assert k % 4 == 0 or cur[0] == sg, 'load streams interleaved'
        cur[0] = sg
        if k == 0 and O('htouch', 0):
            a.I('s_add_u32', sAo, sA[sg % 2], (sg >> 1) * 112 * 1024)
            h = bload(a, vDum, vTch, srdH1, sAo, 0, LM1); a.pend.pop(('v', vDum.i), None)
        if k % 4 == 0: a.I('s_add_u32', sAo, sA[sg % 2], (sg >> 1) * 112 * 1024 + k * 1024)
        bload(a, hbuf(sg, k), vL16, srdH1, sAo, (k % 4) * 1024, LM1)
    BURST = O('burst', 1)
    if BURST:
        bsig = O('bsig', 30); gw = O('gw', 10)
        for n in range(128):
            sg, f = n // 32, n % 32
            if n == 0: lim = 32
            if f == 32 - NB and sg < 3:
                nx = sg + 1
                a.wait(hslot[nx]); a.barrier(); lim = 32 * (nx + 1)
            while nread < min(n + NB - 1, lim):
                rd(nread); nread += 1
            if n % 2 == 0 and n + 1 < lim:
                h = a.pend.get(('v', RING[4 * ((n + 1) % NB)].i))
                if h is not None: a.wait(h)
            d = ACC[32 * (sg % 2):32 * (sg % 2) + 16]
            a.I(MF32, d, W1[4 * f:4 * f + 4], RING[4 * (n % NB):4 * (n % NB) + 4], d if f else BIAS)
            if sg == 3 and f == O('l0c', 1): vpoll_check('b0', sCb, 0x7f)
            if f % 2 == 1:
                if sg < 2 and f < 16: tokdma(sg + 2, f // 2)
                elif sg == 3:
                    if f > O('l0c', 1) and nl0 < 14: ldfrag(0, nl0); nl0 += 1
                elif nw2[0] < 56: w2load()
            if sg >= 1 and f == bsig: signal(sg - 1)
            if f == 31:
                if det == 'g1': ST(6 + 2 * sg)
                if sg < 3:
                    for k, o in enumerate(gelu_tile(sg, pk=True)):
                        if sg == 2 and k == 40: vpoll_issue(sCb)
                        if k % gw == gw - 1 and nw2[0] < 56: w2load()
                        o()
                    if det == 'g1': ST(7 + 2 * sg)
    else:
        for n in range(128):
            sg, f = n // 32, n % 32
            if n == 0: lim = 32
            if f == 32 - NB and sg < 3:
                nx = sg + 1
                if det == 'g1': ST(5 + 2 * nx - 1)
                a.wait(hslot[nx]); a.barrier(); lim = 32 * (nx + 1)
                if det == 'g1': ST(5 + 2 * nx)
            if f == 0 and sg > 0:
                assert not fill
                fill = gelu_tile(sg - 1)
            while nread < min(n + NB - 1, lim):
                rd(nread); nread += 1
            if n % 2 == 0 and n + 1 < lim:
                h = a.pend.get(('v', RING[4 * ((n + 1) % NB)].i))
                if h is not None: a.wait(h)
            d = ACC[32 * (sg % 2):32 * (sg % 2) + 16]
            a.I(MF32, d, W1[4 * f:4 * f + 4], RING[4 * (n % NB):4 * (n % NB) + 4], d if f else BIAS)
            isdma = False
            if sg == 0 and f < 16 and f % 2 == 0: tokdma(2, f // 2); isdma = True
            elif sg == 1 and f < 16 and f % 2 == 0: tokdma(3, f // 2); isdma = True
            if n == 96 + apf: vpoll_issue(sCb)
            if n == 96 + l0f:
                if det == 'g1': ST(12)
                vpoll_check('b0', sCb, 0x7f)
                if det == 'g1': ST(13)
            if n > 96 + l0f and nl0 < 14: ldfrag(0, nl0); nl0 += 1
            if nw2[0] < 56 and n >= w2s and (n - w2s) % w2e == 0 and not isdma: w2load()
            if f >= 1:
                for k in range(4):
                    if fill: fill.pop(0)()
            if sg >= 2 and f == sigat:
                if det == 'g1' and sg == 2: ST(1)
                signal(sg - 2)
                if det == 'g1' and sg == 2: ST(2)
    while nw2[0] < 56: w2load()
    if det == 'clk': ST.both(7)
    if det == 'g2': ST.on = True; ST.map = None; ST(1)
    else: ST(3 if det == 'g1' else 6)
    if det == 'g1': ST.on = False
    HB = TMP[24:40]; HP = TMP[0:12]
    def mm(sg, extra=None):
        extra = extra or {}
        for k in range(14):
            for cp in range(2):
                d = ACC2[32 * (sg >> 1) + 16 * cp:32 * (sg >> 1) + 16 * cp + 16]
                a.I(MF32, d, W2(28 * (sg % 2) + 2 * k + cp), hbuf(sg, k), d if (k or sg % 2) else 0)
                ex = extra.get(k, [])
                for o in (ex[:(len(ex) + 1) // 2] if cp == 0 else ex[(len(ex) + 1) // 2:]): o()
    def sched(*items):
        ex = {}
        for k0, per, ops in items:
            for n, o in enumerate(ops): ex.setdefault(min(13, k0 + n // per), []).append(o)
        return ex
    def hp_loads():
        return [lambda tk=tk: bload(a, HP[4 * tk:4 * tk + 4], vHo, srdH, sHo[tk], 0, LM) for tk in range(2)] + [lambda: bload(a, HP[8:12], vB2, srdB2, sCol)]
    while nl0 < 14: ldfrag(0, nl0); nl0 += 1
    assert not fill
    if BURST:
        l1 = 0; b1k = O('b1t', 16)
        vpoll_issue(sCb)
        for k, o in enumerate(gelu_tile(3, pk=True)):
            if k == b1k: vpoll_check('b1', sCb, 0x7f00)
            if k > b1k and (k - b1k) % O('l1e', 8) == 0 and l1 < 14: ldfrag(1, l1); l1 += 1
            o()
        ST(2 if det == 'g2' else 7)
        S_ = (lambda i: ST(i)) if det == 'g2' else (lambda i: None)
        ld = lambda sg: [lambda k=k: ldfrag(sg, k) for k in range(14)]
        mm(0, sched((0, 1, ld(1)[l1:]), (O('s3k', 9), 3, [lambda: S_(6), lambda: signal(3), lambda: S_(7)]),
                    (O('hpk', 11), 1, hp_loads()), (O('apf2', 10), 1, [lambda: vpoll_issue(sCb)])))
    else:
        tail = gelu_tile(3, pk=True)
        for k, o in enumerate(tail):
            if k == O('apf1', 30): vpoll_issue(sCb)
            o()
        ST(2 if det == 'g2' else 7)
        S_ = (lambda i: ST(i)) if det == 'g2' else (lambda i: None)
        ld = lambda sg: [lambda k=k: ldfrag(sg, k) for k in range(14)]
        b1k = O('b1k', 0)
        mm(0, sched((O('s2k', 2), 3, [lambda: S_(4), lambda: signal(2), lambda: S_(5)]), (b1k, 2, [lambda: vpoll_check('b1', sCb, 0x7f00), lambda: S_(3)]),
                    (b1k + 1, O('l1r', 2), ld(1)), (O('s3k', 10), 3, [lambda: S_(6), lambda: signal(3), lambda: S_(7)]),
                    (O('hpk', 11), 1, hp_loads()), (O('apf2', 12), 1, [lambda: vpoll_issue(sCb)])))
    a.I('s_branch', L + '_g2')
    saved = a.snapshot()
    a.reset_state()
    a.label(L + '_nog1')
    if det == 'g2': ST.on = False
    a.restore(snap_br)
    nw2[0] = nw2_br
    if KS < 28 and O('ntouch', 1):
        a.I('v_lshlrev_b32', vSigA, 7, vL)
        a.I('s_and_b32', sT, sR, 1); a.I('s_lshl_b32', sT, sT, 1); a.I('s_and_b32', sT2, sM, 1); a.I('s_add_u32', sT, sT, sT2)
        a.I('s_lshl_b32', sT, sT, 2); a.I('s_add_u32', sT, sT, sW); a.I('s_mul_i32', sT2, sT, 4 * 28 * 1024)
        k = 0
        for blk in range(4):
            for lo in range(KS, 28, 8):
                lo = min(lo, 20)
                a.I('s_add_u32', sT, sT2, (blk * 28 + lo) * 1024)
                bload(a, TMP[16 + k % 8], vSigA, srdW2, sT); k += 1
    while nw2[0] < 56: w2load()
    vpoll_issue(sCb); vpoll_check('c0', sCb, 0x7f)
    for k in range(14): ldfrag(0, k)
    vpoll_issue(sCb); vpoll_check('c1', sCb, 0x7f00)
    for k in range(14): ldfrag(1, k)
    mm(0, sched((O('hpk', 11), 1, hp_loads()), (O('apf2', 12), 1, [lambda: vpoll_issue(sCb)])))
    a.wait_vm0()
    a.label(L + '_g2')
    a.restore(saved)
    if det == 'g2': ST.on = True
    ST(8)
    vpoll_check('b2', sCb, 0x7f0000)
    if det == 'g2': ST(12)
    b3k = O('b3k', 14)
    l3 = [(O('apf3', 10), 1, [lambda: vpoll_issue(sCb)]), (b3k % 14, 1, [lambda: vpoll_check('b3', sCb, 0x7f000000)]), (b3k % 14 + (1 if b3k % 14 < 13 else 0), O('l3r', 3), ld(3))]
    mm(1, sched((0, O('l2r', 2), ld(2)), *(l3 if b3k < 14 else l3[:1])))
    ST(9)
    hb = []
    for tk in range(2):
        for i in range(4):
            h = HP[4 * tk + i]; b_ = HP[8 + i]
            hb.append(lambda h=h, b_=b_, tk=tk, i=i: (a.I('v_lshlrev_b32', HB[8 * tk + i], 16, h), a.I('v_lshlrev_b32', t0, 16, b_), a.I('v_add_f32', HB[8 * tk + i], HB[8 * tk + i], t0)))
            hb.append(lambda h=h, b_=b_, tk=tk, i=i: (a.I('v_and_b32', HB[8 * tk + 4 + i], 0xffff0000, h), a.I('v_and_b32', t0, 0xffff0000, b_), a.I('v_add_f32', HB[8 * tk + 4 + i], HB[8 * tk + 4 + i], t0)))
    A2 = lambda tk, cp, jq: ACC2[32 * tk + 16 * cp + 4 * jq:32 * tk + 16 * cp + 4 * jq + 4]
    wr = lambda tk: [lambda x=x, cp=cp: dsw(a, vWr[x - 1], A2(tk, cp, x), tk * 24576 + cp * 1024) for x in range(1, 4) for cp in range(2)]
    def fin(tk, pk):
        ops = [lambda x=x, cp=cp: dsr(a, A2(tk, cp, x + 1), vRd, tk * 24576 + x * 2048 + cp * 1024) for x in range(3) for cp in range(2)]
        for cp in range(2):
            own = A2(tk, cp, 0)
            srcs = [HB[8 * tk + 4 * cp:8 * tk + 4 * cp + 4]] + [A2(tk, cp, x + 1) for x in range(3)]
            for sr in srcs:
                if pk: ops += [lambda own=own, sr=sr, e=e: a.I('v_pk_add_f32', own[e:e + 2], own[e:e + 2], sr[e:e + 2]) for e in (0, 2)]
                else: ops += [lambda own=own, sr=sr, e=e: a.I('v_add_f32', own[e], own[e], sr[e]) for e in range(4)]
        o4 = HB[8 * tk:8 * tk + 4]
        ops += [lambda i=i: cvt(a, o4[i], A2(tk, 0, 0)[i], A2(tk, 1, 0)[i]) for i in range(4)]
        ops.append(lambda: bstore(a, o4, vOo, srdO, sOo[tk], 0, ('sc1' if (O('outsc1', 0) >> tk) & 1 else ('nt' if O('outnt', 0) else ''))))
        return ops
    mm(2, sched(*([] if b3k < 14 else l3[1:]), (O('wr0k', 6), 1, wr(0)), (0, 2, hb)))
    ST(10)
    a.wait_lg0()
    a.barrier()
    f0 = fin(0, False)
    mm(3, sched((0, 2, f0[:6]), (3, 4, f0[6:])))
    if det == 'clk': ST.both(9)
    ST(11)
    for o in wr(1): o()
    a.wait_lg0()
    a.barrier()
    for o in fin(1, True): o()
    ST.on = bool(O('stamp', 0))
    if det == 'clk': ST.both(11)
    elif det not in ('g1', 'g2'): ST(12)
    ST.flush(sW)
    a.I('s_endpgm')
    emit_helper(npend)
    a.label(L + '_fast_end')
    a.label(L + '_end')
    a.I('s_endpgm')
    return dict(name=L, grid=256, block=256, lds=0x28000, nv=256, na=256, ns=102)
```
